```python
import torch

def _softmax(x, axis=-1):
    return torch.softmax(x, dim=axis)
def _gelu(x):
    return torch.nn.functional.gelu(x, approximate="tanh")
def _silu(x):
    return torch.nn.functional.silu(x)
def _sigmoid(x):
    return torch.sigmoid(x)
def _layernorm(x, axis=-1, eps=1e-5):
    m = x.mean(dim=axis, keepdim=True)
    v = x.var(dim=axis, keepdim=True, unbiased=False)
    return (x - m) / torch.sqrt(v + eps)
def _scatter_add(tgt, idx, src, axis=0):
    return tgt.clone().index_add_(axis, idx, src)
def _segment_sum(src, seg, n):
    out = torch.zeros((n,) + src.shape[1:], dtype=src.dtype)
    return out.index_add_(0, seg, src)
def _pad(x, pw):
    flat = tuple(v for pair in reversed(pw) for v in pair)
    return torch.nn.functional.pad(x, flat)

kernel_name = 'concat_heads__gqa_block_cached__mha_block_cached__near_ridge'

def setup_inputs():

    _w = (lambda a: (lambda t: t.to(torch.bfloat16) if t.is_floating_point() else t)(torch.as_tensor(a)))
    def _A_setup():
        B, Sq, D = 16, 96, 576
        Hq, Hkv, Sk, Dh = 32, 16, 1024, 128
        assert Hq % Hkv == 0, (Hq, Hkv)
        return {
            "x": _w((lambda *s: torch.randn(*s, dtype=torch.bfloat16) * 0.8)(B, Sq, D)),
            "k_cache": _w((lambda *s: torch.randn(*s, dtype=torch.bfloat16) * 0.8)(B, Hkv, Sk, Dh)),
            "v_cache": _w((lambda *s: torch.randn(*s, dtype=torch.bfloat16) * 0.05)(B, Hkv, Sk, Dh)),
            "wq": _w((lambda *s: torch.randn(*s, dtype=torch.bfloat16) * 0.8)(D, Hq * Dh) * (D ** -0.5)),
            "wo": _w((lambda *s: torch.randn(*s, dtype=torch.bfloat16) * 0.05)(Hq * Dh, D) * ((Hq * Dh) ** -0.5)),
        }
    _A_in = _A_setup()

    def _B_setup():
        B, Sq, D = 16, 96, 576
        H, Sk, Dh = 32, 1024, 128
        return {
            "x": _w((lambda *s: torch.randn(*s, dtype=torch.bfloat16) * 0.8)(B, Sq, D)),
            "k_cache": _w((lambda *s: torch.randn(*s, dtype=torch.bfloat16) * 0.8)(B, H, Sk, Dh)),
            "v_cache": _w((lambda *s: torch.randn(*s, dtype=torch.bfloat16) * 0.05)(B, H, Sk, Dh)),
            "wq": _w((lambda *s: torch.randn(*s, dtype=torch.bfloat16) * 0.8)(D, H * Dh) * (D ** -0.5)),
            "wo": _w((lambda *s: torch.randn(*s, dtype=torch.bfloat16) * 0.05)(H * Dh, D) * ((H * Dh) ** -0.5)),
        }
    _B_in = _B_setup()

    return {
        "A_x": _A_in["x"],
        "A_k_cache": _A_in["k_cache"],
        "A_v_cache": _A_in["v_cache"],
        "A_wq": _A_in["wq"],
        "A_wo": _A_in["wo"],
        "B_x": _B_in["x"],
        "B_k_cache": _B_in["k_cache"],
        "B_v_cache": _B_in["v_cache"],
        "B_wq": _B_in["wq"],
        "B_wo": _B_in["wo"],
    }

def reference(A_x, A_k_cache, A_v_cache, A_wq, A_wo, B_x, B_k_cache, B_v_cache, B_wq, B_wo):
    def _A_ref(x, k_cache, v_cache, wq, wo):
        B, Sq, D = x.shape
        Hq, Dh = 32, 128
        Hkv = k_cache.shape[1]
        rep = Hq // Hkv
        q = (lambda x, *d: x.permute(*d))((x @ wq).reshape(B, Sq, Hq, Dh), 0, 2, 1, 3)
        k = (lambda x, n, axis: torch.repeat_interleave(x, n, dim=axis))(k_cache, rep, axis=1)
        v = (lambda x, n, axis: torch.repeat_interleave(x, n, dim=axis))(v_cache, rep, axis=1)
        scores = torch.einsum("bhqd,bhkd->bhqk", q, k) * (Dh ** -0.5)
        p = _softmax(scores, axis=-1)
        o = torch.einsum("bhqk,bhkd->bhqd", p, v)
        return (lambda x, *d: x.permute(*d))(o, 0, 2, 1, 3).reshape(B, Sq, Hq * Dh) @ wo

    def _B_ref(x, k_cache, v_cache, wq, wo):
        B, Sq, D = x.shape
        H, Dh = 32, 128
        q = (lambda x, *d: x.permute(*d))((x @ wq).reshape(B, Sq, H, Dh), 0, 2, 1, 3)
        scores = torch.einsum("bhqd,bhkd->bhqk", q, k_cache) * (Dh ** -0.5)
        p = _softmax(scores, axis=-1)
        o = torch.einsum("bhqk,bhkd->bhqd", p, v_cache)
        return (lambda x, *d: x.permute(*d))(o, 0, 2, 1, 3).reshape(B, Sq, H * Dh) @ wo

    a = _A_ref(A_x, A_k_cache, A_v_cache, A_wq, A_wo)
    b = _B_ref(B_x, B_k_cache, B_v_cache, B_wq, B_wo)
    return torch.concatenate([a, b], axis=-1)
```

```python
NAME = "concat_heads__gqa_block_cached__mha_block_cached__near_ridge"
class Asm:
    def __init__(self):
        self.L = []
    def __call__(self, s):
        for line in s.split("\n"):
            line = line.strip()
            if line:
                self.L.append(line)
    def text(self):
        return "\n".join(self.L) + "\n"

def header(A, launches):
    for l in launches:
        A.L.append(l)
    A('.amdgcn_target "amdgcn-amd-amdhsa--gfx950"')
    A(".text")

def kernel_begin(A, name):
    A(f".globl {name}")
    A(".p2align 8")
    A(f".type {name},@function")
    A(f"{name}:")

def descriptor(A, name, vgpr=512, accum=256, sgpr=102, first=True):
    if first:
        A('.section .rodata,"a"')
    A(".p2align 6")
    A(f".amdhsa_kernel {name}")
    A(f".amdhsa_next_free_vgpr {vgpr}")
    A(f".amdhsa_next_free_sgpr {sgpr}")
    A(f".amdhsa_accum_offset {accum}")
    A(".amdhsa_group_segment_fixed_size 0")
    A(".amdhsa_kernarg_size 104")
    A(".amdhsa_user_sgpr_count 2")
    A(".amdhsa_user_sgpr_kernarg_segment_ptr 1")
    A(".amdhsa_system_sgpr_workgroup_id_x 1")
    A(".end_amdhsa_kernel")
```

```python
import sys, struct
from asmlib import *

LOG2E = 1.4426950408889634
def f2u(x): return struct.unpack("<I", struct.pack("<f", x))[0]

CFG = dict(stamps=False, thr=256.0, nokv=False, split_reduce=False, wopf=-1, share=False, tlb=False, qbud=6, da=-1, wqf='nt', xf='', wof='nt', pff='nt', wqn=4, pf2=True, pfs=12, xrot=1, won=2, slp=16, early=False, wb=False, fst=None, rfl='')

REG = 34816
XB = 4 * REG
K1O, V1O, K0O, V0O = 0, 8704, 16896, 25600
KVD = 16896
RINGO = 18432
STAMP_OFF = 64 << 20
PART = 1152 * 1024
XPART = 768 * 1024

sW = 3
SX, SWQ, SK, SV, SP = 4, 8, 12, 16, 20
SWO, SOUT = 4, 8
sBR, sJJ, sB, sH = 24, 25, 27, 28
sCI = 29
sRET = 30
sWQ0, sX0 = 32, 33
sT0, sT1, sT2, sT3 = 34, 35, 36, 37
sRG = 38
sLX = 39
sCNT = 40
sWC, sXC = 41, 42
sCX = 43
sTO, sTO2 = 44, 45
sTHR = 46
sSC = 48
sKD, sKR = 50, 51
sRW, sR3 = 26, 47
sKVB = 50
sKL, sVL = 26, 47
sST = [52, 54, 56, 58, 60, 62, 84, 86, 88, 90, 92, 94]
sWS = 96
sDBG = 98
vWoX, vWoM, vLane = 5, 6, 7
vKd, vVd, vKr, vVr = 8, 9, 10, 12
vS, vNM, vP, vE, vL, vPS, vT, vQ = 16, 64, 112, 136, 144, 147, 148, 160
vWd, vXd, vWr, vXr, vWr3, vXr2 = 16, 17, 20, 24, 32, 36
vQA = 64
aO, aK, aV = 0, 192, 224
aWf, aXf = 192, 224

def srd(n): return f"s[{n}:{n+3}]"
def vr(n, c): return f"v[{n}:{n+c-1}]"
def ar(n, c): return f"a[{n}:{n+c-1}]"

class VM:
    def __init__(self): self.ops = []
    def add(self, tag): self.ops.append(tag)
    def need(self, tag):
        idx = max(i for i, t in enumerate(self.ops) if t == tag)
        return len(self.ops) - 1 - idx

def emit(A, vm, items):
    for x in items:
        if isinstance(x, str): A(x)
        elif x[0] == "vm":
            vm.add(x[1]); A(x[2])
        elif x[0] == "wait":
            n = min(vm.need(t) for t in x[1])
            assert n <= 63
            A(f"s_waitcnt vmcnt({n}) {x[2]}".strip())

def interleave(A, mfmas, gaps, vm=None):
    emit(A, vm, gaps.get(-1, []))
    for i, m in enumerate(mfmas):
        emit(A, vm, gaps.get(("pre", i), []))
        A(m)
        emit(A, vm, gaps.get(i, []))

def stamp(A, idx):
    if CFG["stamps"]:
        A(f"{'s_memtime' if CFG.get('cyc') else 's_memrealtime'} s[{sST[idx]}:{sST[idx]+1}]")

def stamps_out(A, n, add=0):
    if not CFG["stamps"]: return
    A("s_waitcnt lgkmcnt(0)")
    A(f"s_lshl_b32 s{sT0}, s2, 2")
    A(f"s_add_u32 s{sT0}, s{sT0}, s{sW}")
    A(f"s_lshl_b32 s{sT0}, s{sT0}, 6")
    A(f"s_add_u32 s{sT0}, s{sT0}, {STAMP_OFF + add * 64}")
    A(f"v_mov_b32 v1, s{sT0}")
    for i in range(n):
        A(f"v_mov_b32 v2, s{sST[i]}")
        A(f"global_store_dword v1, v2, s[{sWS}:{sWS+1}] offset:{4*i}")

def k_piece(p, slot, tag=None, shared=False):
    base = (K0O if slot == 0 else K1O) + 1088 * p - 1024 * (p % 4)
    so = sTO if (p < 4 and not shared) else sTO2
    ld = f"buffer_load_dwordx4 v{vKd}, {srd(SK)}, s{so} offen offset:{1024*(p%4)} nt lds"
    return [f"s_add_u32 m0, s{sKL if shared else sKVB}, {base}", "s_nop 0", ("vm", tag, ld) if tag else ld]
def v_piece(p, slot, tag=None, force_m0=False, shared=False):
    so = sTO if (p < 4 and not shared) else sTO2
    r = []
    if p % 4 == 0 or force_m0:
        base = (V0O if slot == 0 else V1O) + 4096 * (p // 4)
        r += [f"s_add_u32 m0, s{sVL if shared else sKVB}, {base}", "s_nop 0"]
    ld = f"buffer_load_dwordx4 v{vVd}, {srd(SV)}, s{so} offen offset:{1024*(p%4)} nt lds"
    r.append(("vm", tag, ld) if tag else ld)
    return r
def tile_advance(shared=False):
    return [f"s_add_u32 s{sTO}, s{sTO}, 8192", f"s_and_b32 s{sTO}, s{sTO}, 0x3ffff",
            f"s_add_u32 s{sTO2}, s{sTO}, s{sCX}" if shared else f"s_add_u32 s{sTO2}, s{sTO}, 4096"]

def decode(A):
    A(f"""
    v_lshrrev_b32 v1, 6, v0
    v_and_b32 v{vLane}, 63, v0
    v_readfirstlane_b32 s{sW}, v1
    s_and_b32 s{sJJ}, s2, 7
    s_lshr_b32 s{sT1}, s2, 3
    s_and_b32 s{sBR}, s{sT1}, 1
    s_lshr_b32 s{sB}, s{sT1}, 1
    """)

def part_srd(A):
    A(f"""
    s_lshl_b32 s{sT0}, s{sBR}, 4
    s_add_u32 s{sT0}, s{sT0}, s{sB}
    s_mul_i32 s{sT0}, s{sT0}, {PART}
    s_add_u32 s{SP}, s{sWS}, s{sT0}
    s_addc_u32 s{SP+1}, s{sWS+1}, 0
    s_mov_b32 s{SP+2}, {PART}
    s_mov_b32 s{SP+3}, 0x20000
    """)

def gen_reduce(A, outp, fl, lbl):
    A(f"""
    s_mov_b32 s{SOUT}, s{outp}
    s_mov_b32 s{SOUT+1}, s{outp+1}
    s_mov_b32 s{SOUT+2}, {16*96*1152*2}
    s_mov_b32 s{SOUT+3}, 0x20000
    s_mov_b32 s{sKD}, 0x3f80
    s_mov_b32 s{sKR}, 0x3f800000
    s_mul_i32 s{sCNT}, s{sB}, {96*2304}
    s_mul_i32 s{sT0}, s{sBR}, 1152
    s_add_u32 s{sCNT}, s{sCNT}, s{sT0}
    v_and_b32 v2, 31, v{vLane}
    v_lshrrev_b32 v3, 5, v{vLane}
    v_mul_u32_u24 v4, 2304, v2
    s_cmp_eq_u32 s{sW}, 3
    s_cbranch_scc1 L_{lbl}_extra
    v_lshlrev_b32 v1, 4, v{vLane}
    v_lshl_add_u32 v4, v3, 5, v4          ; q*2304 + h*32
    s_mul_i32 s{sT0}, s{sJJ}, 12
    s_lshl_b32 s{sT1}, s{sW}, 2
    s_add_u32 s{sT0}, s{sT0}, s{sT1}
    s_lshl_b32 s{sT1}, s{sT0}, 10
    """)
    for p in range(8):
        for m in range(4):
            A(f"buffer_load_dwordx4 {vr(64+(p*4+m)*4,4)}, v1, {srd(SP)}, s{sT1} offen offset:{1024*m} {fl}")
        if p < 7: A(f"s_add_u32 s{sT1}, s{sT1}, {96*1024}")
    A(f"""
    s_lshr_b32 s{sT0}, s{sT0}, 1
    s_mul_i32 s{sT1}, s{sT0}, 43
    s_lshr_b32 s{sT1}, s{sT1}, 9          ; w'
    s_mul_i32 s{sT2}, s{sT1}, 12
    s_sub_u32 s{sT0}, s{sT0}, s{sT2}       ; T
    s_lshl_b32 s{sT1}, s{sT1}, 8
    s_add_u32 s{sCNT}, s{sCNT}, s{sT1}
    s_lshr_b32 s{sT1}, s{sT0}, 2
    s_mul_i32 s{sT1}, s{sT1}, {32*2304}
    s_add_u32 s{sCNT}, s{sCNT}, s{sT1}
    s_and_b32 s{sT0}, s{sT0}, 3
    s_lshl_b32 s{sT0}, s{sT0}, 6
    s_add_u32 s{sCNT}, s{sCNT}, s{sT0}
    """)
    for p in range(8):
        A(f"s_waitcnt vmcnt({28 - 4*p})")
        for m in range(4):
            for d in range(4):
                src = 64 + (p*4+m)*4 + d
                for hi in range(2):
                    acc = 16 + m*8 + d*2 + hi
                    A(f"v_dot2_f32_bf16 v{acc}, v{src}, s{sKR if hi else sKD}, {'0' if p == 0 else f'v{acc}'}")
    A("s_nop 2")
    for m in range(4):
        for d in range(4):
            A(f"v_cvt_pk_bf16_f32 v{48+m*4+d}, v{16+m*8+2*d}, v{17+m*8+2*d}")
        A(f"buffer_store_dwordx4 {vr(48+m*4,4)}, v4, {srd(SOUT)}, s{sCNT} offen offset:{(m>>1)*64 + (m&1)*16}")
    A(f"s_branch L_{lbl}_done")
    A(f"""
    L_{lbl}_extra:
    v_mul_u32_u24 v1, {12*1024}, v3
    v_lshl_add_u32 v1, v2, 4, v1          ; (l>>5)*12288 + (l&31)*16
    s_mul_i32 s{sT0}, s{sJJ}, 3            ; e0
    s_lshl_b32 s{sT1}, s{sT0}, 9
    s_add_u32 s{sT1}, s{sT1}, {XPART}
    """)
    for p in range(16):
        for m in range(3):
            A(f"buffer_load_dwordx4 {vr(64+(p*3+m)*4,4)}, v1, {srd(SP)}, s{sT1} offen offset:{512*m} {fl}")
        if p < 15: A(f"s_add_u32 s{sT1}, s{sT1}, {24*1024}")
    for p in range(16):
        A(f"s_waitcnt vmcnt({45 - 3*p})")
        for m in range(3):
            for d in range(4):
                src = 64 + (p*3+m)*4 + d
                for hi in range(2):
                    acc = 16 + m*8 + d*2 + hi
                    A(f"v_dot2_f32_bf16 v{acc}, v{src}, s{sKR if hi else sKD}, {'0' if p == 0 else f'v{acc}'}")
    A("s_nop 2")
    for i in range(24): A(f"v_mov_b32 v{40+i}, v{16+i}")
    A("s_nop 1")
    for i in range(24): A(f"v_permlane32_swap_b32 v{16+i}, v{40+i}")
    A("s_nop 1")
    for i in range(24): A(f"v_add_f32 v{16+i}, v{16+i}, v{40+i}")
    A("s_mov_b64 exec, 0xffffffff")
    for m in range(3):
        A(f"""
        s_add_u32 s{sT1}, s{sT0}, {m}
        s_lshr_b32 s{sT2}, s{sT1}, 3
        s_mul_i32 s{sT2}, s{sT2}, {32*2304}
        s_add_u32 s{sT2}, s{sT2}, s{sCNT}
        s_add_u32 s{sT2}, s{sT2}, 1024
        s_and_b32 s{sT3}, s{sT1}, 4
        s_lshl_b32 s{sT3}, s{sT3}, 4
        s_add_u32 s{sT2}, s{sT2}, s{sT3}
        s_and_b32 s{sT3}, s{sT1}, 2
        s_lshl_b32 s{sT3}, s{sT3}, 3
        s_add_u32 s{sT2}, s{sT2}, s{sT3}
        s_and_b32 s{sT3}, s{sT1}, 1
        s_lshl_b32 s{sT3}, s{sT3}, 5
        s_add_u32 s{sT2}, s{sT2}, s{sT3}
        """)
        for d in range(4):
            A(f"v_cvt_pk_bf16_f32 v{64+m*4+d}, v{16+m*8+2*d}, v{17+m*8+2*d}")
        A(f"buffer_store_dwordx4 {vr(64+m*4,4)}, v4, {srd(SOUT)}, s{sT2} offen")
    A("s_mov_b64 exec, -1")
    A(f"L_{lbl}_done:")

def gen_main(A, name):
    kernel_begin(A, name)
    A("s_cmp_ge_u32 s2, 256")
    A("s_cbranch_scc1 L_end")
    stamp(A, 0)
    A(f"""
    s_load_dwordx16 s[64:79], s[0:1], 0
    s_load_dwordx4 s[80:83], s[0:1], 64
    s_load_dwordx2 s[{sWS}:{sWS+1}], s[0:1], 96
    s_load_dwordx2 s[{sDBG}:{sDBG+1}], s[0:1], 88
    s_load_dwordx2 s[100:101], s[0:1], 80
    """)
    decode(A)
    A(f"""
    s_lshl_b32 s{sH}, s{sJJ}, 2
    s_add_u32 s{sH}, s{sH}, s{sW}
    s_mul_i32 s{sCI}, s{sB}, 9
    s_lshr_b32 s{sCI}, s{sCI}, 4
    s_mul_i32 s{sT2}, s{sJJ}, {CFG['xrot']}
    s_add_u32 s{sCI}, s{sCI}, s{sT2}
    s_sub_u32 s{sT2}, s{sCI}, 9
    s_cmp_ge_u32 s{sCI}, 9
    s_cselect_b32 s{sCI}, s{sT2}, s{sCI}
    s_mov_b32 s{sCX}, s{sCI}
    s_lshl_b32 s{sWQ0}, s{sH}, 8
    s_mul_i32 s{sX0}, s{sB}, 96
    s_mul_i32 s{sT2}, s{sW}, 24
    s_add_u32 s{sX0}, s{sX0}, s{sT2}
    s_mul_i32 s{sX0}, s{sX0}, 1152
    s_mul_i32 s{sRG}, s{sW}, {REG}
    s_mul_i32 s{sLX}, s{sW}, 3072
    s_add_u32 s{sLX}, s{sLX}, {XB}
    v_lshrrev_b32 v1, 4, v{vLane}         ; t = l/16
    v_and_b32 v2, 15, v{vLane}
    v_xor_b32 v3, v2, v1
    v_lshlrev_b32 v3, 4, v3
    v_lshl_add_u32 v{vKd}, v1, 8, v3
    v_lshlrev_b32 v3, 2, v1
    v_xor_b32 v3, v2, v3
    v_lshlrev_b32 v3, 4, v3
    v_lshl_add_u32 v{vVd}, v1, 8, v3
    v_lshl_add_u32 v{vWd}, v1, 13, v3
    v_mul_u32_u24 v{vWoM}, 1152, v1
    v_add_u32 v{vWoM}, v{vWoM}, v3
    v_lshrrev_b32 v1, 3, v{vLane}         ; t = l/8
    v_and_b32 v2, 7, v{vLane}
    v_lshrrev_b32 v3, 1, v1
    v_xor_b32 v4, v2, v3
    s_and_b32 s{sT0}, s{sW}, 1
    s_lshl_b32 s{sT0}, s{sT0}, 2
    v_xor_b32 v4, s{sT0}, v4
    v_lshlrev_b32 v4, 4, v4
    v_mul_u32_u24 v1, 1152, v1
    v_add_u32 v{vXd}, v1, v4
    v_xor_b32 v4, 64, v4
    v_add_u32 v{vXd+1}, v1, v4
    v_and_b32 v3, 1, v3
    v_lshlrev_b32 v3, 2, v3
    v_xor_b32 v2, v2, v3
    v_lshl_add_u32 v{vWoX}, v2, 4, v1
    s_waitcnt lgkmcnt(0)
    s_cmp_eq_u32 s{sBR}, 0
    s_cselect_b32 s{SX}, s64, s74
    s_cselect_b32 s{SX+1}, s65, s75
    s_cselect_b32 s{SWQ}, s70, s80
    s_cselect_b32 s{SWQ+1}, s71, s81
    s_cselect_b32 s{SK}, s66, s76
    s_cselect_b32 s{SK+1}, s67, s77
    s_cselect_b32 s{SV}, s68, s78
    s_cselect_b32 s{SV+1}, s69, s79
    s_mov_b32 s{SX+2}, {16*110592}
    s_mov_b32 s{SX+3}, 0x20000
    s_mov_b32 s{SWQ+2}, {576*8192}
    s_mov_b32 s{SWQ+3}, 0x20000
    """)
    vm = VM()
    R = 8
    def wq_gran(n):
        G = []
        for p in range(4):
            g = []
            if n % 4 == 0 and p == 0:
                g += [f"s_lshl_b32 s{sWC}, s{sCI}, 19", f"s_add_u32 s{sWC}, s{sWC}, s{sWQ0}",
                      f"s_add_u32 s{sCI}, s{sCI}, 1", f"s_cmp_eq_u32 s{sCI}, 9", f"s_cselect_b32 s{sCI}, 0, s{sCI}"]
            g += [f"s_add_u32 m0, s{sRG}, {(n % R) * 4096 + 1024 * p}",
                  f"s_add_u32 s{sT2}, s{sWC}, {((n % 4) * 16 + 4 * p) * 8192}",
                  ("vm", f"w{n}", f"buffer_load_dwordx4 v{vWd}, {srd(SWQ)}, s{sT2} offen {CFG['wqf'] if n < CFG['wqn'] else ''} lds")]
            G.append(g)
        return G
    def x_chunk(c):
        G = []
        for p in range(3):
            g = []
            if p == 0:
                g += [f"s_lshl_b32 s{sXC}, s{sCX}, 7", f"s_add_u32 s{sXC}, s{sXC}, s{sX0}",
                      f"s_add_u32 s{sCX}, s{sCX}, 1", f"s_cmp_eq_u32 s{sCX}, 9", f"s_cselect_b32 s{sCX}, 0, s{sCX}"]
            g += [f"s_add_u32 m0, s{sLX}, {(c % 2) * 12288 + 1024 * p}",
                  f"s_add_u32 s{sT2}, s{sXC}, {8 * 1152 * p}",
                  ("vm", f"x{c}", f"buffer_load_dwordx4 v{vXd + (p & 1)}, {srd(SX)}, s{sT2} offen {CFG['xf']} lds")]
            G.append(g)
        return G
    if CFG["wopf"] == -3:
        A(f"""
        s_cmp_lg_u32 s{sBR}, 0
        s_cbranch_scc1 L_nopf0
        s_lshl_b32 s{sT0}, s{sB}, 2
        s_add_u32 s{sT0}, s{sT0}, s{sW}
        s_mul_i32 s{sT0}, s{sT0}, {72*128}
        s_mul_i32 s{sT1}, s{sJJ}, {512*1152}
        s_add_u32 s{sT0}, s{sT0}, s{sT1}
        v_lshlrev_b32 v40, 7, v{vLane}
        v_add_u32 v40, s{sT0}, v40
        global_load_dword v41, v40, s[72:73] {CFG['pff']}
        global_load_dword v42, v40, s[72:73] offset:1024 {CFG['pff']}
        global_load_dword v43, v40, s[82:83] {CFG['pff']}
        global_load_dword v44, v40, s[82:83] offset:1024 {CFG['pff']}
        L_nopf0:
        """)
    for g in x_chunk(0) + wq_gran(0) + wq_gran(1): emit(A, vm, g)
    A(f"""
    s_lshl_b32 s{sT1}, s{sB}, 5
    s_add_u32 s{sT1}, s{sT1}, s{sH}
    s_lshr_b32 s{sT0}, s{sT1}, 1
    s_cmp_eq_u32 s{sBR}, 0
    s_cselect_b32 s{sT0}, s{sT0}, s{sT1}
    s_and_b32 s{sTO}, s{sT0}, 31
    s_lshl_b32 s{sTO}, s{sTO}, 13
    s_add_u32 s{sTO2}, s{sTO}, 4096
    s_lshl_b32 s{sT0}, s{sT0}, 18
    s_add_u32 s{SK}, s{SK}, s{sT0}
    s_addc_u32 s{SK+1}, s{SK+1}, 0
    s_add_u32 s{SV}, s{SV}, s{sT0}
    s_addc_u32 s{SV+1}, s{SV+1}, 0
    s_mov_b32 s{SK+2}, {0 if CFG['nokv'] else 0x40000}
    s_mov_b32 s{SK+3}, 0x20000
    s_mov_b32 s{SV+2}, {0 if CFG['nokv'] else 0x40000}
    s_mov_b32 s{SV+3}, 0x20000
    """)
    part_srd(A)
    if CFG["tlb"]:
        A(f"""
        s_cmp_eq_u32 s{sBR}, 0
        s_cselect_b32 s72, s72, s82
        s_cselect_b32 s73, s73, s83
        s_mul_i32 s{sT0}, s{sH}, {128*1152}
        s_load_dword s64, s[72:73], s{sT0}
        s_load_dword s65, s[{SK}:{SK+1}], 0
        s_load_dword s66, s[{SV}:{SV+1}], 0
        s_mul_i32 s{sT1}, s{sW}, {(PART - 4096) // 3}
        s_load_dword s67, s[{SP}:{SP+1}], s{sT1}
        s_mul_i32 s{sT3}, s{sB}, {96*2304}
        s_load_dword s68, s[100:101], s{sT3}
        s_load_dword s69, s[{sDBG}:{sDBG+1}], 0
        s_mov_b32 s82, s72
        s_mov_b32 s83, s73
        """)
    A(f"""
    s_mov_b32 s{sTHR}, {f2u(CFG['thr'])}
    s_mov_b32 s{sSC}, {f2u(LOG2E * 128 ** -0.5)}
    s_mov_b32 s{sSC+1}, {f2u(LOG2E * 128 ** -0.5)}
    v_bfe_u32 v1, v{vLane}, 4, 1          ; dsub
    v_lshrrev_b32 v2, 5, v{vLane}         ; h
    v_bfe_u32 v3, v{vLane}, 2, 2          ; r
    v_and_b32 v4, 3, v{vLane}             ; c
    v_lshl_add_u32 v30, v2, 2, v3
    v_lshlrev_b32 v30, 8, v30
    v_lshl_add_u32 v30, v1, 5, v30
    v_lshl_add_u32 v30, v4, 3, v30
    s_and_b32 s{sT0}, s{sW}, 2
    s_cmp_eq_u32 s{sBR}, {0 if CFG['share'] else 7}
    s_cselect_b32 s{sT0}, s{sT0}, s{sW}
    s_mul_i32 s{sKD}, s{sT0}, {REG}
    s_add_u32 s{sT0}, s{sKD}, {V1O}
    v_add_u32 v30, s{sT0}, v30
    """)
    for db in range(4):
        A(f"v_xor_b32 v31, {db}, v3")
        A(f"v_lshl_add_u32 v{vVr+db}, v31, 6, v30")
    A(f"""
    v_lshl_add_u32 v30, v2, 3, v3
    v_lshlrev_b32 v30, 8, v30
    v_lshl_add_u32 v30, v1, 5, v30
    v_and_b32 v31, 1, v4
    v_lshl_add_u32 v30, v31, 4, v30
    v_lshrrev_b32 v31, 1, v4
    v_lshl_add_u32 v30, v31, 3, v30
    """)
    for db in range(4):
        A(f"v_xor_b32 v31, {db}, v3")
        A(f"v_lshl_add_u32 v31, v31, 6, v30")
        A(f"v_add_u32 v{vWr+db}, s{sRG}, v31")
    A(f"""
    v_and_b32 v1, 31, v{vLane}
    v_bfe_u32 v3, v{vLane}, 1, 3
    v_xor_b32 v3, v3, v2
    v_lshlrev_b32 v30, 7, v1
    v_add_u32 v30, {XB}, v30
    """)
    for s in range(4):
        A(f"v_xor_b32 v31, {2*s}, v3")
        A(f"v_lshl_add_u32 v{vXr+s}, v31, 4, v30")
    A(f"""
    v_lshrrev_b32 v3, 2, v1
    v_mul_u32_u24 v3, 1088, v3
    v_lshl_add_u32 v3, v4, 8, v3
    v_add_u32 v3, s{sKD}, v3
    v_xor_b32 v30, v2, v4
    v_lshl_add_u32 v{vKr}, v30, 4, v3
    v_xor_b32 v30, 2, v30
    v_lshl_add_u32 v{vKr+1}, v30, 4, v3
    """)
    for g in wq_gran(2): emit(A, vm, g)
    def qp_reads(n):
        fb = n & 1
        L = []
        for qb in range(3):
            L.append(f"ds_read_b128 {ar(aXf + fb*12 + qb*4, 4)}, v{vXr + n % 4} offset:{((n // 4) % 2) * 12288 + qb*4096}")
        for db in range(4):
            for u in range(2):
                L.append(f"ds_read_b64_tr_b16 {ar(aWf + fb*16 + db*4 + u*2, 2)}, v{vWr+db} offset:{(n % R) * 4096 + u * 1024}")
        return L
    emit(A, vm, [("wait", ["x0", "w0"], ""), "s_barrier"])
    stamp(A, 11)
    for r in qp_reads(0): A(r)
    wqq = []
    for n in range(3, 36):
        for g in wq_gran(n): wqq.append((max(0, n - R), g))
    for (kind, slot) in (("k", 0), ("v", 0), ("k", 1), ("v", 1)):
        for p in range(8):
            if kind == "k":
                lo = (K0O if slot == 0 else K1O) + 1088 * p
                g = k_piece(p, slot, tag=f"K{slot}")
            else:
                lo = (V0O if slot == 0 else V1O) + 1024 * p
                g = v_piece(p, slot, tag=f"V{slot}", force_m0=True)
                if p == 7: g = g + tile_advance()
            slots = [sl for sl in range(R) if lo < (sl + 1) * 4096 and lo + 1024 > sl * 4096]
            avail = max([max(n for n in range(36) if n % R == sl) for sl in slots] + [0])
            if CFG["share"]: avail = 31 if avail <= 31 else 35
            wqq.append((avail, g))
    zero_o = [f"v_accvgpr_write_b32 a{aO+i}, 0" for i in range(192)]
    for n in range(36):
        fb = n & 1
        mf = []
        for db in range(4):
            for qb in range(3):
                T = qb * 4 + db
                c = vr(vQA+16*T, 16) if n > 0 else "0"
                mf.append(f"v_mfma_f32_32x32x16_bf16 {vr(vQA+16*T,16)}, {ar(aWf+fb*16+db*4,4)}, {ar(aXf+fb*12+qb*4,4)}, {c}")
        gaps = {}
        pre = []
        dma = []
        if n < 35:
            tags = [f"w{n+1}"]
            if n % 4 == 3: tags.append(f"x{n//4+1}")
            pre.append(("wait", tags, "lgkmcnt(0)"))
            if n % 4 == 3:
                pre.append("s_barrier")
                if n // 4 + 2 < 9: dma += x_chunk(n // 4 + 2)
            for i, r in enumerate(qp_reads(n + 1)): gaps.setdefault(i, []).append(r)
        else:
            pre += ["s_waitcnt lgkmcnt(0)"] + (["s_barrier"] if CFG["share"] else [])
        gaps[-1] = pre
        if n == 0:
            dma += [wqq.pop(0)[1] for _ in range(4)] + x_chunk(1)
        while wqq and wqq[0][0] <= n and len(dma) < CFG["qbud"]:
            dma.append(wqq.pop(0)[1])
        for i, g in enumerate(dma):
            gaps.setdefault((i * 12) // len(dma), []).extend(g)
        if CFG["wopf"] == -4 and n == CFG["pfs"]:
            gaps.setdefault(11, []).extend([
                f"s_cmp_eq_u32 s{sBR}, 0", f"s_cselect_b32 s72, s72, s82", f"s_cselect_b32 s73, s73, s83",
                f"s_lshl_b32 s{sT0}, s{sB}, 2", f"s_add_u32 s{sT0}, s{sT0}, s{sW}", f"s_mul_i32 s{sT0}, s{sT0}, {72*128}",
                f"s_mul_i32 s{sT1}, s{sJJ}, {512*1152}", f"s_add_u32 s{sT0}, s{sT0}, s{sT1}", f"v_lshlrev_b32 v40, 7, v{vLane}",
                f"v_add_u32 v40, s{sT0}, v40",
                ("vm", "pf", f"global_load_dword v41, v40, s[72:73] nt"),
                "s_mov_b64 exec, 0xff",
                f"v_add_u32 v45, 8192, v40",
                ("vm", "pf", f"global_load_dword v42, v45, s[72:73] nt"),
                "s_mov_b64 exec, -1"])
        if CFG["wopf"] == -4 and n == CFG["pfs"] + 5:
            gaps.setdefault(11, []).extend([
                ("vm", "pf", f"global_load_dword v43, v40, s[72:73] sc1"),
                "s_mov_b64 exec, 0xff",
                ("vm", "pf", f"global_load_dword v44, v45, s[72:73] sc1"),
                "s_mov_b64 exec, -1"])
        if n >= 8 and zero_o:
            for i in range(12):
                if zero_o: gaps.setdefault(i, []).append(zero_o.pop(0))
        interleave(A, mf, gaps, vm)
        if n in (3, 17) and not (CFG.get("midst") or CFG.get("gst")): stamp(A, 8 if n == 3 else 9)
    assert not zero_o
    kvq = [g for _, g in wqq]
    stamp(A, 1)
    def k_read(s, slot):
        return f"ds_read_b128 {ar(aK+4*s,4)}, v{vKr+(s&1)} offset:{(KVD if slot==0 else 0) + 64*(s>>1)}"
    def v_read(f, u, slot):
        ks, db = f // 4, f % 4
        return f"ds_read_b64_tr_b16 {ar(aV+(db*2+ks)*4+2*u,2)}, v{vVr+db} offset:{(KVD if slot==0 else 0) + (16*ks+8*u)*256}"
    A(f"""
    s_cmp_eq_u32 s{sBR}, 0
    s_cselect_b32 s{SWO}, s72, s82
    s_cselect_b32 s{SWO+1}, s73, s83
    s_mov_b32 s{SWO+2}, {4096*1152}
    s_mov_b32 s{SWO+3}, 0x20000
    s_nop 7
    """)
    for j in range(95, -1, -1):
        s0 = vQA + 2 * j
        A(f"v_pk_mul_f32 {vr(s0,2)}, {vr(s0,2)}, s[{sSC}:{sSC+1}]")
        if j < 95:
            A(f"v_cvt_pk_bf16_f32 v{vQ+j+1}, v{vQA+2*j+2}, v{vQA+2*j+3}")
        if j % 4 == 0 and kvq: emit(A, vm, kvq.pop(0))
        if j == 8:
            assert not kvq
            emit(A, vm, [("wait", ["K0"], "")])
            for s in range(8): A(k_read(s, 0))
    A(f"v_cvt_pk_bf16_f32 v{vQ}, v{vQA}, v{vQA+1}")
    for i in range(32): A(f"v_accvgpr_write_b32 a{aV+i}, 0")
    for i in range(8): A(f"v_mov_b32 v{vP+16+i}, 0")
    for i in range(3): A(f"v_mov_b32 v{vL+i}, 0")
    A("s_waitcnt lgkmcnt(0)")
    def qk(qb, s, cinit=None):
        c = vr(vS+16*qb, 16) if s > 0 else (cinit if cinit is not None else vr(vNM+16*qb, 16))
        return f"v_mfma_f32_32x32x16_bf16 {vr(vS+16*qb,16)}, {ar(aK+4*s,4)}, {vr(vQ+32*qb+4*s,4)}, {c}"
    def pv(qb, m):
        ks, db = m // 4, m % 4
        o = ar(aO + (qb*4+db)*16, 16)
        return f"v_mfma_f32_32x32x16_bf16 {o}, {ar(aV+(db*2+ks)*4,4)}, {vr(vP+8*qb+4*ks,4)}, {o}"
    def rowmax(qb, dst, tmp):
        s = vS + 16 * qb
        L = [f"v_max3_f32 v{dst}, v{s}, v{s+1}, v{s+2}"]
        for i in range(3, 15, 2):
            L.append(f"v_max3_f32 v{dst}, v{dst}, v{s+i}, v{s+i+1}")
        L.append(f"v_max_f32 v{dst}, v{dst}, v{s+15}")
        L += [f"v_mov_b32 v{tmp}, v{dst}", "s_nop 1", f"v_permlane32_swap_b32 v{dst}, v{tmp}", "s_nop 1",
              f"v_max_f32 v{dst}, v{dst}, v{tmp}"]
        return L
    def init_ops(qb):
        L = rowmax(qb, vT, vT+1)
        L += [f"v_sub_f32 v{vNM+16*qb+i}, 0, v{vT}" for i in range(16)]
        if qb == 0: L += [f"v_sub_f32 v{vS+i}, v{vS+i}, v{vT}" for i in range(16)]
        return L
    mf = [qk(qb, s, cinit="0") for qb in range(3) for s in range(8)]
    gaps = {}
    gaps[8] = ["s_nop 7"]; gaps[9] = ["s_nop 1"]
    ops = init_ops(0)
    for i, o in enumerate(ops): gaps.setdefault(10 + i * 8 // len(ops), []).append(o)
    ops = init_ops(1)
    for i, o in enumerate(ops): gaps.setdefault(19 + i * 5 // len(ops), []).append(o)
    interleave(A, mf, gaps)
    A("s_nop 7")
    for o in init_ops(2): A(o)
    stamp(A, 2)
    sites = []
    def softmax_ops(qb, site):
        s = vS + 16 * qb
        ops = []
        for i in range(16):
            ops.append((8, f"v_exp_f32 v{vE+i%8}, v{s+i}"))
            if i == 2: ops.append((4, f"v_add_f32 v{vPS}, v{vE}, v{vE+1}"))
            elif i > 2: ops.append((4, f"v_add_f32 v{vPS}, v{vPS}, v{vE+(i-1)%8}"))
            if i >= 2 and i % 2 == 0:
                ops.append((4, f"v_cvt_pk_bf16_f32 v{vP+8*qb+(i-2)//2}, v{vE+(i-2)%8}, v{vE+(i-1)%8}"))
        ops.append((4, f"v_add_f32 v{vPS}, v{vPS}, v{vE+7}"))
        ops.append((4, f"v_cvt_pk_bf16_f32 v{vP+8*qb+7}, v{vE+6}, v{vE+7}"))
        tail = [f"v_cmp_nge_f32 vcc, s{sTHR}, v{vPS}", f"s_cbranch_vccnz L_tramp_{site}", f"L_back_{site}:",
                f"v_add_f32 v{vL+qb}, v{vL+qb}, v{vPS}"]
        sites.append((site, qb))
        return ops, tail
    def double_phase(mf, qb_sm, site, extra):
        ops, tail = softmax_ops(qb_sm, site)
        gaps = {k: list(v) for k, v in extra.items()}
        total = sum(c for c, _ in ops)
        g0, g1 = 2, len(mf) - 1
        acc = 0
        for c, o in ops:
            g = g0 + min(g1 - g0 - 1, int(acc * (g1 - g0) / total))
            gaps.setdefault(g, []).append(o)
            acc += c
        gaps.setdefault(len(mf) - 1, []).extend(tail)
        n = 3
        for k in (-1, ("pre", 0), 0, ("pre", 1), 1, ("pre", 2)):
            n += len([x for x in gaps.get(k, []) if not x.endswith(":")])
        n += 3
        for x in gaps[2]:
            if x.startswith("v_exp"): break
            n += 1
        if n < 12:
            gaps.setdefault(1, []).append(f"s_nop {12 - n - 1}")
        interleave(A, mf, gaps)
    def wox_piece(p):
        return [f"s_add_u32 m0, s{sRG}, {RINGO + 1024 * p}", f"s_add_u32 s{sT2}, s{sWC}, {8 * 1152 * p}",
                f"buffer_load_dwordx4 v{vWoX}, {srd(SWO)}, s{sT2} offen {CFG['wof']} lds"]
    def tile(par, mode, tagp, sh):
        ex = [dict(), dict(), dict()]
        def put(gam, instrs): ex[gam // 16].setdefault(gam % 16, []).extend(instrs)
        bar = ["s_barrier"] if sh else []
        ex[0][-1] = ["s_waitcnt vmcnt(%d)" % (0 if mode == "last" else (8 if sh else 16))] + bar
        for k in range(16):
            put(k // 2 if k < 4 else k - 2, [v_read(k // 2, k % 2, par)])
        ex[1][("pre", 0)] = ["s_waitcnt lgkmcnt(4)"]
        ex[1][("pre", 6)] = ["s_waitcnt lgkmcnt(0)"]
        if mode != "last":
            if sh: n = 8 if mode == "steady" else 4
            else: n = 19 if mode == "steady" else 8
            ex[2][-1] = ["s_waitcnt vmcnt(%d)" % n] + bar
            for s in range(8): put(32 + s // 4, [k_read(s, par ^ 1)])
            ex[2][("pre", 8)] = ["s_waitcnt lgkmcnt(0)"]
        else:
            ex[2][-1] = bar
        if mode == "steady":
            if sh:
                for p in range(4):
                    th = [f"s_waitcnt vmcnt({CFG['da']})"] if CFG["da"] >= 0 else []
                    put(6 * p + 1, th + k_piece(p, par, shared=True))
                    put(34 + 4 * p, th + v_piece(p, par, shared=True))
                put(47, tile_advance(True))
            else:
                for p in range(8):
                    put(3 * p, k_piece(p, par))
                    put(24 + 3 * p, v_piece(p, par))
                put(46, tile_advance())
        if mode == "last":
            for p in range(16): put(2 * p, wox_piece(p))
        double_phase([pv(2, m) for m in range(8)] + [qk(1, s) for s in range(8)], 0, f"{tagp}a", ex[0])
        double_phase([pv(0, m) for m in range(8)] + [qk(2, s) for s in range(8)], 1, f"{tagp}b", ex[1])
        double_phase([pv(1, m) for m in range(8)] + ([qk(0, s) for s in range(8)] if mode != "last" else []), 2, f"{tagp}c", ex[2])
    A(f"s_mov_b32 s{sCNT}, 0")
    A(f"s_mul_i32 s{sWC}, s{sH}, {128*1152}")
    A(f"s_add_u32 s{sWC}, s{sWC}, 1024")
    def attn_loop(sh):
        L = "A" if sh else "B"
        A(".p2align 6")
        A(f"L_main{L}:")
        tile(0, "steady", L + "s0", sh)
        tile(1, "steady", L + "s1", sh)
        if CFG["wopf"] >= 0:
            A(f"""
            s_cmp_lg_u32 s{sCNT}, {CFG["wopf"]}
            s_cbranch_scc1 L_nopf{L}
            s_lshl_b32 s{sT0}, s{sB}, 2
            s_add_u32 s{sT0}, s{sT0}, s{sW}
            s_mul_i32 s{sT0}, s{sT0}, {72*128}
            s_mul_i32 s{sT1}, s{sJJ}, {512*1152}
            s_add_u32 s{sT0}, s{sT0}, s{sT1}
            v_lshlrev_b32 v1, 7, v{vLane}
            buffer_load_dword v2, v1, {srd(SWO)}, s{sT0} offen {CFG['pff']}
            buffer_load_dword v3, v1, {srd(SWO)}, s{sT0} offen offset:1024 {CFG['pff']}
            L_nopf{L}:
            """)
            if CFG["pf2"]:
                A(f"""
                s_cmp_lg_u32 s{sCNT}, {CFG["wopf"] + 1}
                s_cbranch_scc1 L_nopf2{L}
                buffer_load_dword v2, v1, {srd(SWO)}, s{sT0} offen sc1
                buffer_load_dword v3, v1, {srd(SWO)}, s{sT0} offen offset:1024 sc1
                L_nopf2{L}:
                """)
        if CFG.get("midst"):
            for idx, c in ((8, 4), (9, 9)):
                A(f"s_cmp_lg_u32 s{sCNT}, {c}")
                A(f"s_cbranch_scc1 L_nost{idx}{L}")
                stamp(A, idx)
                A(f"L_nost{idx}{L}:")
        A(f"""
        s_add_u32 s{sCNT}, s{sCNT}, 1
        s_cmp_lt_u32 s{sCNT}, 15
        s_cbranch_scc1 L_main{L}
        """)
        tile(0, "prelast", L + "p0", sh)
        tile(1, "last", L + "p1", sh)
    if CFG["share"]:
        A(f"""
        s_cmp_lg_u32 s{sBR}, 0
        s_cbranch_scc1 L_mainB
        s_and_b32 s{sT0}, s{sW}, 1
        s_mul_i32 s{sKL}, s{sT0}, 4352
        s_add_u32 s{sKL}, s{sKL}, s{sKVB}
        s_lshl_b32 s{sCX}, s{sT0}, 12
        s_add_u32 s{sVL}, s{sCX}, s{sKVB}
        s_add_u32 s{sTO2}, s{sTO}, s{sCX}
        """)
        attn_loop(True)
        A("s_branch L_attn_done")
    attn_loop(False)
    A("L_attn_done:")
    gaps = {0: [f"v_mov_b32 v{vT+qb}, v{vL+qb}" for qb in range(3)] + ["s_nop 1"],
            1: [f"v_permlane32_swap_b32 v{vL+qb}, v{vT+qb}" for qb in range(3)] + ["s_nop 1"],
            2: [f"v_add_f32 v{vL+qb}, v{vL+qb}, v{vT+qb}" for qb in range(3)],
            3: [f"v_rcp_f32 v{vT+2*qb}, v{vL+qb}" for qb in range(3)],
            4: [f"v_mov_b32 v{vT+2*qb+1}, v{vT+2*qb}" for qb in range(3)],
            5: [f"v_lshlrev_b32 v1, 4, v{vLane}", f"v_add_u32 v2, s{sRG}, v1",
                f"s_mul_i32 s{sT0}, s{sW}, 6144", f"s_add_u32 s{sT0}, s{sT0}, {XB}", f"v_add_u32 v3, s{sT0}, v1"]}
    interleave(A, [pv(2, m) for m in range(8)], gaps)
    stamp(A, 3)
    n = 0
    for qb in range(3):
        for kl in range(8):
            db, half = kl // 2, kl % 2
            tb = 16 + (n % 4) * 12
            for i in range(8):
                A(f"v_accvgpr_read_b32 v{tb+i}, a{aO+(qb*4+db)*16+8*half+i}")
            for i in range(4):
                A(f"v_pk_mul_f32 {vr(tb+2*i,2)}, {vr(tb+2*i,2)}, {vr(vT+2*qb,2)}")
            for i in range(4):
                A(f"v_cvt_pk_bf16_f32 v{tb+8+i}, v{tb+2*i}, v{tb+2*i+1}")
            if kl < 6: A(f"ds_write_b128 v2, {vr(tb+8,4)} offset:{kl*3072 + qb*1024}")
            else:      A(f"ds_write_b128 v3, {vr(tb+8,4)} offset:{(kl-6)*3072 + qb*1024}")
            n += 1
    stamp(A, 4)
    vXa, vOa = 8, 10
    A(f"""
    v_bfe_u32 v16, v{vLane}, 4, 1          ; dsub
    v_lshrrev_b32 v17, 5, v{vLane}         ; h
    v_bfe_u32 v18, v{vLane}, 2, 2          ; r
    v_and_b32 v19, 1, v{vLane}
    v_bfe_u32 v20, v{vLane}, 1, 1
    v_lshlrev_b32 v19, 5, v19
    v_lshl_add_u32 v19, v16, 4, v19
    v_lshl_add_u32 v19, v20, 3, v19        ; nchunk*8
    s_add_u32 s{sT0}, s{sRG}, {RINGO}
    v_add_u32 v19, s{sT0}, v19
    v_lshl_add_u32 v17, v17, 2, v18        ; 4h+r
    v_lshl_add_u32 v20, v17, 7, v19
    v_lshrrev_b32 v21, 1, v18
    v_lshl_add_u32 v{vXa}, v21, 6, v20
    v_xor_b32 v21, 1, v21
    v_lshl_add_u32 v{vXa+1}, v21, 6, v20
    s_mul_i32 s{sWQ0}, s{sJJ}, {512*1152}
    s_lshl_b32 s{sT0}, s{sW}, 8
    s_add_u32 s{sWQ0}, s{sWQ0}, s{sT0}
    s_mul_i32 s{sKD}, s{sJJ}, {96*1024}
    s_mul_i32 s{sT0}, s{sW}, {24*1024}
    s_add_u32 s{sKD}, s{sKD}, s{sT0}
    s_mul_i32 s{sKR}, s{sH}, {12*1024}
    s_add_u32 s{sKR}, s{sKR}, {XPART}
    """)
    vm = VM()
    for p in range(16): vm.add(f"g{p//4}")
    aXB = 96
    A(f"""
    s_and_b32 s{sTO}, s{sB}, 14
    s_mov_b32 s{sCX}, s{sTO}
    s_and_b32 s{sTO2}, s{sB}, 1
    s_lshl_b32 s{sT0}, s{sTO2}, 7
    s_add_u32 s{sWQ0}, s{sWQ0}, s{sT0}
    s_lshl_b32 s{sT0}, s{sTO2}, 12
    s_add_u32 s{sKD}, s{sKD}, s{sT0}
    """)
    def op_gran(z):
        i = z - 4
        G = []
        for p in range(4):
            g = []
            if p == 0:
                if i == 16: g += [f"s_xor_b32 s{sWQ0}, s{sWQ0}, 128"]
                g += [f"s_mul_i32 s{sWC}, s{sTO}, {32*1152}", f"s_add_u32 s{sWC}, s{sWC}, s{sWQ0}",
                      f"s_add_u32 s{sTO}, s{sTO}, 1", f"s_and_b32 s{sTO}, s{sTO}, 15"]
            g += [f"s_add_u32 m0, s{sRG}, {RINGO + (z % 4) * 4096 + 1024 * p}",
                  f"s_add_u32 s{sT2}, s{sWC}, {8 * p * 1152}",
                  ("vm", f"g{z}", f"buffer_load_dwordx4 v{vWoX}, {srd(SWO)}, s{sT2} offen {CFG['wof'] if i < CFG['won'] else ''} lds")]
            G.append(g)
        return G
    def op_reads(z):
        fb = z & 1
        L = []
        for kk in range(2):
            for ct in range(2):
                for u in range(2):
                    L.append([f"ds_read_b64_tr_b16 {ar(aWf + fb*16 + (kk*2+ct)*4 + u*2, 2)}, v{vXa+ct} offset:{(z%4)*4096 + (16*kk+8*u)*128}"])
        if z < 4:
            va, off = (2, z * 6144) if z < 3 else (3, 0)
        else:
            va, off = vOa + fb, 0
            L[0] = [f"s_lshr_b32 s{sT0}, s{sCX}, 2", f"s_and_b32 s{sT1}, s{sCX}, 3",
                    f"s_mul_i32 s{sXC}, s{sT0}, {REG}", f"s_mul_i32 s{sCI}, s{sT1}, 6144", f"s_add_u32 s{sXC}, s{sXC}, s{sCI}"] + L[0]
            L[1] = [f"s_mul_i32 s{sT0}, s{sT0}, 6144", f"s_add_u32 s{sT0}, s{sT0}, {XB}",
                    f"s_cmp_eq_u32 s{sT1}, 3", f"s_cselect_b32 s{sXC}, s{sT0}, s{sXC}", f"v_add_u32 v{va}, s{sXC}, v1"] + L[1]
            L[2] = [f"s_add_u32 s{sCX}, s{sCX}, 1", f"s_and_b32 s{sCX}, s{sCX}, 15"] + L[2]
        R_ = []
        for kk in range(2):
            for qb in range(3):
                R_.append([f"ds_read_b128 {ar(aXB + fb*24 + kk*12 + qb*4, 4)}, v{va} offset:{off + kk*3072 + qb*1024}"])
        return L[:4] + R_[:3] + L[4:] + R_[3:]
    def accset(z): return vQA + (96 if 4 <= z < 20 else 0)
    def conv_store(ps):
        base = vQA + (96 if ps == 1 else 0)
        dst0 = (16, 160, 208)[ps]
        cv, st = [], []
        tiles = [(qb, ct) for qb in range(3) for ct in range(2)] if ps == 1 else [(qb, ct) for ct in range(2) for qb in range(3)]
        for k, (qb, ct) in enumerate(tiles):
            tb = dst0 + k * 8
            src = base + (qb*2+ct) * 16
            c = [f"v_cvt_pk_bf16_f32 v{tb+i}, v{src+2*i}, v{src+2*i+1}" for i in range(8)]
            t = []
            if ps == 0: t.append(f"s_add_u32 s{sT3}, s{sKR}, {(qb*2+ct)*2048}")
            else:
                if ps == 2 and k == 0: t.append(f"s_xor_b32 s{sKD}, s{sKD}, 4096")
                t.append(f"s_add_u32 s{sT3}, s{sKD}, {(qb*4 + ct)*2048}")
            for half in range(2):
                t.append(("vm", "st", f"buffer_store_dwordx4 {vr(tb+4*half,4)}, v1, {srd(SP)}, s{sT3} offen offset:{half*1024} {CFG['stfl']}"))
            cv.append(c); st.append(t)
        return cv, st
    emit(A, vm, [("wait", ["g0"], "lgkmcnt(0)")])
    for g in op_reads(0): emit(A, vm, g)
    pend = []
    for z in range(36):
        fb = z & 1
        mf = []
        for kk in range(2):
            for ct in range(2):
                for qb in range(3):
                    acc = vr(accset(z) + (qb*2+ct)*16, 16)
                    c = "0" if (z in (0, 4, 20) and kk == 0) else acc
                    mf.append(f"v_mfma_f32_32x32x16_bf16 {acc}, {ar(aWf+fb*16+(kk*2+ct)*4,4)}, {ar(aXB+fb*24+kk*12+qb*4,4)}, {c}")
        gaps = {}
        if z < 35:
            gaps[-1] = [("wait", [f"g{z+1}"], "lgkmcnt(0)")]
            if z == 3: gaps[-1].append("s_barrier")
            rd = op_reads(z + 1)
            for i, g in enumerate(rd): gaps.setdefault(i * 11 // len(rd), []).extend(g)
        else:
            gaps[-1] = ["s_waitcnt lgkmcnt(0)"]
        if z < 32:
            for i, g in enumerate(op_gran(z + 4)): gaps.setdefault(2 * i + 1, []).extend(g)
        if CFG["early"]:
            if z == 5: pend = sum([c + t for c, t in zip(*conv_store(0))], [])
            if z == 21: pend = sum([c + t for c, t in zip(*conv_store(1))], [])
        else:
            if z == 5: pend = sum(conv_store(0)[0], [])
            if z == 21: pend = sum(conv_store(1)[0], [])
            if z == 32: pend = sum(conv_store(0)[1] + conv_store(1)[1], [])
        for i in range(12):
            if pend: gaps.setdefault(i, []).append(pend.pop(0))
        interleave(A, mf, gaps, vm)
        if z == 31 and CFG.get("gst"): stamp(A, 9)
        if z == 3 and CFG.get("gst"): stamp(A, 8)
    assert not pend
    stamp(A, 5)
    A("s_nop 7")
    for c, t in zip(*conv_store(2)): emit(A, vm, c + t)
    if not CFG["split_reduce"]:
        A(f"""
        s_waitcnt vmcnt(0)
        s_barrier
        """)
        stamp(A, 6)
        A(f"""
        s_lshl_b32 s{sT0}, s{sBR}, 4
        s_add_u32 s{sT0}, s{sT0}, s{sB}
        s_lshl_b32 s{sT0}, s{sT0}, 3
        v_mov_b32 v2, s{sT0}
        v_mov_b32 v3, 1
        s_cmp_lg_u32 s{sW}, 0
        s_cbranch_scc1 L_sync_done
        s_mov_b64 exec, 1
        {"buffer_wbl2 sc1" if CFG["wb"] else ""}
        {"s_waitcnt vmcnt(0)" if CFG["wb"] else ""}
        global_atomic_add v2, v3, s[{sDBG}:{sDBG+1}] sc1
        s_mov_b32 s{sT1}, 0
        L_poll:
        global_load_dword v4, v2, s[{sDBG}:{sDBG+1}] sc1
        s_waitcnt vmcnt(0)
        v_readfirstlane_b32 s{sT0}, v4
        s_add_u32 s{sT1}, s{sT1}, 1
        s_cmp_ge_u32 s{sT0}, 8
        s_cbranch_scc1 L_poll_done
        s_sleep {CFG['slp']}
        s_cmp_lt_u32 s{sT1}, 0x100000
        s_cbranch_scc1 L_poll
        L_poll_done:
        s_mov_b64 exec, -1
        L_sync_done:
        s_barrier
        """)
        stamp(A, 7)
        gen_reduce(A, 100, "sc1", "red")
        stamp(A, 10)
    else:
        if CFG["stamps"]:
            A("s_waitcnt vmcnt(0)")
            stamp(A, 6); stamp(A, 7); stamp(A, 10)
    stamps_out(A, 12)
    A("L_end:")
    A("s_endpgm")
    for site, qb in sites:
        A(f"L_tramp_{site}:")
        A(f"s_call_b64 s[{sRET}:{sRET+1}], L_rare_{qb}")
        A(f"s_branch L_back_{site}")
    for qb in range(3):
        s = vS + 16 * qb
        A(f"L_rare_{qb}:")
        for x in rowmax(qb, vT, vT+1): A(x)
        A(f"v_max_f32 v{vT}, 0, v{vT}")
        A(f"v_exp_f32 v{vT+1}, -v{vT}")
        for i in range(16): A(f"v_sub_f32 v{vNM+16*qb+i}, v{vNM+16*qb+i}, v{vT}")
        A(f"v_mul_f32 v{vL+qb}, v{vL+qb}, v{vT+1}")
        for i in range(64):
            A(f"v_accvgpr_read_b32 v{vT+2+i%4}, a{aO+qb*64+i}")
            A(f"v_mul_f32 v{vT+2+i%4}, v{vT+2+i%4}, v{vT+1}")
            A(f"v_accvgpr_write_b32 a{aO+qb*64+i}, v{vT+2+i%4}")
        A(f"v_mov_b32 v{vPS}, 0")
        for i in range(0, 16, 2):
            A(f"v_sub_f32 v{vE}, v{s+i}, v{vT}")
            A(f"v_sub_f32 v{vE+1}, v{s+i+1}, v{vT}")
            A(f"v_exp_f32 v{vE}, v{vE}")
            A(f"v_exp_f32 v{vE+1}, v{vE+1}")
            A("s_nop 0")
            A(f"v_add_f32 v{vPS}, v{vPS}, v{vE}")
            A(f"v_add_f32 v{vPS}, v{vPS}, v{vE+1}")
            A(f"v_cvt_pk_bf16_f32 v{vP+8*qb+i//2}, v{vE}, v{vE+1}")
        A("s_nop 1")
        A(f"s_setpc_b64 s[{sRET}:{sRET+1}]")

def gen_reduce_kernel(A, name):
    kernel_begin(A, name)
    A("s_cmp_ge_u32 s2, 256")
    A("s_cbranch_scc1 L_rk_end")
    stamp(A, 0)
    A(f"s_load_dwordx2 s[{sWS}:{sWS+1}], s[0:1], 96")
    A(f"s_load_dwordx2 s[100:101], s[0:1], 80")
    decode(A)
    A("s_waitcnt lgkmcnt(0)")
    part_srd(A)
    stamp(A, 1)
    gen_reduce(A, 100, CFG["rfl"], "rk")
    stamp(A, 2)
    stamps_out(A, 3, add=1024)
    A("L_rk_end:")
    A("s_endpgm")

def gen(**kw):
    CFG.update(kw)
    CFG["stfl"] = CFG["fst"] if CFG["fst"] is not None else ("" if (CFG["split_reduce"] or CFG["wb"]) else "sc1")
    A = Asm()
    for l in open("cdna_kernels/" + NAME + ".s.ref").read().split("\n"):
        if not l.startswith(";"): break
        if "@launch" in l or "Override launch" in l or "grid=ceil" in l: continue
        A.L.append(l)
    if CFG["split_reduce"]:
        header(A, ["; @launch kernel=main_kernel grid=(256,1,1) block=(256,1,1) lds=163840",
                   "; @launch kernel=reduce_kernel grid=(256,1,1) block=(256,1,1) lds=0"])
        gen_main(A, "main_kernel")
        gen_reduce_kernel(A, "reduce_kernel")
        descriptor(A, "main_kernel")
        descriptor(A, "reduce_kernel", vgpr=256, accum=256, first=False)
    else:
        header(A, ["; @launch grid=(256,1,1) block=(256,1,1) lds=163840"])
        gen_main(A, NAME + "_kernel")
        descriptor(A, NAME + "_kernel")
    return A.text()

if __name__ == "__main__":
    out = sys.argv[1] if len(sys.argv) > 1 else "cdna_kernels/" + NAME + ".s"
    kw = {}
    for a in sys.argv[2:]:
        k, v = a.split("=")
        kw[k] = eval(v)
    open(out, "w").write(gen(**kw))
```

```python
import sys, struct
from asmlib import *

LOG2E = 1.4426950408889634
def f2u(x): return struct.unpack("<I", struct.pack("<f", x))[0]

CFG = dict(stamps=False, thr=256.0, nokv=False, split_reduce=True, wopf=-1, share=False, tlb=False, qbud=6, da=-1, wqf='nt', xf='', wof='nt', pff='nt', wqn=4, pf2=True, pfs=12, xrot=1, won=2, slp=16, early=True, wb=False, fst='sc1', rfl='', xfill=60, nopk=True, xf2='', kvpf=0, kvs=10, kvd=4, kv0=2)

REG = 34816
XB = 4 * REG
K1O, V1O, K0O, V0O = 0, 8704, 16896, 25600
KVD = 16896
RINGO = 18432
STAMP_OFF = 64 << 20
PCU = 108 * 1024
PART = 8 * PCU

sW = 3
SX, SWQ, SK, SV, SP = 4, 8, 12, 16, 20
SWO, SOUT = 4, 8
sBR, sJJ, sB, sH = 24, 25, 27, 28
sCI = 29
sRET = 30
sWQ0, sX0 = 32, 33
sT0, sT1, sT2, sT3 = 34, 35, 36, 37
sRG = 38
sLX = 39
sCNT = 40
sWC, sXC = 41, 42
sCX = 43
sTO, sTO2 = 44, 45
sTHR = 46
sSC = 48
sKD, sKR = 50, 51
sRW, sR3 = 26, 47
sKVB = 50
sKL, sVL = 26, 47
sST = [52, 54, 56, 58, 60, 62, 84, 86, 88, 90, 92, 94]
sWS = 96
sDBG = 98
vWoX, vLane = 3, 7
vKd, vVd, vKr, vVr = 8, 9, 10, 12
vS, vNM, vP, vE, vL, vPS, vT, vQ = 16, 64, 112, 136, 144, 147, 148, 160
vWd, vXd, vWr, vXr = 40, 44, 20, 24
vQA = 64
aO, aK, aV = 0, 192, 224
aWf, aXf = 192, 224

def srd(n): return f"s[{n}:{n+3}]"
def vr(n, c): return f"v[{n}:{n+c-1}]"
def ar(n, c): return f"a[{n}:{n+c-1}]"

class VM:
    def __init__(self): self.ops = []; self.ctx = None
    def add(self, tag): self.ops.append(tag)
    def need(self, tag):
        idx = max(i for i, t in enumerate(self.ops) if t == tag)
        return len(self.ops) - 1 - idx

def emit(A, vm, items):
    for x in items:
        if isinstance(x, str): A(x)
        elif x[0] == "vm":
            vm.add(x[1]); A(x[2])
            if x[2].endswith("lds"): vm.ctx = None
        elif x[0] == "dma":
            if vm.ctx != x[1]:
                for y in x[2]: A(y)
                vm.ctx = x[1]
            vm.add(x[3]); A(x[4])
        elif x[0] == "wait":
            n = min(vm.need(t) for t in x[1])
            assert n <= 63
            A(f"s_waitcnt vmcnt({n}) {x[2]}".strip())

def interleave(A, mfmas, gaps, vm=None):
    emit(A, vm, gaps.get(-1, []))
    for i, m in enumerate(mfmas):
        emit(A, vm, gaps.get(("pre", i), []))
        A(m)
        emit(A, vm, gaps.get(i, []))

def stamp(A, idx):
    if CFG["stamps"]:
        A(f"{'s_memtime' if CFG.get('cyc') else 's_memrealtime'} s[{sST[idx]}:{sST[idx]+1}]")

def stamps_out(A, n, add=0):
    if not CFG["stamps"]: return
    A("s_waitcnt lgkmcnt(0)")
    A(f"s_lshl_b32 s{sT0}, s2, 2")
    A(f"s_add_u32 s{sT0}, s{sT0}, s{sW}")
    A(f"s_lshl_b32 s{sT0}, s{sT0}, 6")
    A(f"s_add_u32 s{sT0}, s{sT0}, {STAMP_OFF + add * 64}")
    A(f"v_mov_b32 v1, s{sT0}")
    for i in range(n):
        A(f"v_mov_b32 v2, s{sST[i]}")
        A(f"global_store_dword v1, v2, s[{sWS}:{sWS+1}] offset:{4*i}")

def k_piece(p, slot, tag=None, shared=False):
    base = (K0O if slot == 0 else K1O) + 1088 * p - 1024 * (p % 4)
    so = sTO if (p < 4 and not shared) else sTO2
    ld = f"buffer_load_dwordx4 v{vKd}, {srd(SK)}, s{so} offen offset:{1024*(p%4)} nt lds"
    return [f"s_add_u32 m0, s{sKL if shared else sKVB}, {base}", "s_nop 0", ("vm", tag, ld) if tag else ld]
def v_piece(p, slot, tag=None, force_m0=False, shared=False):
    so = sTO if (p < 4 and not shared) else sTO2
    r = []
    if p % 4 == 0 or force_m0:
        base = (V0O if slot == 0 else V1O) + 4096 * (p // 4)
        r += [f"s_add_u32 m0, s{sVL if shared else sKVB}, {base}", "s_nop 0"]
    ld = f"buffer_load_dwordx4 v{vVd}, {srd(SV)}, s{so} offen offset:{1024*(p%4)} nt lds"
    r.append(("vm", tag, ld) if tag else ld)
    return r
def tile_advance(shared=False):
    return [f"s_add_u32 s{sTO}, s{sTO}, 8192", f"s_and_b32 s{sTO}, s{sTO}, 0x3ffff",
            f"s_add_u32 s{sTO2}, s{sTO}, s{sCX}" if shared else f"s_add_u32 s{sTO2}, s{sTO}, 4096"]

def decode(A):
    A(f"""
    v_lshrrev_b32 v1, 6, v0
    v_and_b32 v{vLane}, 63, v0
    v_readfirstlane_b32 s{sW}, v1
    s_and_b32 s{sJJ}, s2, 7
    s_lshr_b32 s{sT1}, s2, 3
    s_and_b32 s{sBR}, s{sT1}, 1
    s_lshr_b32 s{sB}, s{sT1}, 1
    """)

def part_srd(A):
    A(f"""
    s_lshl_b32 s{sT0}, s{sBR}, 4
    s_add_u32 s{sT0}, s{sT0}, s{sB}
    s_mul_i32 s{sT0}, s{sT0}, {PART}
    s_add_u32 s{SP}, s{sWS}, s{sT0}
    s_addc_u32 s{SP+1}, s{sWS+1}, 0
    s_mov_b32 s{SP+2}, {0 if CFG.get('nost') else PART}
    s_mov_b32 s{SP+3}, 0x20000
    """)

def gen_main(A, name):
    kernel_begin(A, name)
    A("s_cmp_ge_u32 s2, 256")
    A("s_cbranch_scc1 L_end")
    stamp(A, 0)
    A(f"""
    s_load_dwordx16 s[64:79], s[0:1], 0
    s_load_dwordx4 s[80:83], s[0:1], 64
    s_load_dwordx2 s[{sWS}:{sWS+1}], s[0:1], 96
    s_load_dwordx2 s[{sDBG}:{sDBG+1}], s[0:1], 88
    s_load_dwordx2 s[100:101], s[0:1], 80
    """)
    decode(A)
    A(f"""
    s_lshl_b32 s{sH}, s{sJJ}, 2
    s_add_u32 s{sH}, s{sH}, s{sW}
    s_mul_i32 s{sCI}, s{sB}, 9
    s_lshr_b32 s{sCI}, s{sCI}, 4
    s_mul_i32 s{sT2}, s{sJJ}, {CFG['xrot']}
    s_add_u32 s{sCI}, s{sCI}, s{sT2}
    s_sub_u32 s{sT2}, s{sCI}, 9
    s_cmp_ge_u32 s{sCI}, 9
    s_cselect_b32 s{sCI}, s{sT2}, s{sCI}
    s_mov_b32 s{sCX}, s{sCI}
    s_lshl_b32 s{sWQ0}, s{sH}, 8
    s_mul_i32 s{sX0}, s{sB}, 96
    s_mul_i32 s{sT2}, s{sW}, 24
    s_add_u32 s{sX0}, s{sX0}, s{sT2}
    s_mul_i32 s{sX0}, s{sX0}, 1152
    s_mul_i32 s{sRG}, s{sW}, {REG}
    s_mul_i32 s{sLX}, s{sW}, 3072
    s_add_u32 s{sLX}, s{sLX}, {XB}
    v_lshrrev_b32 v1, 4, v{vLane}         ; t = l/16
    v_and_b32 v2, 15, v{vLane}
    v_lshlrev_b32 v33, 2, v1
    v_xor_b32 v33, v2, v33
    v_lshlrev_b32 v33, 4, v33
    v_lshl_add_u32 v{vWd}, v1, 13, v33
    v_add_u32 v{vWd+1}, {32768-1024}, v{vWd}
    v_add_u32 v{vWd+2}, {2*(32768-1024)}, v{vWd}
    v_add_u32 v{vWd+3}, {3*(32768-1024)}, v{vWd}
    v_lshl_add_u32 v{vVd}, v1, 8, v33
    v_xor_b32 v33, v2, v1
    v_lshlrev_b32 v33, 4, v33
    v_lshl_add_u32 v{vKd}, v1, 8, v33
    ; x dma: row = 24w + 8p + t ; f = (row>>1)&7 = (4*(w+p) + (t>>1)) & 7
    v_lshrrev_b32 v1, 3, v{vLane}         ; t = l/8
    v_and_b32 v2, 7, v{vLane}
    v_lshrrev_b32 v33, 1, v1
    v_xor_b32 v34, v2, v33
    s_and_b32 s{sT0}, s{sW}, 1
    s_lshl_b32 s{sT0}, s{sT0}, 2
    v_xor_b32 v34, s{sT0}, v34
    v_lshlrev_b32 v34, 4, v34
    v_mul_u32_u24 v1, 1152, v1
    v_add_u32 v{vXd}, v1, v34
    v_add_u32 v{vXd+2}, {2*(8*1152-1024)}, v{vXd}
    v_xor_b32 v34, 64, v34
    v_add_u32 v{vXd+1}, v1, v34
    v_add_u32 v{vXd+1}, {8*1152-1024}, v{vXd+1}
    ; wo dma: t*1152 + ((l&7) ^ (((t>>1)&1)<<2))*16
    v_and_b32 v33, 1, v33
    v_lshlrev_b32 v33, 2, v33
    v_xor_b32 v2, v2, v33
    v_lshl_add_u32 v47, v2, 4, v1
    {"s_memrealtime s[90:91]" if CFG.get("sst") else ""}
    s_waitcnt lgkmcnt(0)
    {"s_memrealtime s[88:89]" if CFG.get("sst") else ""}
    s_cmp_eq_u32 s{sBR}, 0
    s_cselect_b32 s{SX}, s64, s74
    s_cselect_b32 s{SX+1}, s65, s75
    s_cselect_b32 s{SWQ}, s70, s80
    s_cselect_b32 s{SWQ+1}, s71, s81
    s_cselect_b32 s{SK}, s66, s76
    s_cselect_b32 s{SK+1}, s67, s77
    s_cselect_b32 s{SV}, s68, s78
    s_cselect_b32 s{SV+1}, s69, s79
    s_mov_b32 s{SX+2}, {0 if CFG.get('nox') else 16*110592}
    s_mov_b32 s{SX+3}, 0x20000
    s_mov_b32 s{SWQ+2}, {0 if CFG.get('nowq') else 576*8192}
    s_mov_b32 s{SWQ+3}, 0x20000
    """)
    vm = VM()
    R = 8
    def wq_gran(n):
        G = []
        for p in range(4):
            g = []
            if n % 4 == 0 and p == 0:
                g += [f"s_lshl_b32 s{sWC}, s{sCI}, 19", f"s_add_u32 s{sWC}, s{sWC}, s{sWQ0}",
                      f"s_add_u32 s{sCI}, s{sCI}, 1", f"s_cmp_eq_u32 s{sCI}, 9", f"s_cselect_b32 s{sCI}, 0, s{sCI}"]
            setup = [f"s_add_u32 m0, s{sRG}, {(n % R) * 4096}", f"s_add_u32 s{sT2}, s{sWC}, {(n % 4) * 16 * 8192}"]
            g.append(("dma", f"w{n}", setup, f"w{n}",
                      f"buffer_load_dwordx4 v{vWd+p}, {srd(SWQ)}, s{sT2} offen offset:{1024*p} {CFG['wqf'] if n < CFG['wqn'] else ''} lds"))
            G.append(g)
        return G
    def x_chunk(c):
        G = []
        for p in range(3):
            g = []
            if p == 0:
                g += [f"s_lshl_b32 s{sXC}, s{sCX}, 7", f"s_add_u32 s{sXC}, s{sXC}, s{sX0}",
                      f"s_add_u32 s{sCX}, s{sCX}, 1", f"s_cmp_eq_u32 s{sCX}, 9", f"s_cselect_b32 s{sCX}, 0, s{sCX}"]
            setup = [f"s_add_u32 m0, s{sLX}, {(c % 2) * 12288}", "s_nop 0"]
            g.append(("dma", f"x{c}", setup, f"x{c}",
                      f"buffer_load_dwordx4 v{vXd+p}, {srd(SX)}, s{sXC} offen offset:{1024*p} {CFG['xf'] if c == 0 else CFG['xf2']} lds"))
            G.append(g)
        return G
    if CFG["wopf"] == -3:
        A(f"""
        s_cmp_lg_u32 s{sBR}, 0
        s_cbranch_scc1 L_nopf0
        s_lshl_b32 s{sT0}, s{sB}, 2
        s_add_u32 s{sT0}, s{sT0}, s{sW}
        s_mul_i32 s{sT0}, s{sT0}, {72*128}
        s_mul_i32 s{sT1}, s{sJJ}, {512*1152}
        s_add_u32 s{sT0}, s{sT0}, s{sT1}
        v_lshlrev_b32 v40, 7, v{vLane}
        v_add_u32 v40, s{sT0}, v40
        global_load_dword v41, v40, s[72:73] {CFG['pff']}
        global_load_dword v42, v40, s[72:73] offset:1024 {CFG['pff']}
        global_load_dword v43, v40, s[82:83] {CFG['pff']}
        global_load_dword v44, v40, s[82:83] offset:1024 {CFG['pff']}
        L_nopf0:
        """)
    for g in x_chunk(0) + wq_gran(0) + wq_gran(1): emit(A, vm, g)
    A(f"""
    s_lshl_b32 s{sT1}, s{sB}, 5
    s_add_u32 s{sT1}, s{sT1}, s{sH}
    s_lshr_b32 s{sT0}, s{sT1}, 1
    s_cmp_eq_u32 s{sBR}, 0
    s_cselect_b32 s{sT0}, s{sT0}, s{sT1}
    s_and_b32 s{sTO}, s{sT0}, 31
    s_lshl_b32 s{sTO}, s{sTO}, 13
    s_add_u32 s{sTO2}, s{sTO}, 4096
    s_lshl_b32 s{sT0}, s{sT0}, 18
    s_add_u32 s{SK}, s{SK}, s{sT0}
    s_addc_u32 s{SK+1}, s{SK+1}, 0
    s_add_u32 s{SV}, s{SV}, s{sT0}
    s_addc_u32 s{SV+1}, s{SV+1}, 0
    s_mov_b32 s{SK+2}, {0 if CFG['nokv'] else 0x40000}
    s_mov_b32 s{SK+3}, 0x20000
    s_mov_b32 s{SV+2}, {0 if CFG['nokv'] else 0x40000}
    s_mov_b32 s{SV+3}, 0x20000
    """)
    part_srd(A)
    if CFG["tlb"]:
        A(f"""
        s_cmp_eq_u32 s{sBR}, 0
        s_cselect_b32 s72, s72, s82
        s_cselect_b32 s73, s73, s83
        s_mul_i32 s{sT0}, s{sH}, {128*1152}
        s_load_dword s64, s[72:73], s{sT0}
        s_load_dword s65, s[{SK}:{SK+1}], 0
        s_load_dword s66, s[{SV}:{SV+1}], 0
        s_mul_i32 s{sT1}, s{sW}, {(PART - 4096) // 3}
        s_load_dword s67, s[{SP}:{SP+1}], s{sT1}
        s_mul_i32 s{sT3}, s{sB}, {96*2304}
        s_load_dword s68, s[100:101], s{sT3}
        s_load_dword s69, s[{sDBG}:{sDBG+1}], 0
        s_mov_b32 s82, s72
        s_mov_b32 s83, s73
        """)
    A(f"""
    s_mov_b32 s{sTHR}, {f2u(CFG['thr'])}
    s_mov_b32 s{sSC}, {f2u(LOG2E * 128 ** -0.5)}
    s_mov_b32 s{sSC+1}, {f2u(LOG2E * 128 ** -0.5)}
    v_bfe_u32 v1, v{vLane}, 4, 1          ; dsub
    v_lshrrev_b32 v2, 5, v{vLane}         ; h
    v_bfe_u32 v3, v{vLane}, 2, 2          ; r
    v_and_b32 v4, 3, v{vLane}             ; c
    v_lshl_add_u32 v30, v2, 2, v3
    v_lshlrev_b32 v30, 8, v30
    v_lshl_add_u32 v30, v1, 5, v30
    v_lshl_add_u32 v30, v4, 3, v30
    s_and_b32 s{sT0}, s{sW}, 2
    s_cmp_eq_u32 s{sBR}, {0 if CFG['share'] else 7}
    s_cselect_b32 s{sT0}, s{sT0}, s{sW}
    s_mul_i32 s{sKD}, s{sT0}, {REG}
    s_add_u32 s{sT0}, s{sKD}, {V1O}
    v_add_u32 v30, s{sT0}, v30
    """)
    for db in range(4):
        A(f"v_xor_b32 v31, {db}, v3")
        A(f"v_lshl_add_u32 v{vVr+db}, v31, 6, v30")
    A(f"""
    v_lshl_add_u32 v30, v2, 3, v3
    v_lshlrev_b32 v30, 8, v30
    v_lshl_add_u32 v30, v1, 5, v30
    v_and_b32 v31, 1, v4
    v_lshl_add_u32 v30, v31, 4, v30
    v_lshrrev_b32 v31, 1, v4
    v_lshl_add_u32 v30, v31, 3, v30
    """)
    for db in range(4):
        A(f"v_xor_b32 v31, {db}, v3")
        A(f"v_lshl_add_u32 v31, v31, 6, v30")
        A(f"v_add_u32 v{vWr+db}, s{sRG}, v31")
    A(f"""
    v_and_b32 v1, 31, v{vLane}
    v_bfe_u32 v3, v{vLane}, 1, 3
    v_xor_b32 v3, v3, v2
    v_lshlrev_b32 v30, 7, v1
    v_add_u32 v30, {XB}, v30
    """)
    for s in range(4):
        A(f"v_xor_b32 v31, {2*s}, v3")
        A(f"v_lshl_add_u32 v{vXr+s}, v31, 4, v30")
    A(f"""
    v_lshrrev_b32 v3, 2, v1
    v_mul_u32_u24 v3, 1088, v3
    v_lshl_add_u32 v3, v4, 8, v3
    v_add_u32 v3, s{sKD}, v3
    v_xor_b32 v30, v2, v4
    v_lshl_add_u32 v{vKr}, v30, 4, v3
    v_xor_b32 v30, 2, v30
    v_lshl_add_u32 v{vKr+1}, v30, 4, v3
    """)
    A(f"s_and_b32 s{sT0}, s{sB}, 1")
    A(f"s_lshl_b32 s{sT0}, s{sT0}, 7")
    A(f"v_add_u32 v47, s{sT0}, v47")
    for p in range(4): A(f"v_add_u32 v{vWoX+p}, {p*(8*1152-1024)}, v47")
    for g in wq_gran(2): emit(A, vm, g)
    def qp_reads(n):
        fb = n & 1
        L = []
        for qb in range(3):
            L.append(f"ds_read_b128 {ar(aXf + fb*12 + qb*4, 4)}, v{vXr + n % 4} offset:{((n // 4) % 2) * 12288 + qb*4096}")
        for db in range(4):
            for u in range(2):
                L.append(f"ds_read_b64_tr_b16 {ar(aWf + fb*16 + db*4 + u*2, 2)}, v{vWr+db} offset:{(n % R) * 4096 + u * 1024}")
        return L
    if CFG.get("sst"): stamp(A, 7)
    emit(A, vm, [("wait", ["x0", "w0"], ""), "s_barrier"])
    stamp(A, 11)
    for r in qp_reads(0): A(r)
    wqq = []
    for n in range(3, 36):
        for g in wq_gran(n): wqq.append((max(0, n - R), g))
    for (kind, slot) in (("k", 0), ("v", 0), ("k", 1), ("v", 1)):
        for p in range(8):
            if kind == "k":
                lo = (K0O if slot == 0 else K1O) + 1088 * p
                g = k_piece(p, slot, tag=f"K{slot}")
            else:
                lo = (V0O if slot == 0 else V1O) + 1024 * p
                g = v_piece(p, slot, tag=f"V{slot}", force_m0=True)
                if p == 7: g = g + tile_advance()
            slots = [sl for sl in range(R) if lo < (sl + 1) * 4096 and lo + 1024 > sl * 4096]
            avail = max([max(n for n in range(36) if n % R == sl) for sl in slots] + [0])
            if CFG["share"]: avail = 31 if avail <= 31 else 35
            wqq.append((avail, g))
    zero_o = [f"v_accvgpr_write_b32 a{aO+i}, 0" for i in range(192)]
    for n in range(36):
        fb = n & 1
        mf = []
        for db in range(4):
            for qb in range(3):
                T = qb * 4 + db
                c = vr(vQA+16*T, 16) if n > 0 else "0"
                mf.append(f"v_mfma_f32_32x32x16_bf16 {vr(vQA+16*T,16)}, {ar(aWf+fb*16+db*4,4)}, {ar(aXf+fb*12+qb*4,4)}, {c}")
        gaps = {}
        pre = []
        dma = []
        if n < 35:
            tags = [f"w{n+1}"]
            if n % 4 == 3: tags.append(f"x{n//4+1}")
            pre.append(("wait", tags, "lgkmcnt(0)"))
            if n % 4 == 3:
                pre.append("s_barrier")
                if n // 4 + 2 < 9: dma += x_chunk(n // 4 + 2)
            for i, r in enumerate(qp_reads(n + 1)): gaps.setdefault(i, []).append(r)
        else:
            pre += ["s_waitcnt lgkmcnt(0)"] + (["s_barrier"] if CFG["share"] else [])
        gaps[-1] = pre
        if n == 0:
            dma += [wqq.pop(0)[1] for _ in range(4)] + x_chunk(1)
        while wqq and wqq[0][0] <= n and len(dma) < CFG["qbud"]:
            dma.append(wqq.pop(0)[1])
        for i, g in enumerate(dma):
            gaps.setdefault((i * 12) // len(dma), []).extend(g)
        if CFG["wopf"] == -4 and n == CFG["pfs"]:
            gaps.setdefault(11, []).extend([
                f"s_cmp_eq_u32 s{sBR}, 0", f"s_cselect_b32 s72, s72, s82", f"s_cselect_b32 s73, s73, s83",
                f"s_lshl_b32 s{sT0}, s{sB}, 2", f"s_add_u32 s{sT0}, s{sT0}, s{sW}", f"s_mul_i32 s{sT0}, s{sT0}, {72*128}",
                f"s_mul_i32 s{sT1}, s{sJJ}, {512*1152}", f"s_add_u32 s{sT0}, s{sT0}, s{sT1}", f"v_lshlrev_b32 v40, 7, v{vLane}",
                f"v_add_u32 v40, s{sT0}, v40",
                ("vm", "pf", f"global_load_dword v41, v40, s[72:73] nt"),
                "s_mov_b64 exec, 0xff",
                f"v_add_u32 v45, 8192, v40",
                ("vm", "pf", f"global_load_dword v42, v45, s[72:73] nt"),
                "s_mov_b64 exec, -1"])
        if CFG["wopf"] == -4 and n == CFG["pfs"] + 5:
            gaps.setdefault(11, []).extend([
                ("vm", "pf", f"global_load_dword v43, v40, s[72:73] sc1"),
                "s_mov_b64 exec, 0xff",
                ("vm", "pf", f"global_load_dword v44, v45, s[72:73] sc1"),
                "s_mov_b64 exec, -1"])
        if CFG["kvpf"] and n >= CFG["kvs"] and (n - CFG["kvs"]) % CFG["kvd"] == 0 and (n - CFG["kvs"]) // CFG["kvd"] < 2 * CFG["kvpf"]:
            i = (n - CFG["kvs"]) // CFG["kvd"]
            g = []
            if i == 0: g.append(f"v_lshlrev_b32 v46, 7, v{vLane}")
            g += [f"s_add_u32 s{sT0}, s{sTO}, {(CFG['kv0'] + i // 2) * 8192}", f"s_and_b32 s{sT0}, s{sT0}, 0x3ffff",
                  ("vm", "pf", f"buffer_load_dword v{48+i}, v46, {srd(SK if i % 2 == 0 else SV)}, s{sT0} offen nt")]
            gaps.setdefault(11, []).extend(g)
        if n >= 8 and zero_o:
            for i in range(12):
                if zero_o: gaps.setdefault(i, []).append(zero_o.pop(0))
        interleave(A, mf, gaps, vm)
        if n in (3, 17) and not (CFG.get("midst") or CFG.get("gst") or CFG.get("sst")): stamp(A, 8 if n == 3 else 9)
    assert not zero_o
    kvq = [g for _, g in wqq]
    stamp(A, 1)
    def k_read(s, slot):
        return f"ds_read_b128 {ar(aK+4*s,4)}, v{vKr+(s&1)} offset:{(KVD if slot==0 else 0) + 64*(s>>1)}"
    def v_read(f, u, slot):
        ks, db = f // 4, f % 4
        return f"ds_read_b64_tr_b16 {ar(aV+(db*2+ks)*4+2*u,2)}, v{vVr+db} offset:{(KVD if slot==0 else 0) + (16*ks+8*u)*256}"
    A(f"""
    s_cmp_eq_u32 s{sBR}, 0
    s_cselect_b32 s{SWO}, s72, s82
    s_cselect_b32 s{SWO+1}, s73, s83
    s_mov_b32 s{SWO+2}, {0 if CFG.get('nowo') else 4096*1152}
    s_mov_b32 s{SWO+3}, 0x20000
    s_nop 7
    """)
    for j in range(95, -1, -1):
        s0 = vQA + 2 * j
        A(f"v_pk_mul_f32 {vr(s0,2)}, {vr(s0,2)}, s[{sSC}:{sSC+1}]")
        if j < 95:
            A(f"v_cvt_pk_bf16_f32 v{vQ+j+1}, v{vQA+2*j+2}, v{vQA+2*j+3}")
        if j % 4 == 0 and kvq: emit(A, vm, kvq.pop(0))
        if j == 8:
            assert not kvq
            emit(A, vm, [("wait", ["K0"], "")])
            for s in range(8): A(k_read(s, 0))
    A(f"v_cvt_pk_bf16_f32 v{vQ}, v{vQA}, v{vQA+1}")
    for i in range(32): A(f"v_accvgpr_write_b32 a{aV+i}, 0")
    for i in range(8): A(f"v_mov_b32 v{vP+16+i}, 0")
    for i in range(3): A(f"v_mov_b32 v{vL+i}, 0")
    A("s_waitcnt lgkmcnt(0)")
    def qk(qb, s, cinit=None):
        c = vr(vS+16*qb, 16) if s > 0 else (cinit if cinit is not None else vr(vNM+16*qb, 16))
        return f"v_mfma_f32_32x32x16_bf16 {vr(vS+16*qb,16)}, {ar(aK+4*s,4)}, {vr(vQ+32*qb+4*s,4)}, {c}"
    def pv(qb, m):
        ks, db = m // 4, m % 4
        o = ar(aO + (qb*4+db)*16, 16)
        return f"v_mfma_f32_32x32x16_bf16 {o}, {ar(aV+(db*2+ks)*4,4)}, {vr(vP+8*qb+4*ks,4)}, {o}"
    def rowmax(qb, dst, tmp):
        s = vS + 16 * qb
        L = [f"v_max3_f32 v{dst}, v{s}, v{s+1}, v{s+2}"]
        for i in range(3, 15, 2):
            L.append(f"v_max3_f32 v{dst}, v{dst}, v{s+i}, v{s+i+1}")
        L.append(f"v_max_f32 v{dst}, v{dst}, v{s+15}")
        L += [f"v_mov_b32 v{tmp}, v{dst}", "s_nop 1", f"v_permlane32_swap_b32 v{dst}, v{tmp}", "s_nop 1",
              f"v_max_f32 v{dst}, v{dst}, v{tmp}"]
        return L
    def init_ops(qb):
        L = rowmax(qb, vT, vT+1)
        L += [f"v_sub_f32 v{vNM+16*qb+i}, 0, v{vT}" for i in range(16)]
        if qb == 0: L += [f"v_sub_f32 v{vS+i}, v{vS+i}, v{vT}" for i in range(16)]
        return L
    mf = [qk(qb, s, cinit="0") for qb in range(3) for s in range(8)]
    gaps = {}
    gaps[8] = ["s_nop 7"]; gaps[9] = ["s_nop 1"]
    ops = init_ops(0)
    for i, o in enumerate(ops): gaps.setdefault(10 + i * 8 // len(ops), []).append(o)
    ops = init_ops(1)
    for i, o in enumerate(ops): gaps.setdefault(19 + i * 5 // len(ops), []).append(o)
    interleave(A, mf, gaps)
    A("s_nop 7")
    for o in init_ops(2): A(o)
    stamp(A, 2)
    sites = []
    def softmax_ops(qb, site):
        s = vS + 16 * qb
        ops = []
        for i in range(16):
            ops.append((8, f"v_exp_f32 v{vE+i%8}, v{s+i}"))
            if i == 2: ops.append((4, f"v_add_f32 v{vPS}, v{vE}, v{vE+1}"))
            elif i > 2: ops.append((4, f"v_add_f32 v{vPS}, v{vPS}, v{vE+(i-1)%8}"))
            if i >= 2 and i % 2 == 0:
                ops.append((4, f"v_cvt_pk_bf16_f32 v{vP+8*qb+(i-2)//2}, v{vE+(i-2)%8}, v{vE+(i-1)%8}"))
        ops.append((4, f"v_add_f32 v{vPS}, v{vPS}, v{vE+7}"))
        ops.append((4, f"v_cvt_pk_bf16_f32 v{vP+8*qb+7}, v{vE+6}, v{vE+7}"))
        tail = [f"v_cmp_nge_f32 vcc, s{sTHR}, v{vPS}", f"s_cbranch_vccnz L_tramp_{site}", f"L_back_{site}:",
                f"v_add_f32 v{vL+qb}, v{vL+qb}, v{vPS}"]
        sites.append((site, qb))
        return ops, tail
    def double_phase(mf, qb_sm, site, extra):
        ops, tail = softmax_ops(qb_sm, site)
        gaps = {k: list(v) for k, v in extra.items()}
        total = sum(c for c, _ in ops)
        g0, g1 = 2, len(mf) - 1
        acc = 0
        for c, o in ops:
            g = g0 + min(g1 - g0 - 1, int(acc * (g1 - g0) / total))
            gaps.setdefault(g, []).append(o)
            acc += c
        gaps.setdefault(len(mf) - 1, []).extend(tail)
        n = 3
        for k in (-1, ("pre", 0), 0, ("pre", 1), 1, ("pre", 2)):
            n += len([x for x in gaps.get(k, []) if not x.endswith(":")])
        n += 3
        for x in gaps[2]:
            if x.startswith("v_exp"): break
            n += 1
        if n < 12:
            gaps.setdefault(1, []).append(f"s_nop {12 - n - 1}")
        interleave(A, mf, gaps)
    def wox_piece(p):
        r = []
        if p % 4 == 0:
            r += [f"s_add_u32 m0, s{sRG}, {RINGO + 1024 * p}", f"s_add_u32 s{sT2}, s{sWC}, {8 * 1152 * p}"]
        return r + [f"buffer_load_dwordx4 v{vWoX + p % 4}, {srd(SWO)}, s{sT2} offen offset:{1024 * (p % 4)} {CFG['wof']} lds"]
    TW = list(range(64, 76))
    TL = list(range(76, 84)) + [98, 99, 100, 101]
    def tables():
        L = [f"s_lshr_b32 s{sCI}, s{sB}, 1", f"s_mul_i32 s{sCI}, s{sCI}, 3", f"s_lshr_b32 s{sCI}, s{sCI}, 1",
             f"s_lshl_b32 s{sXC}, s{sW}, 2", f"s_add_u32 s{sXC}, s{sXC}, 4"]
        G = [L]
        for i in range(12):
            G.append([f"s_add_u32 s{sT1}, s{sCI}, s{sXC}", f"s_and_b32 s{sT1}, s{sT1}, 15",
                      f"s_add_u32 s{sCI}, s{sCI}, 1", f"s_cmp_eq_u32 s{sCI}, 12", f"s_cselect_b32 s{sCI}, 0, s{sCI}"])
            G.append([f"s_mul_i32 s{TW[i]}, s{sT1}, {32*1152}", f"s_add_u32 s{TW[i]}, s{TW[i]}, s{sWQ0}",
                      f"s_lshr_b32 s{sT0}, s{sT1}, 2", f"s_and_b32 s{sT1}, s{sT1}, 3", f"s_mul_i32 s{TL[i]}, s{sT0}, {REG}"])
            G.append([f"s_mul_i32 s{sT3}, s{sT1}, 6144", f"s_add_u32 s{TL[i]}, s{TL[i]}, s{sT3}",
                      f"s_mul_i32 s{sT0}, s{sT0}, 6144", f"s_add_u32 s{sT0}, s{sT0}, {XB}",
                      f"s_cmp_eq_u32 s{sT1}, 3", f"s_cselect_b32 s{TL[i]}, s{sT0}, s{TL[i]}"])
        return G
    def tile(par, mode, tagp, sh):
        ex = [dict(), dict(), dict()]
        def put(gam, instrs): ex[gam // 16].setdefault(gam % 16, []).extend(instrs)
        bar = ["s_barrier"] if sh else []
        ex[0][-1] = ["s_waitcnt vmcnt(%d)" % (0 if mode == "last" else (8 if sh else 16))] + bar
        for k in range(16):
            put(k // 2 if k < 4 else k - 2, [v_read(k // 2, k % 2, par)])
        ex[1][("pre", 0)] = ["s_waitcnt lgkmcnt(4)"]
        ex[1][("pre", 6)] = ["s_waitcnt lgkmcnt(0)"]
        if mode != "last":
            if sh: n = 8 if mode == "steady" else 4
            else: n = 19 if mode == "steady" else 8
            ex[2][-1] = ["s_waitcnt vmcnt(%d)" % n] + bar
            for s in range(8): put(32 + s // 4, [k_read(s, par ^ 1)])
            ex[2][("pre", 8)] = ["s_waitcnt lgkmcnt(0)"]
        else:
            ex[2][-1] = bar
        if mode == "steady":
            if sh:
                for p in range(4):
                    th = [f"s_waitcnt vmcnt({CFG['da']})"] if CFG["da"] >= 0 else []
                    put(6 * p + 1, th + k_piece(p, par, shared=True))
                    put(34 + 4 * p, th + v_piece(p, par, shared=True))
                put(47, tile_advance(True))
            else:
                for p in range(8):
                    put(3 * p, k_piece(p, par))
                    put(24 + 3 * p, v_piece(p, par))
                put(46, tile_advance())
        if mode == "prelast":
            for i, g in enumerate(tables()): put(i + 3, g)
        if mode == "last":
            for p in range(16): put(2 * p, wox_piece(p))
        double_phase([pv(2, m) for m in range(8)] + [qk(1, s) for s in range(8)], 0, f"{tagp}a", ex[0])
        double_phase([pv(0, m) for m in range(8)] + [qk(2, s) for s in range(8)], 1, f"{tagp}b", ex[1])
        double_phase([pv(1, m) for m in range(8)] + ([qk(0, s) for s in range(8)] if mode != "last" else []), 2, f"{tagp}c", ex[2])
    A(f"s_mov_b32 s{sCNT}, 0")
    A(f"""
    s_mul_i32 s{sWQ0}, s{sJJ}, {512*1152}
    s_lshl_b32 s{sT0}, s{sW}, 8
    s_add_u32 s{sWQ0}, s{sWQ0}, s{sT0}
    s_mul_i32 s{sWC}, s{sW}, {128*1152}
    s_add_u32 s{sWC}, s{sWC}, s{sWQ0}
    """)
    def attn_loop(sh):
        L = "A" if sh else "B"
        A(".p2align 6")
        A(f"L_main{L}:")
        tile(0, "steady", L + "s0", sh)
        tile(1, "steady", L + "s1", sh)
        if CFG["wopf"] >= 0:
            A(f"""
            s_cmp_lg_u32 s{sCNT}, {CFG["wopf"]}
            s_cbranch_scc1 L_nopf{L}
            s_lshl_b32 s{sT0}, s{sB}, 2
            s_add_u32 s{sT0}, s{sT0}, s{sW}
            s_mul_i32 s{sT0}, s{sT0}, {72*128}
            s_mul_i32 s{sT1}, s{sJJ}, {512*1152}
            s_add_u32 s{sT0}, s{sT0}, s{sT1}
            v_lshlrev_b32 v1, 7, v{vLane}
            buffer_load_dword v2, v1, {srd(SWO)}, s{sT0} offen {CFG['pff']}
            buffer_load_dword v3, v1, {srd(SWO)}, s{sT0} offen offset:1024 {CFG['pff']}
            L_nopf{L}:
            """)
            if CFG["pf2"]:
                A(f"""
                s_cmp_lg_u32 s{sCNT}, {CFG["wopf"] + 1}
                s_cbranch_scc1 L_nopf2{L}
                buffer_load_dword v2, v1, {srd(SWO)}, s{sT0} offen sc1
                buffer_load_dword v3, v1, {srd(SWO)}, s{sT0} offen offset:1024 sc1
                L_nopf2{L}:
                """)
        if CFG.get("midst"):
            for idx, c in ((8, 4), (9, 9)):
                A(f"s_cmp_lg_u32 s{sCNT}, {c}")
                A(f"s_cbranch_scc1 L_nost{idx}{L}")
                stamp(A, idx)
                A(f"L_nost{idx}{L}:")
        A(f"""
        s_add_u32 s{sCNT}, s{sCNT}, 1
        s_cmp_lt_u32 s{sCNT}, 15
        s_cbranch_scc1 L_main{L}
        """)
        tile(0, "prelast", L + "p0", sh)
        tile(1, "last", L + "p1", sh)
    if CFG["share"]:
        A(f"""
        s_cmp_lg_u32 s{sBR}, 0
        s_cbranch_scc1 L_mainB
        s_and_b32 s{sT0}, s{sW}, 1
        s_mul_i32 s{sKL}, s{sT0}, 4352
        s_add_u32 s{sKL}, s{sKL}, s{sKVB}
        s_lshl_b32 s{sCX}, s{sT0}, 12
        s_add_u32 s{sVL}, s{sCX}, s{sKVB}
        s_add_u32 s{sTO2}, s{sTO}, s{sCX}
        """)
        attn_loop(True)
        A("s_branch L_attn_done")
    attn_loop(False)
    A("L_attn_done:")
    vF = 16
    vXa, vOa = 8, 10
    vOwn = 64
    def norm_frag(kl, qb, n):
        db, half = kl // 2, kl % 2
        tb = 24 + (n % 5) * 8
        dst = vOwn + (kl * 3 + qb) * 4
        L = [f"v_accvgpr_read_b32 v{tb+i}, a{aO+(qb*4+db)*16+8*half+i}" for i in range(8)]
        if CFG["nopk"]: L += [f"v_mul_f32 v{tb+i}, v{tb+i}, v{vF+2*qb}" for i in range(8)]
        else: L += [f"v_pk_mul_f32 {vr(tb+2*i,2)}, {vr(tb+2*i,2)}, {vr(vF+2*qb,2)}" for i in range(4)]
        L += [f"v_cvt_pk_bf16_f32 v{dst+i}, v{tb+2*i}, v{tb+2*i+1}" for i in range(4)]
        L.append(f"ds_write_b128 v2, {vr(dst,4)} offset:{kl*3072 + qb*1024}" if kl < 6 else
                 f"ds_write_b128 v14, {vr(dst,4)} offset:{(kl-6)*3072 + qb*1024}")
        return L
    cnt = [0]
    def norm_group(db, qbs=(0, 1, 2)):
        L = []
        for qb in qbs:
            for half in range(2):
                L += norm_frag(db * 2 + half, qb, cnt[0]); cnt[0] += 1
        return L
    setup = f"""
    v_lshlrev_b32 v1, 4, v{vLane}
    v_add_u32 v2, s{sRG}, v1
    s_mul_i32 s{sT0}, s{sW}, 6144
    s_add_u32 s{sT0}, s{sT0}, {XB}
    v_add_u32 v14, s{sT0}, v1
    v_bfe_u32 v12, v{vLane}, 4, 1
    v_and_b32 v13, 1, v{vLane}
    v_lshlrev_b32 v13, 5, v13
    v_lshl_add_u32 v13, v12, 4, v13
    v_bfe_u32 v12, v{vLane}, 1, 1
    v_lshl_add_u32 v13, v12, 3, v13
    v_lshrrev_b32 v12, 5, v{vLane}
    v_bfe_u32 v15, v{vLane}, 2, 2
    v_lshl_add_u32 v12, v12, 2, v15
    v_lshl_add_u32 v13, v12, 7, v13
    v_add_u32 v13, {RINGO}, v13
    v_lshrrev_b32 v15, 1, v15
    v_lshl_add_u32 v12, v15, 6, v13
    v_xor_b32 v15, 1, v15
    v_lshl_add_u32 v13, v15, 6, v13
    v_add_u32 v{vXa}, s{sRG}, v12
    v_add_u32 v{vXa+1}, s{sRG}, v13
    s_mul_i32 s{sKD}, s{sJJ}, {PCU}
    s_lshl_b32 s{sKR}, s{sW}, 12
    s_add_u32 s{sKR}, s{sKR}, s{sKD}
    s_add_u32 s{sKR}, s{sKR}, {96*1024}
    s_mul_i32 s{sT0}, s{sW}, {24*1024}
    s_add_u32 s{sKD}, s{sKD}, s{sT0}
    s_and_b32 s{sT0}, s{sB}, 1
    s_lshl_b32 s{sT0}, s{sT0}, 12
    s_add_u32 s{sKD}, s{sKD}, s{sT0}
    s_lshl_b32 s{sT0}, s{sT0}, 1
    s_sub_u32 s{sLX}, 4096, s{sT0}
    s_ashr_i32 s{sTO}, s{sLX}, 5
    s_mul_i32 s{sTO2}, s{sH}, {128*1152}
    s_lshr_b32 s{sT0}, s{sT0}, 6
    s_add_u32 s{sTO2}, s{sTO2}, s{sT0}
    s_add_u32 s{sTO2}, s{sTO2}, 896
    """
    setup = [x.strip() for x in setup.split("\n") if x.strip()]
    vm = VM()
    for p in range(16): vm.add(f"g{p//4}")
    aXB = 96
    def op_gran(z):
        G = []
        for p in range(4):
            g = []
            if z == 16 and p == 0:
                g += [f"v_add_u32 v{vWoX+i}, s{sTO}, v{vWoX+i}" for i in range(4)]
            m0 = f"s_add_u32 m0, s{sRG}, {RINGO + (z % 4) * 4096}"
            if z >= 32: setup, so = [m0, f"s_add_u32 s{sT2}, s{sTO2}, {(z - 32) * 32 * 1152}"], sT2
            elif z % 16 < 4: setup, so = [m0, f"s_add_u32 s{sT2}, s{sWC}, {(z % 16) * 32 * 1152}"], sT2
            else: setup, so = [m0, "s_nop 0"], TW[z % 16 - 4]
            fl = CFG['wof'] if (z < 4 + CFG['won'] or z >= 32) else ''
            g.append(("dma", f"g{z}", setup, f"g{z}", f"buffer_load_dwordx4 v{vWoX+p}, {srd(SWO)}, s{so} offen offset:{1024*p} {fl} lds"))
            G.append(g)
        return G
    def a_reads(fb, va, off):
        return [[f"ds_read_b64_tr_b16 {ar(aWf + fb*16 + (kk*2+ct)*4 + u*2, 2)}, v{va+ct} offset:{off + (16*kk+8*u)*128}"]
                for kk in range(2) for ct in range(2) for u in range(2)]
    def op_reads(z):
        fb = z & 1
        L = a_reads(fb, vXa, (z % 4) * 4096)
        if z < 4: return L
        if z % 16 < 4:
            va, off = (2, (z % 4) * 6144) if z % 4 < 3 else (14, 0)
        else:
            va, off = vOa + fb, 0
            L[0] = [f"v_add_u32 v{va}, s{TL[z % 16 - 4]}, v1"] + L[0]
        R_ = [[f"ds_read_b128 {ar(aXB + fb*24 + kk*12 + qb*4, 4)}, v{va} offset:{off + kk*3072 + qb*1024}"]
              for kk in range(2) for qb in range(3)]
        return L[:4] + R_[:3] + L[4:] + R_[3:]
    def conv_store(ps):
        base, dst0 = ((160, 160), (64, 208))[ps]
        cv, st = [], []
        tiles = [(qb, ct) for qb in range(3) for ct in range(2)] if ps == 0 else [(qb, ct) for ct in range(2) for qb in range(3)]
        for k, (qb, ct) in enumerate(tiles):
            tb = dst0 + k * 8
            src = base + (qb*2+ct) * 16
            c = [f"v_cvt_pk_bf16_f32 v{tb+i}, v{src+2*i}, v{src+2*i+1}" for i in range(8)]
            t = []
            if ps == 1 and k == 0: t.append(f"s_add_u32 s{sKD}, s{sKD}, s{sLX}")
            t.append(f"s_add_u32 s{sT3}, s{sKD}, {(qb*4 + ct)*2048}")
            for half in range(2):
                t.append(("vm", "st", f"buffer_store_dwordx4 {vr(tb+4*half,4)}, v1, {srd(SP)}, s{sT3} offen offset:{half*1024} {CFG['stfl']}"))
            cv.append(c); st.append(t)
        return cv, st
    fin = [f"v_mov_b32 v{vT+qb}, v{vL+qb}" for qb in range(3)] + setup[:2]
    fin += [f"v_permlane32_swap_b32 v{vL+qb}, v{vT+qb}" for qb in range(3)] + setup[2:5]
    fin += [f"v_add_f32 v{vL+qb}, v{vL+qb}, v{vT+qb}" for qb in range(3)]
    fin += [f"v_rcp_f32 v{vF+2*qb}, v{vL+qb}" for qb in range(3)] + setup[5:]
    fin += [f"v_mov_b32 v{vF+2*qb+1}, v{vF+2*qb}" for qb in range(3)]
    gaps = {}
    for i, o in enumerate(fin): gaps.setdefault(i * 8 // len(fin), []).append(o)
    interleave(A, [pv(2, m) for m in range(8)], gaps)
    stamp(A, 3)
    emit(A, vm, [("wait", ["g0"], "")])
    for g in op_reads(0): emit(A, vm, g)
    emit(A, vm, norm_group(0))
    stamp(A, 4)
    pend = []
    for z in range(32):
        fb = z & 1
        mf = []
        for kk in range(2):
            for ct in range(2):
                for qb in range(3):
                    acc = vr((160 if z < 16 else 64) + (qb*2+ct)*16, 16)
                    c = "0" if (z % 16 == 0 and kk == 0) else acc
                    bop = vr(vOwn + ((2*z+kk)*3+qb)*4, 4) if z < 4 else ar(aXB+fb*24+kk*12+qb*4, 4)
                    mf.append(f"v_mfma_f32_32x32x16_bf16 {acc}, {ar(aWf+fb*16+(kk*2+ct)*4,4)}, {bop}, {c}")
        gaps = {}
        if z < 31:
            gaps[-1] = [("wait", [f"g{z+1}"], "lgkmcnt(0)")]
            if z == 3: gaps[-1].append("s_barrier")
            rd = op_reads(z + 1)
            for i, g in enumerate(rd): gaps.setdefault(i * 11 // len(rd), []).extend(g)
        else:
            gaps[-1] = ["s_waitcnt lgkmcnt(0)"]
        for i, g in enumerate(op_gran(z + 4)): gaps.setdefault(3 * i + 1, []).extend(g)
        if z < 3:
            ng = norm_group(z + 1)
            for i, o in enumerate(ng): gaps.setdefault(i * 12 // len(ng), []).append(o)
        if z == 17:
            pend = sum([c + t for c, t in zip(*conv_store(0))], []) if CFG["early"] else sum(conv_store(0)[0], [])
        for i in range(12):
            if pend: gaps.setdefault(i, []).append(pend.pop(0))
        interleave(A, mf, gaps, vm)
        if z == 3 and CFG.get("gst"): stamp(A, 8)
    assert not pend
    if CFG.get("gst"): stamp(A, 9)
    tail = ([] if CFG["early"] else sum(conv_store(0)[1], []))
    cv1, st1 = conv_store(1)
    tail += [f"s_lshl_b32 s{sT0}, s{sW}, 10", f"v_add_u32 v{vOa}, s{sT0}, v1",
             f"v_add_u32 v{vOa+1}, {XB}, v{vOa}", f"v_add_u32 v8, {2*REG}, v12", f"v_add_u32 v9, {2*REG}, v13",
             f"v_add_u32 v15, {2*REG}, v{vOa}", "s_nop 1"]
    tail += sum([c + t for c, t in zip(cv1, st1)], [])
    npre = len(tail) - CFG["xfill"]
    emit(A, vm, tail[:npre])
    tail = tail[npre:]
    emit(A, vm, [("wait", ["g35"], ""), "s_barrier", f"s_cmp_eq_u32 s{sW}, 3", "s_cbranch_scc1 L_x3"])
    def x_reads(y):
        fb = y % 4
        hd, db = y // 4, y % 4
        va, off = (12 if hd < 2 else 8), (hd % 2) * REG + db * 4096
        L = [[f"ds_read_b64_tr_b16 {ar(fb*24 + (kk*2+ct)*4 + u*2, 2)}, v{va+ct} offset:{off + (16*kk+8*u)*128}"]
             for kk in range(2) for ct in range(2) for u in range(2)]
        if db < 3: va, off = (vOa if hd < 2 else 15), (hd % 2) * REG + db * 6144
        else: va, off = vOa + 1, hd * 6144
        R_ = [[f"ds_read_b128 {ar(fb*24 + 16 + kk*4, 4)}, v{va} offset:{off + kk*3072}"] for kk in range(2)]
        return L[:4] + R_[:1] + L[4:] + R_[1:]
    for g in x_reads(0) + x_reads(1): emit(A, vm, g)
    tl = list(tail)
    for y in range(16):
        fb = y % 4
        mf = []
        for kk in range(2):
            for ct in range(2):
                acc = vr(16 + ct * 16, 16)
                c = "0" if (y == 0 and kk == 0) else acc
                mf.append(f"v_mfma_f32_32x32x16_bf16 {acc}, {ar(fb*24+(kk*2+ct)*4,4)}, {ar(fb*24+16+kk*4,4)}, {c}")
        gaps = {-1: ["s_waitcnt lgkmcnt(%d)" % (10 if y < 15 else 0)]}
        if y < 14:
            for i, g in enumerate(x_reads(y + 2)): gaps.setdefault(i * 4 // 10, []).extend(g)
        for i in range(4):
            if tl: gaps.setdefault(i, []).append(tl.pop(0))
        interleave(A, mf, gaps, vm)
    assert not tl
    stamp(A, 5)
    A("s_nop 7")
    A("s_nop 3")
    for ct in range(2):
        for i in range(8): A(f"v_cvt_pk_bf16_f32 v{48+ct*8+i}, v{16+ct*16+2*i}, v{17+ct*16+2*i}")
        for half in range(2):
            A(f"buffer_store_dwordx4 {vr(48+ct*8+4*half,4)}, v1, {srd(SP)}, s{sKR} offen offset:{ct*2048+half*1024} {CFG['stfl']}")
    A("s_branch L_xdone")
    A("L_x3:")
    stamp(A, 5)
    emit(A, vm, tail)
    A("L_xdone:")
    if CFG["stamps"]:
        A("s_waitcnt vmcnt(0)")
        stamp(A, 6); stamp(A, 10)
        if not CFG.get("sst"): stamp(A, 7)
    stamps_out(A, 12)
    A("L_end:")
    A("s_endpgm")
    for site, qb in sites:
        A(f"L_tramp_{site}:")
        A(f"s_call_b64 s[{sRET}:{sRET+1}], L_rare_{qb}")
        A(f"s_branch L_back_{site}")
    for qb in range(3):
        s = vS + 16 * qb
        A(f"L_rare_{qb}:")
        for x in rowmax(qb, vT, vT+1): A(x)
        A(f"v_max_f32 v{vT}, 0, v{vT}")
        A(f"v_exp_f32 v{vT+1}, -v{vT}")
        for i in range(16): A(f"v_sub_f32 v{vNM+16*qb+i}, v{vNM+16*qb+i}, v{vT}")
        A(f"v_mul_f32 v{vL+qb}, v{vL+qb}, v{vT+1}")
        for i in range(64):
            A(f"v_accvgpr_read_b32 v{vT+2+i%4}, a{aO+qb*64+i}")
            A(f"v_mul_f32 v{vT+2+i%4}, v{vT+2+i%4}, v{vT+1}")
            A(f"v_accvgpr_write_b32 a{aO+qb*64+i}, v{vT+2+i%4}")
        A(f"v_mov_b32 v{vPS}, 0")
        for i in range(0, 16, 2):
            A(f"v_sub_f32 v{vE}, v{s+i}, v{vT}")
            A(f"v_sub_f32 v{vE+1}, v{s+i+1}, v{vT}")
            A(f"v_exp_f32 v{vE}, v{vE}")
            A(f"v_exp_f32 v{vE+1}, v{vE+1}")
            A("s_nop 0")
            A(f"v_add_f32 v{vPS}, v{vPS}, v{vE}")
            A(f"v_add_f32 v{vPS}, v{vPS}, v{vE+1}")
            A(f"v_cvt_pk_bf16_f32 v{vP+8*qb+i//2}, v{vE}, v{vE+1}")
        A("s_nop 1")
        A(f"s_setpc_b64 s[{sRET}:{sRET+1}]")

def gen_reduce_kernel(A, name):
    kernel_begin(A, name)
    A("s_cmp_ge_u32 s2, 864")
    A("s_cbranch_scc1 L_rk_end")
    stamp(A, 0)
    A(f"""
    s_load_dwordx2 s[{sWS}:{sWS+1}], s[0:1], 96
    s_load_dwordx2 s[8:9], s[0:1], 80
    v_lshrrev_b32 v1, 6, v0
    v_and_b32 v7, 63, v0
    v_readfirstlane_b32 s3, v1
    v_lshlrev_b32 v1, 4, v7
    s_mul_i32 s24, s2, 2428
    s_lshr_b32 s24, s24, 16
    s_mul_i32 s25, s24, 27
    s_sub_u32 s25, s2, s25
    s_lshl_b32 s25, s25, 1
    s_add_u32 s25, s25, s3             ; tt
    s_mul_i32 s26, s24, {PART}
    s_lshl_b32 s27, s25, 11
    s_add_u32 s26, s26, s27
    s_mov_b32 s22, {32*PART}
    s_mov_b32 s23, 0x20000
    s_mov_b32 s10, {16*96*1152*2}
    s_mov_b32 s11, 0x20000
    s_waitcnt lgkmcnt(0)
    s_mov_b32 s20, s{sWS}
    s_mov_b32 s21, s{sWS+1}
    """)
    for p in range(8):
        for m in range(2):
            A(f"buffer_load_dwordx4 {vr(32+(p*2+m)*4,4)}, v1, s[20:23], s26 offen offset:{1024*m} {CFG['rfl']}")
        if p < 7: A(f"s_add_u32 s26, s26, {PCU}")
    stamp(A, 1)
    A(f"""
    s_mov_b32 s30, 0x3f80
    s_mov_b32 s31, 0x3f800000
    s_and_b32 s27, s24, 15
    s_mul_i32 s28, s27, {96*2304}
    s_lshr_b32 s27, s24, 4
    s_mul_i32 s27, s27, 1152
    s_add_u32 s28, s28, s27
    s_mul_i32 s27, s25, 43
    s_lshr_b32 s27, s27, 9             ; w' (4 = extra)
    s_mul_i32 s29, s27, 12
    s_sub_u32 s29, s25, s29            ; T
    s_cmp_eq_u32 s27, 4
    s_cselect_b32 s32, 1, 2
    s_cselect_b32 s33, 1, 3
    s_lshl_b32 s27, s27, 8
    s_add_u32 s28, s28, s27
    s_lshr_b32 s27, s29, s32           ; qb
    s_mul_i32 s27, s27, {32*2304}
    s_add_u32 s28, s28, s27
    s_and_b32 s27, s29, s33            ; ct
    s_lshl_b32 s27, s27, 6
    s_add_u32 s28, s28, s27
    v_and_b32 v2, 31, v7
    v_lshrrev_b32 v3, 5, v7
    v_mul_u32_u24 v4, 2304, v2
    v_lshl_add_u32 v4, v3, 5, v4
    """)
    for p in range(8):
        A(f"s_waitcnt vmcnt({14 - 2*p})")
        for m in range(2):
            for d in range(4):
                src = 32 + (p*2+m)*4 + d
                for hi in range(2):
                    acc = 8 + m*8 + d*2 + hi
                    A(f"v_dot2_f32_bf16 v{acc}, v{src}, s{31 if hi else 30}, {'0' if p == 0 else f'v{acc}'}")
    A("s_nop 2")
    for m in range(2):
        for d in range(4):
            A(f"v_cvt_pk_bf16_f32 v{24+m*4+d}, v{8+m*8+2*d}, v{9+m*8+2*d}")
        A(f"buffer_store_dwordx4 {vr(24+m*4,4)}, v4, s[8:11], s28 offen offset:{m*16}")
    if CFG["stamps"]:
        A("s_waitcnt vmcnt(0)")
        stamp(A, 2)
        A("s_cmp_lg_u32 s3, 0")
        A("s_cbranch_scc1 L_rk_end")
        A("s_waitcnt lgkmcnt(0)")
        A(f"s_lshl_b32 s34, s2, 6")
        A(f"s_add_u32 s34, s34, {STAMP_OFF + 1024 * 64}")
        A("v_mov_b32 v1, s34")
        for i in range(3):
            A(f"v_mov_b32 v2, s{sST[i]}")
            A(f"global_store_dword v1, v2, s[{sWS}:{sWS+1}] offset:{4*i}")
    A("L_rk_end:")
    A("s_endpgm")

def gen(**kw):
    CFG.update(kw)
    CFG["stfl"] = CFG["fst"] if CFG["fst"] is not None else ("" if (CFG["split_reduce"] or CFG["wb"]) else "sc1")
    A = Asm()
    for l in open("cdna_kernels/" + NAME + ".s.ref").read().split("\n"):
        if not l.startswith(";"): break
        if "@launch" in l or "Override launch" in l or "grid=ceil" in l: continue
        A.L.append(l)
    if CFG["split_reduce"]:
        header(A, ["; @launch kernel=main_kernel grid=(256,1,1) block=(256,1,1) lds=163840",
                   "; @launch kernel=reduce_kernel grid=(864,1,1) block=(128,1,1) lds=0"])
        gen_main(A, "main_kernel")
        gen_reduce_kernel(A, "reduce_kernel")
        descriptor(A, "main_kernel")
        descriptor(A, "reduce_kernel", vgpr=96, accum=96, first=False)
    else:
        header(A, ["; @launch grid=(256,1,1) block=(256,1,1) lds=163840"])
        gen_main(A, NAME + "_kernel")
        descriptor(A, NAME + "_kernel")
    return A.text()

if __name__ == "__main__":
    out = sys.argv[1] if len(sys.argv) > 1 else "cdna_kernels/" + NAME + ".s"
    kw = {}
    for a in sys.argv[2:]:
        k, v = a.split("=")
        kw[k] = eval(v)
    open(out, "w").write(gen(**kw))
```

```python
import sys, struct
from asmlib import *

LOG2E = 1.4426950408889634
def f2u(x): return struct.unpack("<I", struct.pack("<f", x))[0]

CFG = dict(stamps=False, thr=256.0, nokv=False, split_reduce=True, wopf=-1, share=True, tlb=False, qbud=6, da=4, wqf='', xf='', wof='', pff='nt', wqn=4, pf2=True, pfs=12, xrot=1, won=2, slp=4, early=True, wb=False, fst='sc1', rfl='', xfill=60, nopk=True, xf2='', kvpf=0, kvs=10, kvd=4, kv0=2, kve=26, kvf='', apf=0, apm=7, aps=2, ap0=8, apfl='', fuse=True, fine=False, bpf=True, own=False, dv=0, tls=-1)

REG = 34816
XB = 4 * REG
K1O, V1O, K0O, V0O = 0, 8704, 16896, 25600
KVD = 16896
RINGO = 18432
STAMP_OFF = 64 << 20
FLAG_OFF = 48 << 20
PCU = 108 * 1024
PART = 8 * PCU

sW = 3
SX, SWQ, SK, SV, SP = 4, 8, 12, 16, 20
SWO, SOUT = 4, 8
sBR, sJJ, sB, sH = 24, 25, 27, 28
sCI = 29
sRET = 52
sWQ0, sX0 = 32, 33
sT0, sT1, sT2, sT3 = 34, 35, 36, 37
sRG = 38
sLX = 39
sCNT = 40
sWC, sXC = 41, 42
sCX = 43
sTO, sTO2 = 44, 45
sTHR = 46
sSC = 84
sKD, sKR = 50, 51
sG = 95
sRW, sR3 = 26, 47
sKVB = 50
sKL, sVL = 26, 47
sST = [30, 54, 56, 58, 60, 62, 84, 86, 88, 90, 92, 48]
sWS = 96
sDBG = 98
vWoX, vLane = 3, 7
vKd, vVd, vKr, vVr = 8, 9, 10, 12
vS, vNM, vP, vE, vL, vPS, vT, vQ = 16, 64, 112, 136, 144, 147, 148, 160
vWd, vXd, vWr, vXr = 40, 44, 20, 24
vQA = 64
aO, aK, aV = 0, 192, 224
aWf, aXf = 192, 224

def srd(n): return f"s[{n}:{n+3}]"
def vr(n, c): return f"v[{n}:{n+c-1}]"
def ar(n, c): return f"a[{n}:{n+c-1}]"

class VM:
    def __init__(self): self.ops = []; self.ctx = None
    def add(self, tag): self.ops.append(tag)
    def need(self, tag):
        idx = max(i for i, t in enumerate(self.ops) if t == tag)
        return len(self.ops) - 1 - idx

def emit(A, vm, items):
    for x in items:
        if isinstance(x, str): A(x)
        elif x[0] == "vm":
            vm.add(x[1]); A(x[2])
            if x[2].endswith("lds"): vm.ctx = None
        elif x[0] == "dma":
            if vm.ctx != x[1]:
                for y in x[2]: A(y)
                vm.ctx = x[1]
            vm.add(x[3]); A(x[4])
        elif x[0] == "wait":
            n = min(vm.need(t) for t in x[1])
            assert n <= 63
            A(f"s_waitcnt vmcnt({n}) {x[2]}".strip())

def interleave(A, mfmas, gaps, vm=None):
    emit(A, vm, gaps.get(-1, []))
    for i, m in enumerate(mfmas):
        emit(A, vm, gaps.get(("pre", i), []))
        A(m)
        emit(A, vm, gaps.get(i, []))

def stamp(A, idx):
    if CFG["stamps"]:
        A(f"{'s_memtime' if CFG.get('cyc') else 's_memrealtime'} s[{sST[idx]}:{sST[idx]+1}]")

def stamps_out(A, n, add=0):
    if not CFG["stamps"]: return
    A("s_waitcnt lgkmcnt(0)")
    A(f"s_lshl_b32 s{sT0}, s2, 2")
    A(f"s_add_u32 s{sT0}, s{sT0}, s{sW}")
    A(f"s_lshl_b32 s{sT0}, s{sT0}, 6")
    A(f"s_add_u32 s{sT0}, s{sT0}, {STAMP_OFF + add * 64}")
    A(f"v_mov_b32 v1, s{sT0}")
    for i in range(n):
        A(f"v_mov_b32 v2, s{sST[i]}")
        A(f"global_store_dword v1, v2, s[{sWS}:{sWS+1}] offset:{4*i}")

def k_piece(p, slot, tag=None, shared=False):
    base = (K0O if slot == 0 else K1O + (REG if shared else 0)) + 1088 * p - 1024 * (p % 4)
    so = sTO if (p < 4 and not shared) else sTO2
    ld = f"buffer_load_dwordx4 v{vKd}, {srd(SK)}, s{so} offen offset:{1024*(p%4)} nt lds"
    return [f"s_add_u32 m0, s{sKL if shared else sRG}, {base}", "s_nop 0", ("vm", tag, ld) if tag else ld]
def v_piece(p, slot, tag=None, force_m0=False, shared=False):
    so = sTO if (p < 4 and not shared) else sTO2
    r = []
    if p % 4 == 0 or force_m0:
        base = (V0O if slot == 0 else V1O + (REG if shared else 0)) + 4096 * (p // 4)
        r += [f"s_add_u32 m0, s{sVL if shared else sRG}, {base}", "s_nop 0"]
    ld = f"buffer_load_dwordx4 v{vVd}, {srd(SV)}, s{so} offen offset:{1024*(p%4)} nt lds"
    r.append(("vm", tag, ld) if tag else ld)
    return r
def tile_advance(shared=False):
    return [f"s_add_u32 s{sTO}, s{sTO}, 8192", f"s_and_b32 s{sTO}, s{sTO}, 0x3ffff",
            f"s_add_u32 s{sTO2}, s{sTO}, s{sCX}" if shared else f"s_add_u32 s{sTO2}, s{sTO}, 4096"]

def decode(A):
    A(f"""
    v_lshrrev_b32 v1, 6, v0
    v_and_b32 v{vLane}, 63, v0
    v_readfirstlane_b32 s{sW}, v1
    s_and_b32 s{sJJ}, s2, 7
    s_lshr_b32 s{sT1}, s2, 3
    s_and_b32 s{sBR}, s{sT1}, 1
    s_lshr_b32 s{sB}, s{sT1}, 1
    """)

def part_srd(A):
    A(f"""
    s_lshl_b32 s{sT0}, s{sBR}, 4
    s_add_u32 s{sT0}, s{sT0}, s{sB}
    s_mul_i32 s{sT0}, s{sT0}, {PART}
    s_add_u32 s{SP}, s{sWS}, s{sT0}
    s_addc_u32 s{SP+1}, s{sWS+1}, 0
    s_mov_b32 s{SP+2}, {0 if CFG.get('nost') else PART}
    s_mov_b32 s{SP+3}, 0x20000
    """)

def gen_main(A, name):
    KVN = 0 if CFG['nokv'] else 0x40000
    kernel_begin(A, name)
    A("s_cmp_ge_u32 s2, 256")
    A("s_cbranch_scc1 L_end")
    stamp(A, 0)
    A(f"""
    s_load_dwordx16 s[64:79], s[0:1], 0
    s_load_dwordx4 s[80:83], s[0:1], 64
    s_load_dwordx2 s[{sWS}:{sWS+1}], s[0:1], 96
    s_load_dwordx2 s[{sDBG}:{sDBG+1}], s[0:1], 88
    s_load_dwordx2 s[100:101], s[0:1], 80
    """)
    decode(A)
    A(f"""
    s_lshl_b32 s{sG}, s{sBR}, 4
    s_and_b32 s{sG}, s{sG}, {16 if CFG['own'] else 0}
    s_add_u32 s{sG}, s{sG}, s{sB}
    s_lshl_b32 s{sH}, s{sJJ}, 2
    s_add_u32 s{sH}, s{sH}, s{sW}
    s_mul_i32 s{sCI}, s{sB}, {8 if CFG['fine'] else 9}
    s_lshr_b32 s{sCI}, s{sCI}, 4
    s_and_b32 s{sKR}, s{sB}, {1 if CFG['fine'] else 0}
    s_mul_i32 s{sT2}, s{sJJ}, {CFG['xrot']}
    s_add_u32 s{sCI}, s{sCI}, s{sT2}
    s_sub_u32 s{sT2}, s{sCI}, 9
    s_cmp_ge_u32 s{sCI}, 9
    s_cselect_b32 s{sCI}, s{sT2}, s{sCI}
    s_mov_b32 s{sCX}, s{sCI}
    s_lshl_b32 s{sWQ0}, s{sH}, 8
    s_lshl_b32 s{sT2}, s{sKR}, 18
    s_add_u32 s{sWQ0}, s{sWQ0}, s{sT2}
    s_mul_i32 s{sX0}, s{sB}, 96
    s_mul_i32 s{sT2}, s{sW}, 24
    s_add_u32 s{sX0}, s{sX0}, s{sT2}
    s_mul_i32 s{sX0}, s{sX0}, 1152
    s_mul_i32 s{sRG}, s{sW}, {REG}
    s_mul_i32 s{sLX}, s{sW}, 3072
    s_add_u32 s{sLX}, s{sLX}, {XB}
    v_lshrrev_b32 v1, 4, v{vLane}         ; t = l/16
    v_and_b32 v2, 15, v{vLane}
    v_lshlrev_b32 v33, 2, v1
    v_xor_b32 v33, v2, v33
    v_lshlrev_b32 v33, 4, v33
    v_lshl_add_u32 v{vWd}, v1, 13, v33
    v_add_u32 v{vWd+1}, {32768-1024}, v{vWd}
    v_add_u32 v{vWd+2}, {2*(32768-1024)}, v{vWd}
    v_add_u32 v{vWd+3}, {3*(32768-1024)}, v{vWd}
    v_lshl_add_u32 v{vVd}, v1, 8, v33
    v_xor_b32 v33, v2, v1
    v_lshlrev_b32 v33, 4, v33
    v_lshl_add_u32 v{vKd}, v1, 8, v33
    ; x dma: row = 24w + 8p + t ; f = (row>>1)&7 = (4*(w+p) + (t>>1)) & 7
    v_lshrrev_b32 v1, 3, v{vLane}         ; t = l/8
    v_and_b32 v2, 7, v{vLane}
    v_lshrrev_b32 v33, 1, v1
    v_xor_b32 v34, v2, v33
    s_and_b32 s{sT0}, s{sW}, 1
    s_lshl_b32 s{sT0}, s{sT0}, 2
    v_xor_b32 v34, s{sT0}, v34
    v_lshlrev_b32 v34, 4, v34
    v_mul_u32_u24 v1, 1152, v1
    v_add_u32 v{vXd}, v1, v34
    v_add_u32 v{vXd+2}, {2*(8*1152-1024)}, v{vXd}
    v_xor_b32 v34, 64, v34
    v_add_u32 v{vXd+1}, v1, v34
    v_add_u32 v{vXd+1}, {8*1152-1024}, v{vXd+1}
    ; wo dma: t*1152 + ((l&7) ^ (((t>>1)&1)<<2))*16
    v_and_b32 v33, 1, v33
    v_lshlrev_b32 v33, 2, v33
    v_xor_b32 v2, v2, v33
    v_lshl_add_u32 v47, v2, 4, v1
    {"s_memrealtime s[90:91]" if CFG.get("sst") else ""}
    s_waitcnt lgkmcnt(0)
    {"s_memrealtime s[88:89]" if CFG.get("sst") else ""}
    s_cmp_eq_u32 s{sBR}, 0
    s_cselect_b32 s{SX}, s64, s74
    s_cselect_b32 s{SX+1}, s65, s75
    s_cselect_b32 s{SWQ}, s70, s80
    s_cselect_b32 s{SWQ+1}, s71, s81
    s_cselect_b32 s{SK}, s66, s76
    s_cselect_b32 s{SK+1}, s67, s77
    s_cselect_b32 s{SV}, s68, s78
    s_cselect_b32 s{SV+1}, s69, s79
    s_mov_b32 s{SX+2}, {0 if CFG.get('nox') else 16*110592}
    s_mov_b32 s{SX+3}, 0x20000
    s_mov_b32 s{SWQ+2}, {0 if CFG.get('nowq') else 576*8192}
    s_mov_b32 s{SWQ+3}, 0x20000
    """)
    vm = VM()
    R = 8
    def wq_gran(n):
        G = []
        for p in range(4):
            g = []
            if n % 4 == 0 and p == 0:
                g += [f"s_lshl_b32 s{sWC}, s{sCI}, 19", f"s_add_u32 s{sWC}, s{sWC}, s{sWQ0}",
                      f"s_add_u32 s{sCI}, s{sCI}, 1", f"s_cmp_eq_u32 s{sCI}, 9", f"s_cselect_b32 s{sCI}, 0, s{sCI}"]
            setup = [f"s_add_u32 m0, s{sRG}, {(n % R) * 4096}", f"s_xor_b32 s{sT2}, s{sWC}, {(n % 4) * 16 * 8192}"]
            g.append(("dma", f"w{n}", setup, f"w{n}",
                      f"buffer_load_dwordx4 v{vWd+p}, {srd(SWQ)}, s{sT2} offen offset:{1024*p} {CFG['wqf'] if n < CFG['wqn'] else ''} lds"))
            G.append(g)
        return G
    def x_chunk(c):
        G = []
        for p in range(3):
            g = []
            if p == 0:
                g += [f"s_lshl_b32 s{sXC}, s{sCX}, 7", f"s_add_u32 s{sXC}, s{sXC}, s{sX0}",
                      f"s_add_u32 s{sCX}, s{sCX}, 1", f"s_cmp_eq_u32 s{sCX}, 9", f"s_cselect_b32 s{sCX}, 0, s{sCX}"]
            setup = [f"s_add_u32 m0, s{sLX}, {(c % 2) * 12288}", "s_nop 0"]
            g.append(("dma", f"x{c}", setup, f"x{c}",
                      f"buffer_load_dwordx4 v{vXd+p}, {srd(SX)}, s{sXC} offen offset:{1024*p} {CFG['xf'] if c == 0 else CFG['xf2']} lds"))
            G.append(g)
        return G
    if CFG["wopf"] == -3:
        A(f"""
        s_cmp_lg_u32 s{sBR}, 0
        s_cbranch_scc1 L_nopf0
        s_lshl_b32 s{sT0}, s{sB}, 2
        s_add_u32 s{sT0}, s{sT0}, s{sW}
        s_mul_i32 s{sT0}, s{sT0}, {72*128}
        s_mul_i32 s{sT1}, s{sJJ}, {512*1152}
        s_add_u32 s{sT0}, s{sT0}, s{sT1}
        v_lshlrev_b32 v40, 7, v{vLane}
        v_add_u32 v40, s{sT0}, v40
        global_load_dword v41, v40, s[72:73] {CFG['pff']}
        global_load_dword v42, v40, s[72:73] offset:1024 {CFG['pff']}
        global_load_dword v43, v40, s[82:83] {CFG['pff']}
        global_load_dword v44, v40, s[82:83] offset:1024 {CFG['pff']}
        L_nopf0:
        """)
    if CFG["apf"]:
        A(f"""
        s_cmp_lg_u32 s{sBR}, 0
        s_cbranch_scc1 L_noapf
        s_lshl_b32 s{sT1}, s{sB}, 5
        s_add_u32 s{sT1}, s{sT1}, s{sH}
        s_lshl_b32 s{sT0}, s{sT1}, 18
        s_add_u32 s{SP}, s76, s{sT0}
        s_addc_u32 s{SP+1}, s77, 0
        s_mov_b32 s{SP+2}, 0x40000
        s_mov_b32 s{SP+3}, 0x20000
        s_add_u32 s52, s78, s{sT0}
        s_addc_u32 s53, s79, 0
        s_mov_b32 s54, 0x40000
        s_mov_b32 s55, 0x20000
        s_and_b32 s{sT0}, s{sB}, {CFG['apm']}
        s_mul_i32 s{sT0}, s{sT0}, {CFG['aps']}
        s_add_u32 s{sT1}, s{sT1}, s{sT0}
        s_add_u32 s{sT1}, s{sT1}, {CFG['ap0']}
        v_lshlrev_b32 v48, 4, v{vLane}
        s_mov_b32 s{sCNT}, {CFG['apf']}
        L_apf:
        s_and_b32 s{sT0}, s{sT1}, 31
        s_lshl_b32 s{sT0}, s{sT0}, 13
        s_add_u32 s{sT3}, s{sT0}, 4096
        """)
        for i in range(16):
            sr = srd(SP) if i < 8 else "s[52:55]"
            A(f"buffer_load_dwordx4 {vr(64+4*i,4)}, v48, {sr}, s{sT0 if i % 8 < 4 else sT3} offen offset:{(i%4)*1024} {CFG['apfl']}")
            A(f"s_waitcnt vmcnt(12)")
        A(f"""
        s_add_u32 s{sT1}, s{sT1}, 1
        s_sub_u32 s{sCNT}, s{sCNT}, 1
        s_cmp_lg_u32 s{sCNT}, 0
        s_cbranch_scc1 L_apf
        L_noapf:
        """)
    for g in x_chunk(0) + wq_gran(0) + wq_gran(1): emit(A, vm, g)
    A(f"""
    s_lshl_b32 s{sT1}, s{sB}, 5
    s_add_u32 s{sT1}, s{sT1}, s{sH}
    s_lshr_b32 s{sT0}, s{sT1}, 1
    s_cmp_eq_u32 s{sBR}, 0
    s_cselect_b32 s{sT0}, s{sT0}, s{sT1}
    s_add_u32 s{sTO}, s{sT0}, s{sB}
    s_and_b32 s{sTO}, s{sTO}, 31
    s_lshl_b32 s{sTO}, s{sTO}, 13
    s_add_u32 s{sTO2}, s{sTO}, 4096
    s_lshl_b32 s{sT0}, s{sT0}, 18
    s_add_u32 s{SK}, s{SK}, s{sT0}
    s_addc_u32 s{SK+1}, s{SK+1}, 0
    s_add_u32 s{SV}, s{SV}, s{sT0}
    s_addc_u32 s{SV+1}, s{SV+1}, 0
    s_mov_b32 s{SK+2}, {KVN}
    s_mov_b32 s{SK+3}, 0x20000
    s_mov_b32 s{SV+2}, {KVN}
    s_mov_b32 s{SV+3}, 0x20000
    """)
    if CFG["share"]:
        A(f"""
        s_and_b32 s{sT0}, s{sW}, 1
        s_lshl_b32 s{sT1}, s{sBR}, 1
        s_or_b32 s{sT0}, s{sT0}, s{sT1}
        s_cmp_eq_u32 s{sT0}, 0
        s_cselect_b32 s{sCNT}, 0, s{SK+2}
        s_cmp_eq_u32 s{sT0}, 1
        s_cselect_b32 s{SK+2}, 0, s{SK+2}
        s_mov_b32 s{SV+2}, s{SK+2}
        """)
    part_srd(A)
    if CFG["tlb"]:
        A(f"""
        s_cmp_eq_u32 s{sBR}, 0
        s_cselect_b32 s72, s72, s82
        s_cselect_b32 s73, s73, s83
        s_mul_i32 s{sT0}, s{sH}, {128*1152}
        s_load_dword s64, s[72:73], s{sT0}
        s_load_dword s65, s[{SK}:{SK+1}], 0
        s_load_dword s66, s[{SV}:{SV+1}], 0
        s_mul_i32 s{sT1}, s{sW}, {(PART - 4096) // 3}
        s_load_dword s67, s[{SP}:{SP+1}], s{sT1}
        s_mul_i32 s{sT3}, s{sB}, {96*2304}
        s_load_dword s68, s[100:101], s{sT3}
        s_load_dword s69, s[{sDBG}:{sDBG+1}], 0
        s_mov_b32 s82, s72
        s_mov_b32 s83, s73
        """)
    A(f"""
    s_mov_b32 s{sTHR}, {f2u(CFG['thr'])}
    s_mov_b32 s{sSC}, {f2u(LOG2E * 128 ** -0.5)}
    s_mov_b32 s{sSC+1}, {f2u(LOG2E * 128 ** -0.5)}
    v_bfe_u32 v1, v{vLane}, 4, 1          ; dsub
    v_lshrrev_b32 v2, 5, v{vLane}         ; h
    v_bfe_u32 v3, v{vLane}, 2, 2          ; r
    v_and_b32 v4, 3, v{vLane}             ; c
    v_lshl_add_u32 v30, v2, 2, v3
    v_lshlrev_b32 v30, 8, v30
    v_lshl_add_u32 v30, v1, 5, v30
    v_lshl_add_u32 v30, v4, 3, v30
    s_and_b32 s{sT0}, s{sW}, 2
    s_cmp_eq_u32 s{sBR}, {0 if CFG['share'] else 7}
    s_cselect_b32 s{sT0}, s{sT0}, s{sW}
    s_mul_i32 s{sKD}, s{sT0}, {REG}
    s_add_u32 s{sT0}, s{sKD}, {V1O}
    v_add_u32 v30, s{sT0}, v30
    """)
    for db in range(4):
        A(f"v_xor_b32 v31, {db}, v3")
        A(f"v_lshl_add_u32 v{vVr+db}, v31, 6, v30")
    A(f"""
    v_lshl_add_u32 v30, v2, 3, v3
    v_lshlrev_b32 v30, 8, v30
    v_lshl_add_u32 v30, v1, 5, v30
    v_and_b32 v31, 1, v4
    v_lshl_add_u32 v30, v31, 4, v30
    v_lshrrev_b32 v31, 1, v4
    v_lshl_add_u32 v30, v31, 3, v30
    """)
    for db in range(4):
        A(f"v_xor_b32 v31, {db}, v3")
        A(f"v_lshl_add_u32 v31, v31, 6, v30")
        A(f"v_add_u32 v{vWr+db}, s{sRG}, v31")
    A(f"""
    v_and_b32 v1, 31, v{vLane}
    v_bfe_u32 v3, v{vLane}, 1, 3
    v_xor_b32 v3, v3, v2
    s_lshl_b32 s{sT0}, s{sKR}, 2
    v_xor_b32 v3, s{sT0}, v3
    v_lshlrev_b32 v30, 7, v1
    v_add_u32 v30, {XB}, v30
    """)
    for s in range(4):
        A(f"v_xor_b32 v31, {2*s}, v3")
        A(f"v_lshl_add_u32 v{vXr+s}, v31, 4, v30")
    A(f"""
    v_lshrrev_b32 v3, 2, v1
    v_mul_u32_u24 v3, 1088, v3
    v_lshl_add_u32 v3, v4, 8, v3
    v_add_u32 v3, s{sKD}, v3
    v_xor_b32 v30, v2, v4
    v_lshl_add_u32 v{vKr}, v30, 4, v3
    v_xor_b32 v30, 2, v30
    v_lshl_add_u32 v{vKr+1}, v30, 4, v3
    """)
    A(f"s_and_b32 s{sT0}, s{sB}, 1")
    A(f"s_lshl_b32 s{sT0}, s{sT0}, 7")
    A(f"v_add_u32 v47, s{sT0}, v47")
    for p in range(4): A(f"v_add_u32 v{vWoX+p}, {p*(8*1152-1024)}, v47")
    for g in wq_gran(2): emit(A, vm, g)
    if CFG["fuse"]:
        A(f"""
        s_or_b32 s{sT0}, s{sW if CFG['own'] else sBR}, s{sW}
        s_cmp_lg_u32 s{sT0}, 0
        s_cbranch_scc1 L_noinit
        s_lshl_b32 s{sT0}, s{sG}, 3
        s_add_u32 s{sT0}, s{sT0}, s{sJJ}
        s_lshl_b32 s{sT0}, s{sT0}, 8
        s_add_u32 s{sT0}, s{sT0}, {FLAG_OFF}
        v_lshlrev_b32 v48, 2, v{vLane}
        v_add_u32 v48, s{sT0}, v48
        v_mov_b32 v49, 0
        global_store_dword v48, v49, s[{sWS}:{sWS+1}] sc1
        L_noinit:
        """)
    def qp_reads(n):
        fb = n & 1
        L = []
        for qb in range(3):
            L.append(f"ds_read_b128 {ar(aXf + fb*12 + qb*4, 4)}, v{vXr + n % 4} offset:{((n // 4) % 2) * 12288 + qb*4096}")
        for db in range(4):
            for u in range(2):
                L.append(f"ds_read_b64_tr_b16 {ar(aWf + fb*16 + db*4 + u*2, 2)}, v{vWr+db} offset:{(n % R) * 4096 + u * 1024}")
        return L
    if CFG.get("sst"): stamp(A, 7)
    emit(A, vm, [("wait", ["x0", "w0"], ""), "s_barrier"])
    stamp(A, 11)
    for r in qp_reads(0): A(r)
    wqq = []
    for n in range(3, 36):
        for g in wq_gran(n): wqq.append((max(0, n - R), g))
    for (kind, slot) in (("k", 0), ("v", 0), ("k", 1), ("v", 1)):
        for p in range(8):
            if kind == "k":
                lo = (K0O if slot == 0 else K1O) + 1088 * p
                g = k_piece(p, slot, tag=f"K{slot}")
            else:
                lo = (V0O if slot == 0 else V1O) + 1024 * p
                g = v_piece(p, slot, tag=f"V{slot}", force_m0=True)
                if p == 7: g = g + tile_advance()
            slots = [sl for sl in range(R) if lo < (sl + 1) * 4096 and lo + 1024 > sl * 4096]
            avail = max([max(n for n in range(36) if n % R == sl) for sl in slots] + [0])
            if CFG["share"] and kind == "v" and p == 7:
                if slot == 0: g = g + [f"s_mov_b32 s{SK+2}, s{sCNT}", f"s_mov_b32 s{SV+2}, s{sCNT}"]
                else: g = g + [f"s_mov_b32 s{SK+2}, {KVN}", f"s_mov_b32 s{SV+2}, {KVN}"]
            wqq.append((avail, g))
    zero_o = [f"v_accvgpr_write_b32 a{aO+i}, 0" for i in range(192)]
    for n in range(36):
        fb = n & 1
        mf = []
        for db in range(4):
            for qb in range(3):
                T = qb * 4 + db
                c = vr(vQA+16*T, 16) if n > 0 else "0"
                mf.append(f"v_mfma_f32_32x32x16_bf16 {vr(vQA+16*T,16)}, {ar(aWf+fb*16+db*4,4)}, {ar(aXf+fb*12+qb*4,4)}, {c}")
        gaps = {}
        pre = []
        dma = []
        if n < 35:
            tags = [f"w{n+1}"]
            if n % 4 == 3: tags.append(f"x{n//4+1}")
            pre.append(("wait", tags, "lgkmcnt(0)"))
            if n % 4 == 3:
                pre.append("s_barrier")
                if n // 4 + 2 < 9: dma += x_chunk(n // 4 + 2)
            for i, r in enumerate(qp_reads(n + 1)): gaps.setdefault(i, []).append(r)
        else:
            pre += ["s_waitcnt lgkmcnt(0)"]
        gaps[-1] = pre
        if n == 0:
            dma += [wqq.pop(0)[1] for _ in range(4)] + x_chunk(1)
        while wqq and wqq[0][0] <= n and len(dma) < CFG["qbud"]:
            dma.append(wqq.pop(0)[1])
        for i, g in enumerate(dma):
            gaps.setdefault((i * 12) // len(dma), []).extend(g)
        if CFG["wopf"] == -4 and n == CFG["pfs"]:
            gaps.setdefault(11, []).extend([
                f"s_cmp_eq_u32 s{sBR}, 0", f"s_cselect_b32 s72, s72, s82", f"s_cselect_b32 s73, s73, s83",
                f"s_lshl_b32 s{sT0}, s{sB}, 2", f"s_add_u32 s{sT0}, s{sT0}, s{sW}", f"s_mul_i32 s{sT0}, s{sT0}, {72*128}",
                f"s_mul_i32 s{sT1}, s{sJJ}, {512*1152}", f"s_add_u32 s{sT0}, s{sT0}, s{sT1}", f"v_lshlrev_b32 v40, 7, v{vLane}",
                f"v_add_u32 v40, s{sT0}, v40",
                ("vm", "pf", f"global_load_dword v41, v40, s[72:73] nt"),
                "s_mov_b64 exec, 0xff",
                f"v_add_u32 v45, 8192, v40",
                ("vm", "pf", f"global_load_dword v42, v45, s[72:73] nt"),
                "s_mov_b64 exec, -1"])
        if CFG["wopf"] == -4 and n == CFG["pfs"] + 5:
            gaps.setdefault(11, []).extend([
                ("vm", "pf", f"global_load_dword v43, v40, s[72:73] sc1"),
                "s_mov_b64 exec, 0xff",
                ("vm", "pf", f"global_load_dword v44, v45, s[72:73] sc1"),
                "s_mov_b64 exec, -1"])
        if CFG["kvpf"] and n >= CFG["kvs"] and n < CFG["kve"]:
            tot = 4 * CFG["kvpf"]
            span = CFG["kve"] - CFG["kvs"]
            lo, hi = (n - CFG["kvs"]) * tot // span, (n + 1 - CFG["kvs"]) * tot // span
            for k, i in enumerate(range(lo, hi)):
                g = []
                if i == 0: g.append(f"v_lshlrev_b32 v48, 6, v{vLane}")
                g += [f"s_add_u32 s{sT0}, s{sTO}, {(CFG['kv0'] + i // 4) * 8192 + (i % 2) * 4096}", f"s_and_b32 s{sT0}, s{sT0}, 0x3ffff",
                      ("vm", "pf", f"buffer_load_dword v{49 + i % 8}, v48, {srd(SK if i % 4 < 2 else SV)}, s{sT0} offen {CFG['kvf']}")]
                gaps.setdefault(11 - 4 * k, []).extend(g)
        if n == CFG["tls"]:
            gaps.setdefault(5, []).extend([f"v_mov_b32 v50, s{sTO}",
                ("vm", "tl", f"global_load_dword v51, v50, s[{SK}:{SK+1}] nt"), ("vm", "tl", f"global_load_dword v52, v50, s[{SV}:{SV+1}] nt")])
        if n == 6 and CFG["fuse"]:
            gaps.setdefault(11, []).extend([f"s_or_b32 s{sT0}, s{sW if CFG['own'] else sBR}, s{sW}", f"s_cmp_lg_u32 s{sT0}, 0", "s_cbranch_scc1 L_noinit2",
                "s_waitcnt vmcnt(0)",
                f"s_lshl_b32 s{sT0}, s{sG}, 3", f"v_mov_b32 v48, s{sT0}", "v_mov_b32 v49, 1", "s_mov_b64 exec, 1",
                f"global_atomic_add v48, v49, s[{sDBG}:{sDBG+1}] sc1", "s_mov_b64 exec, -1", "L_noinit2:"])
        if n >= 8 and zero_o:
            for i in range(12):
                if zero_o: gaps.setdefault(i, []).append(zero_o.pop(0))
        interleave(A, mf, gaps, vm)
        if n in (3, 17) and not (CFG.get("midst") or CFG.get("gst") or CFG.get("sst")): stamp(A, 8 if n == 3 else 9)
    assert not zero_o
    kvq = [g for _, g in wqq]
    stamp(A, 1)
    def k_read(s, slot, sh=False):
        return f"ds_read_b128 {ar(aK+4*s,4)}, v{vKr+(s&1)} offset:{(KVD if slot==0 else (REG if sh else 0)) + 64*(s>>1)}"
    def v_read(f, u, slot, sh=False):
        ks, db = f // 4, f % 4
        return f"ds_read_b64_tr_b16 {ar(aV+(db*2+ks)*4+2*u,2)}, v{vVr+db} offset:{(KVD if slot==0 else (REG if sh else 0)) + (16*ks+8*u)*256}"
    A(f"""
    s_cmp_eq_u32 s{sBR}, 0
    s_cselect_b32 s{SWO}, s72, s82
    s_cselect_b32 s{SWO+1}, s73, s83
    s_mov_b32 s{SWO+2}, {0 if CFG.get('nowo') else 4096*1152}
    s_mov_b32 s{SWO+3}, 0x20000
    s_nop 7
    """)
    for j in range(95, -1, -1):
        s0 = vQA + 2 * j
        A(f"v_pk_mul_f32 {vr(s0,2)}, {vr(s0,2)}, s[{sSC}:{sSC+1}]")
        if j < 95:
            A(f"v_cvt_pk_bf16_f32 v{vQ+j+1}, v{vQA+2*j+2}, v{vQA+2*j+3}")
        if j % 4 == 0 and kvq: emit(A, vm, kvq.pop(0))
        if j == 8:
            assert not kvq
            emit(A, vm, [("wait", ["K0"], "")] + (["s_barrier"] if CFG["share"] else []))
            for s in range(8): A(k_read(s, 0))
    A(f"v_cvt_pk_bf16_f32 v{vQ}, v{vQA}, v{vQA+1}")
    for i in range(32): A(f"v_accvgpr_write_b32 a{aV+i}, 0")
    for i in range(8): A(f"v_mov_b32 v{vP+16+i}, 0")
    for i in range(3): A(f"v_mov_b32 v{vL+i}, 0")
    A("s_waitcnt lgkmcnt(0)")
    def qk(qb, s, cinit=None):
        c = vr(vS+16*qb, 16) if s > 0 else (cinit if cinit is not None else vr(vNM+16*qb, 16))
        return f"v_mfma_f32_32x32x16_bf16 {vr(vS+16*qb,16)}, {ar(aK+4*s,4)}, {vr(vQ+32*qb+4*s,4)}, {c}"
    def pv(qb, m):
        ks, db = m // 4, m % 4
        o = ar(aO + (qb*4+db)*16, 16)
        return f"v_mfma_f32_32x32x16_bf16 {o}, {ar(aV+(db*2+ks)*4,4)}, {vr(vP+8*qb+4*ks,4)}, {o}"
    def rowmax(qb, dst, tmp):
        s = vS + 16 * qb
        L = [f"v_max3_f32 v{dst}, v{s}, v{s+1}, v{s+2}"]
        for i in range(3, 15, 2):
            L.append(f"v_max3_f32 v{dst}, v{dst}, v{s+i}, v{s+i+1}")
        L.append(f"v_max_f32 v{dst}, v{dst}, v{s+15}")
        L += [f"v_mov_b32 v{tmp}, v{dst}", "s_nop 1", f"v_permlane32_swap_b32 v{dst}, v{tmp}", "s_nop 1",
              f"v_max_f32 v{dst}, v{dst}, v{tmp}"]
        return L
    def init_ops(qb):
        L = rowmax(qb, vT, vT+1)
        L += [f"v_sub_f32 v{vNM+16*qb+i}, 0, v{vT}" for i in range(16)]
        if qb == 0: L += [f"v_sub_f32 v{vS+i}, v{vS+i}, v{vT}" for i in range(16)]
        return L
    mf = [qk(qb, s, cinit="0") for qb in range(3) for s in range(8)]
    gaps = {}
    gaps[8] = ["s_nop 7"]; gaps[9] = ["s_nop 1"]
    ops = init_ops(0)
    for i, o in enumerate(ops): gaps.setdefault(10 + i * 8 // len(ops), []).append(o)
    ops = init_ops(1)
    for i, o in enumerate(ops): gaps.setdefault(19 + i * 5 // len(ops), []).append(o)
    interleave(A, mf, gaps)
    A("s_nop 7")
    for o in init_ops(2): A(o)
    stamp(A, 2)
    sites = []
    def softmax_ops(qb, site):
        s = vS + 16 * qb
        ops = []
        for i in range(16):
            ops.append((8, f"v_exp_f32 v{vE+i%8}, v{s+i}"))
            if i == 2: ops.append((4, f"v_add_f32 v{vPS}, v{vE}, v{vE+1}"))
            elif i > 2: ops.append((4, f"v_add_f32 v{vPS}, v{vPS}, v{vE+(i-1)%8}"))
            if i >= 2 and i % 2 == 0:
                ops.append((4, f"v_cvt_pk_bf16_f32 v{vP+8*qb+(i-2)//2}, v{vE+(i-2)%8}, v{vE+(i-1)%8}"))
        ops.append((4, f"v_add_f32 v{vPS}, v{vPS}, v{vE+7}"))
        ops.append((4, f"v_cvt_pk_bf16_f32 v{vP+8*qb+7}, v{vE+6}, v{vE+7}"))
        tail = [f"v_cmp_nge_f32 vcc, s{sTHR}, v{vPS}", f"s_cbranch_vccnz L_tramp_{site}", f"L_back_{site}:",
                f"v_add_f32 v{vL+qb}, v{vL+qb}, v{vPS}"]
        sites.append((site, qb))
        return ops, tail
    def double_phase(mf, qb_sm, site, extra):
        ops, tail = softmax_ops(qb_sm, site)
        gaps = {k: list(v) for k, v in extra.items()}
        total = sum(c for c, _ in ops)
        g0, g1 = 2, len(mf) - 1
        acc = 0
        for c, o in ops:
            g = g0 + min(g1 - g0 - 1, int(acc * (g1 - g0) / total))
            gaps.setdefault(g, []).append(o)
            acc += c
        gaps.setdefault(len(mf) - 1, []).extend(tail)
        n = 3
        for k in (-1, ("pre", 0), 0, ("pre", 1), 1, ("pre", 2)):
            n += len([x for x in gaps.get(k, []) if not x.endswith(":")])
        n += 3
        for x in gaps[2]:
            if x.startswith("v_exp"): break
            n += 1
        if n < 12:
            gaps.setdefault(1, []).append(f"s_nop {12 - n - 1}")
        interleave(A, mf, gaps)
    def wox_piece(p):
        r = []
        if p % 4 == 0:
            g = p // 4
            r += [f"s_add_u32 m0, s{sRG}, {RINGO + 1024 * p}", f"s_add_u32 s{sT2}, s{sX0 if g % 2 == 0 else sWC}, {32 * 1152 * (g // 2)}"]
        return r + [f"buffer_load_dwordx4 v{vWoX + p % 4}, {srd(SWO)}, s{sT2} offen offset:{1024 * (p % 4)} {CFG['wof']} lds"]
    TW = list(range(64, 76))
    TL = list(range(76, 84)) + [8, 9, 10, 11]
    def tables():
        L = [f"s_lshr_b32 s{sCI}, s{sB}, 1", f"s_mul_i32 s{sCI}, s{sCI}, 3", f"s_lshr_b32 s{sCI}, s{sCI}, 1",
             f"s_lshl_b32 s{sXC}, s{sW}, 2", f"s_add_u32 s{sXC}, s{sXC}, 4"]
        G = [L]
        for i in range(12):
            G.append([f"s_add_u32 s{sT1}, s{sCI}, s{sXC}", f"s_and_b32 s{sT1}, s{sT1}, 15",
                      f"s_add_u32 s{sCI}, s{sCI}, 1", f"s_cmp_eq_u32 s{sCI}, 12", f"s_cselect_b32 s{sCI}, 0, s{sCI}"])
            G.append([f"s_mul_i32 s{TW[i]}, s{sT1}, {32*1152}", f"s_add_u32 s{TW[i]}, s{TW[i]}, s{sWQ0}",
                      f"s_lshr_b32 s{sT0}, s{sT1}, 2", f"s_and_b32 s{sT1}, s{sT1}, 3", f"s_mul_i32 s{TL[i]}, s{sT0}, {REG}"])
            G.append([f"s_mul_i32 s{sT3}, s{sT1}, 6144", f"s_add_u32 s{TL[i]}, s{TL[i]}, s{sT3}",
                      f"s_mul_i32 s{sT0}, s{sT0}, 6144", f"s_add_u32 s{sT0}, s{sT0}, {XB}",
                      f"s_cmp_eq_u32 s{sT1}, 3", f"s_cselect_b32 s{TL[i]}, s{sT0}, s{TL[i]}"])
        return G
    def tile(par, mode, tagp, sh):
        ex = [dict(), dict(), dict()]
        def put(gam, instrs): ex[gam // 16].setdefault(gam % 16, []).extend(instrs)
        bar = ["s_barrier"] if sh else []
        ex[0][-1] = ["s_waitcnt vmcnt(%d)" % (0 if mode == "last" else (8 if sh else 16))] + bar
        for k in range(16):
            put(k // 2 if k < 4 else k - 2, [v_read(k // 2, k % 2, par, sh)])
        ex[1][("pre", 0)] = ["s_waitcnt lgkmcnt(4)"]
        ex[1][("pre", 6)] = ["s_waitcnt lgkmcnt(0)"]
        if mode != "last":
            if sh: n = 8 if mode == "steady" else 4
            else: n = 19 if mode == "steady" else 8
            ex[2][-1] = ["s_waitcnt vmcnt(%d)" % n] + bar
            for s in range(8): put(32 + s // 4, [k_read(s, par ^ 1, sh)])
            ex[2][("pre", 8)] = ["s_waitcnt lgkmcnt(0)"]
        else:
            ex[2][-1] = bar
        if mode == "steady":
            if sh:
                for p in range(4):
                    th = [f"s_waitcnt vmcnt({CFG['da']})"] if CFG["da"] >= 0 else []
                    put(6 * p + 1, th + k_piece(p, par, shared=True))
                    th = [f"s_waitcnt vmcnt({CFG['da'] + CFG['dv']})"] if CFG["da"] >= 0 else []
                    put(34 + 4 * p, th + v_piece(p, par, shared=True))
                put(47, tile_advance(True))
            else:
                for p in range(8):
                    put(3 * p, k_piece(p, par))
                    put(24 + 3 * p, v_piece(p, par))
                put(46, tile_advance())
        if mode == "prelast":
            for i, g in enumerate(tables()): put(i + 3, g)
            if CFG["fuse"]:
                put(44, [f"s_lshl_b32 s{sT0}, s{sG}, 3", f"v_mov_b32 v157, s{sT0}",
                         f"global_load_dword v158, v157, s[{sDBG}:{sDBG+1}] sc1"])
        if mode == "last":
            for p in range(16): put(2 * p, wox_piece(p))
        double_phase([pv(2, m) for m in range(8)] + [qk(1, s) for s in range(8)], 0, f"{tagp}a", ex[0])
        double_phase([pv(0, m) for m in range(8)] + [qk(2, s) for s in range(8)], 1, f"{tagp}b", ex[1])
        double_phase([pv(1, m) for m in range(8)] + ([qk(0, s) for s in range(8)] if mode != "last" else []), 2, f"{tagp}c", ex[2])
    A(f"s_mov_b32 s{sCNT}, 0")
    A(f"""
    s_mul_i32 s{sWQ0}, s{sJJ}, {512*1152}
    s_lshl_b32 s{sT0}, s{sW}, 8
    s_add_u32 s{sWQ0}, s{sWQ0}, s{sT0}
    s_mul_i32 s{sWC}, s{sW}, {128*1152}
    s_add_u32 s{sWC}, s{sWC}, s{sWQ0}
    s_mul_i32 s{sX0}, s{sH}, {128*1152}
    s_add_u32 s{sX0}, s{sX0}, 1024
    s_and_b32 s{sT0}, s{sB}, 1
    s_lshl_b32 s{sT0}, s{sT0}, 7
    s_sub_u32 s{sX0}, s{sX0}, s{sT0}
    """)
    def attn_loop(sh):
        L = "A" if sh else "B"
        A(".p2align 6")
        A(f"L_main{L}:")
        tile(0, "steady", L + "s0", sh)
        tile(1, "steady", L + "s1", sh)
        if CFG["wopf"] >= 0:
            A(f"""
            s_cmp_lg_u32 s{sCNT}, {CFG["wopf"]}
            s_cbranch_scc1 L_nopf{L}
            s_lshl_b32 s{sT0}, s{sB}, 2
            s_add_u32 s{sT0}, s{sT0}, s{sW}
            s_mul_i32 s{sT0}, s{sT0}, {72*128}
            s_mul_i32 s{sT1}, s{sJJ}, {512*1152}
            s_add_u32 s{sT0}, s{sT0}, s{sT1}
            v_lshlrev_b32 v1, 6, v{vLane}
            buffer_load_dword v154, v1, {srd(SWO)}, s{sT0} offen {CFG['pff']}
            s_add_u32 s{sT0}, s{sT0}, 4096
            buffer_load_dword v155, v1, {srd(SWO)}, s{sT0} offen {CFG['pff']}
            buffer_load_dword v156, v1, {srd(SWO)}, s{sT0} offen offset:1024 {CFG['pff']}
            L_nopf{L}:
            """)
            if CFG["pf2"]:
                A(f"""
                s_cmp_lg_u32 s{sCNT}, {CFG["wopf"] + 1}
                s_cbranch_scc1 L_nopf2{L}
                buffer_load_dword v2, v1, {srd(SWO)}, s{sT0} offen sc1
                buffer_load_dword v3, v1, {srd(SWO)}, s{sT0} offen offset:1024 sc1
                L_nopf2{L}:
                """)
        if CFG.get("midst"):
            for idx, c in ((8, 4), (9, 9)):
                A(f"s_cmp_lg_u32 s{sCNT}, {c}")
                A(f"s_cbranch_scc1 L_nost{idx}{L}")
                stamp(A, idx)
                A(f"L_nost{idx}{L}:")
        A(f"""
        s_add_u32 s{sCNT}, s{sCNT}, 1
        s_cmp_lt_u32 s{sCNT}, 15
        s_cbranch_scc1 L_main{L}
        """)
        tile(0, "prelast", L + "p0", sh)
        tile(1, "last", L + "p1", sh)
    if CFG["share"]:
        A(f"""
        s_cmp_lg_u32 s{sBR}, 0
        s_cbranch_scc1 L_mainB
        s_and_b32 s{sT0}, s{sW}, 1
        s_mul_i32 s{sKL}, s{sT0}, 4352
        s_add_u32 s{sKL}, s{sKL}, s{sKVB}
        s_lshl_b32 s{sCX}, s{sT0}, 12
        s_add_u32 s{sVL}, s{sCX}, s{sKVB}
        s_add_u32 s{sTO2}, s{sTO}, s{sCX}
        """)
        attn_loop(True)
        A("s_branch L_attn_done")
    attn_loop(False)
    A("L_attn_done:")
    vF = 16
    vXa, vOa = 8, 10
    vOwn = 40
    def norm_frag(kl, qb, n):
        db, half = kl // 2, kl % 2
        tb = 24 + (n % 2) * 8
        dst = vOwn + ((kl % 2) * 3 + qb) * 4
        L = [f"v_accvgpr_read_b32 v{tb+i}, a{aO+(qb*4+db)*16+8*half+i}" for i in range(8)]
        if CFG["nopk"]: L += [f"v_mul_f32 v{tb+i}, v{tb+i}, v{vF+2*qb}" for i in range(8)]
        else: L += [f"v_pk_mul_f32 {vr(tb+2*i,2)}, {vr(tb+2*i,2)}, {vr(vF+2*qb,2)}" for i in range(4)]
        L += [f"v_cvt_pk_bf16_f32 v{dst+i}, v{tb+2*i}, v{tb+2*i+1}" for i in range(4)]
        L.append(f"ds_write_b128 v2, {vr(dst,4)} offset:{kl*3072 + qb*1024}" if kl < 6 else
                 f"ds_write_b128 v14, {vr(dst,4)} offset:{(kl-6)*3072 + qb*1024}")
        return L
    cnt = [0]
    def norm_group(kl):
        L = []
        for qb in range(3):
            L += norm_frag(kl, qb, cnt[0]); cnt[0] += 1
        return L
    setup = f"""
    v_lshlrev_b32 v1, 4, v{vLane}
    v_add_u32 v2, s{sRG}, v1
    s_mul_i32 s{sT0}, s{sW}, 6144
    s_add_u32 s{sT0}, s{sT0}, {XB}
    v_add_u32 v14, s{sT0}, v1
    v_bfe_u32 v12, v{vLane}, 4, 1
    v_and_b32 v13, 1, v{vLane}
    v_lshlrev_b32 v13, 5, v13
    v_lshl_add_u32 v13, v12, 4, v13
    v_bfe_u32 v12, v{vLane}, 1, 1
    v_lshl_add_u32 v13, v12, 3, v13
    v_lshrrev_b32 v12, 5, v{vLane}
    v_bfe_u32 v15, v{vLane}, 2, 2
    v_lshl_add_u32 v12, v12, 2, v15
    v_lshl_add_u32 v13, v12, 7, v13
    v_add_u32 v13, {RINGO}, v13
    v_lshrrev_b32 v15, 1, v15
    v_lshl_add_u32 v12, v15, 6, v13
    v_xor_b32 v15, 1, v15
    v_lshl_add_u32 v13, v15, 6, v13
    v_add_u32 v{vXa}, s{sRG}, v12
    v_add_u32 v{vXa+1}, s{sRG}, v13
    s_mul_i32 s{sKD}, s{sJJ}, {PCU}
    s_mul_i32 s{sKR}, s{sW}, 3072
    s_add_u32 s{sKR}, s{sKR}, s{sKD}
    s_add_u32 s{sKR}, s{sKR}, {96*1024}
    s_mul_i32 s{sT0}, s{sW}, {24*1024}
    s_add_u32 s{sKD}, s{sKD}, s{sT0}
    s_and_b32 s{sT0}, s{sB}, 1
    s_lshl_b32 s{sT0}, s{sT0}, 12
    s_add_u32 s{sKD}, s{sKD}, s{sT0}
    s_lshl_b32 s{sT0}, s{sT0}, 1
    s_sub_u32 s{sLX}, 4096, s{sT0}
    s_ashr_i32 s{sTO}, s{sLX}, 5
    """
    setup = [x.strip() for x in setup.split("\n") if x.strip()]
    vm = VM()
    for p in range(16): vm.add(f"g{p//4}")
    aXB = 96
    def op_gran(z):
        G = []
        for p in range(4):
            g = []
            if z == 20 and p == 0:
                g += [f"v_add_u32 v{vWoX+i}, s{sTO}, v{vWoX+i}" for i in range(4)]
            m0 = f"s_add_u32 m0, s{sRG}, {RINGO + (z % 4) * 4096}"
            if z < 8: setup, so = [m0, f"s_add_u32 s{sT2}, s{sX0 if z % 2 == 0 else sWC}, {(z // 2) * 32 * 1152}"], sT2
            elif z < 20: setup, so = [m0, "s_nop 0"], TW[z - 8]
            elif z < 24: setup, so = [m0, f"s_add_u32 s{sT2}, s{sWC}, {(z - 20) * 32 * 1152}"], sT2
            else: setup, so = [m0, "s_nop 0"], TW[z - 24]
            g.append(("dma", f"g{z}", setup, f"g{z}", f"buffer_load_dwordx4 v{vWoX+p}, {srd(SWO)}, s{so} offen offset:{1024*p} {CFG['wof']} lds"))
            G.append(g)
        return G
    def op_reads(z):
        fb = z & 1
        if z < 8:
            return [[f"ds_read_b64_tr_b16 {ar(aWf + fb*16 + (sx*2+ct)*4 + u*2, 2)}, v{vXa+ct} offset:{(((z//2)*2+sx) % 4)*4096 + (16*(z%2)+8*u)*128}"]
                    for sx in range(2) for ct in range(2) for u in range(2)]
        L = [[f"ds_read_b64_tr_b16 {ar(aWf + fb*16 + (kk*2+ct)*4 + u*2, 2)}, v{vXa+ct} offset:{(z%4)*4096 + (16*kk+8*u)*128}"]
             for kk in range(2) for ct in range(2) for u in range(2)]
        if 20 <= z < 24:
            va, off = (2, (z % 4) * 6144) if z % 4 < 3 else (14, 0)
        else:
            va, off = vOa + fb, 0
            L[0] = [f"v_add_u32 v{va}, s{TL[z - 8 if z < 20 else z - 24]}, v1"] + L[0]
        R_ = [[f"ds_read_b128 {ar(aXB + fb*24 + kk*12 + qb*4, 4)}, v{va} offset:{off + kk*3072 + qb*1024}"]
              for kk in range(2) for qb in range(3)]
        return L[:4] + R_[:3] + L[4:] + R_[3:]
    def conv_store(ps):
        base, dst0 = ((160, 160), (64, 208))[ps]
        cv, st = [], []
        tiles = [(qb, ct) for qb in range(3) for ct in range(2)] if ps == 0 else [(qb, ct) for ct in range(2) for qb in range(3)]
        for k, (qb, ct) in enumerate(tiles):
            tb = dst0 + k * 8
            src = base + (qb*2+ct) * 16
            c = [f"v_cvt_pk_bf16_f32 v{tb+i}, v{src+2*i}, v{src+2*i+1}" for i in range(8)]
            t = []
            if ps == 1 and k == 0: t.append(f"s_add_u32 s{sKD}, s{sKD}, s{sLX}")
            t.append(f"s_add_u32 s{sT3}, s{sKD}, {(qb*4 + ct)*2048}")
            for half in range(2):
                t.append(("vm", "st", f"buffer_store_dwordx4 {vr(tb+4*half,4)}, v1, {srd(SP)}, s{sT3} offen offset:{half*1024} {CFG['stfl']}"))
            cv.append(c); st.append(t)
        return cv, st
    fin = [f"v_mov_b32 v{vT+qb}, v{vL+qb}" for qb in range(3)] + setup[:2]
    fin += [f"v_permlane32_swap_b32 v{vL+qb}, v{vT+qb}" for qb in range(3)] + setup[2:5]
    fin += [f"v_add_f32 v{vL+qb}, v{vL+qb}, v{vT+qb}" for qb in range(3)]
    fin += [f"v_rcp_f32 v{vF+2*qb}, v{vL+qb}" for qb in range(3)] + setup[5:]
    fin += [f"v_mov_b32 v{vF+2*qb+1}, v{vF+2*qb}" for qb in range(3)]
    gaps = {}
    for i, o in enumerate(fin): gaps.setdefault(i * 8 // len(fin), []).append(o)
    interleave(A, [pv(2, m) for m in range(8)], gaps)
    stamp(A, 3)
    if CFG["fuse"]: A(f"v_readfirstlane_b32 s{sCNT}, v158")
    emit(A, vm, [("wait", ["g1"], "")])
    for g in op_reads(0): emit(A, vm, g)
    emit(A, vm, norm_group(0))
    stamp(A, 4)
    push_setup = f"""
        s_cmp_lg_u32 s{sW}, 3
        s_cbranch_scc1 L_nopush1
        s_cmp_ge_u32 s{sCNT}, 8
        s_cbranch_scc1 L_initok
        s_lshl_b32 s{sT0}, s{sG}, 3
        v_mov_b32 v12, s{sT0}
        s_mov_b32 s{sT1}, 0
        L_ipoll:
        global_load_dword v13, v12, s[{sDBG}:{sDBG+1}] sc1
        s_waitcnt vmcnt(0)
        v_readfirstlane_b32 s{sCNT}, v13
        s_add_u32 s{sT1}, s{sT1}, 1
        s_cmp_ge_u32 s{sCNT}, 8
        s_cbranch_scc1 L_initok
        s_sleep 8
        s_cmp_lt_u32 s{sT1}, 0x80000
        s_cbranch_scc1 L_ipoll
        L_initok:
        s_lshl_b32 s{sT0}, s{sG}, 11
        s_lshl_b32 s{sT1}, s{sBR}, 6
        s_add_u32 s{sT0}, s{sT0}, s{sT1}
        s_lshl_b32 s{sT1}, s{sJJ}, 2
        s_add_u32 s{sT0}, s{sT0}, s{sT1}
        s_add_u32 s{sT0}, s{sT0}, {FLAG_OFF}
        v_lshlrev_b32 v12, 8, v{vLane}
        v_add_u32 v12, s{sT0}, v12
        v_mov_b32 v13, 1
        s_mov_b64 exec, 0xff
        global_store_dword v12, v13, s[{sWS}:{sWS+1}] sc1
        s_mov_b64 exec, -1
        L_nopush1:
    """
    push_setup = [x.strip() for x in push_setup.split("\n") if x.strip()]
    pend = []
    for z in range(36):
        fb = z & 1
        mf = []
        for kk in range(2):
            for ct in range(2):
                for qb in range(3):
                    if z < 8:
                        acc = vr((64 if kk == 0 else 160) + (qb*2+ct)*16, 16)
                        c = "0" if z == 0 else acc
                        bop = vr(vOwn + ((z % 2)*3+qb)*4, 4)
                    else:
                        acc = vr((160 if z < 20 else 64) + (qb*2+ct)*16, 16)
                        c = "0" if (z == 20 and kk == 0) else acc
                        bop = ar(aXB+fb*24+kk*12+qb*4, 4)
                    mf.append(f"v_mfma_f32_32x32x16_bf16 {acc}, {ar(aWf+fb*16+(kk*2+ct)*4,4)}, {bop}, {c}")
        gaps = {}
        if z < 35:
            need = (z + 1) | 1 if z + 1 < 8 else z + 1
            tags = [f"g{need}"] + (["st"] if (z == 30 and CFG["fuse"]) else [])
            gaps[-1] = [("wait", tags, "lgkmcnt(0)")]
            if z == 7 or (z == 30 and CFG["fuse"]): gaps[-1].append("s_barrier")
            rd = op_reads(z + 1)
            for i, g in enumerate(rd): gaps.setdefault(i * 11 // len(rd), []).extend(g)
        else:
            gaps[-1] = ["s_waitcnt lgkmcnt(0)"]
        if z < 8:
            if z % 2 == 1:
                for i, g in enumerate(op_gran(z + 3) + op_gran(z + 4)): gaps.setdefault(i, []).extend(g)
        elif z < 32:
            for i, g in enumerate(op_gran(z + 4)): gaps.setdefault(3 * i + 1, []).extend(g)
        if z < 7:
            ng = norm_group(z + 1)
            for i, o in enumerate(ng): gaps.setdefault(i * 11 // len(ng), []).append(o)
        if z == 9:
            pend = [f"v_cvt_pk_bf16_f32 v{16+i}, v{64+2*i}, v{65+2*i}" for i in range(48)]
            if CFG["bpf"]:
                pend += [[f"s_cmp_lg_u32 s{sBR}, 0", "s_cbranch_scc1 L_nobpf", "s_load_dwordx2 s[12:13], s[0:1], 72",
                         f"s_lshl_b32 s{sT0}, s{sB}, 2", f"s_add_u32 s{sT0}, s{sT0}, s{sW}", f"s_mul_i32 s{sT0}, s{sT0}, {72*128}",
                         f"s_mul_i32 s{sT1}, s{sJJ}, {512*1152}", f"s_add_u32 s{sT0}, s{sT0}, s{sT1}",
                         f"v_lshlrev_b32 v12, 6, v{vLane}", f"v_add_u32 v12, s{sT0}, v12", f"v_add_u32 v13, 4096, v12",
                         "s_waitcnt lgkmcnt(0)",
                         "global_load_dword v15, v12, s[12:13]", "global_load_dword v15, v13, s[12:13]",
                         "global_load_dword v15, v13, s[12:13] offset:1024", "L_nobpf:"]]
        if z == 21:
            pend = sum([c + t for c, t in zip(*conv_store(0))], [])
        if z == 30 and CFG["fuse"]: gaps.setdefault(0, []).extend(push_setup)
        if 32 <= z < 35:
            for i in range(4):
                xf = (z - 32) * 4 + i
                gaps.setdefault(3 * i + 1, []).append(f"ds_write_b128 v2, {vr(16+4*xf,4)} offset:{RINGO + xf*1024}")
        for i in range(12):
            if pend:
                o = pend.pop(0)
                gaps.setdefault(i, []).extend(o if isinstance(o, list) else [o])
        interleave(A, mf, gaps, vm)
        if z == 7 and CFG.get("gst"): stamp(A, 8)
    assert not pend
    if CFG.get("gst"): stamp(A, 9)
    A(f"""
    s_barrier
    s_mul_i32 s{sT0}, s{sW}, 3072
    s_add_u32 s{sT0}, s{sT0}, {RINGO}
    v_add_u32 v10, s{sT0}, v1
    v_add_u32 v11, {2*REG}, v10
    s_mov_b32 s64, 0x3f80
    s_mov_b32 s65, 0x3f800000
    """)
    for src in range(4):
        for m in range(3):
            A(f"ds_read_b128 {vr(16+(src*3+m)*4,4)}, v{10 + src // 2} offset:{(src % 2)*REG + m*1024}")
    for c, t in zip(*conv_store(1)): emit(A, vm, c + t)
    stamp(A, 5)
    A("s_waitcnt lgkmcnt(0)")
    for src in range(4):
        for m in range(3):
            for d in range(4):
                for hi in range(2):
                    acc = 64 + m*8 + d*2 + hi
                    A(f"v_dot2_f32_bf16 v{acc}, v{16+(src*3+m)*4+d}, s{65 if hi else 64}, {'0' if src == 0 else f'v{acc}'}")
    A("s_nop 2")
    for m in range(3):
        for d in range(4): A(f"v_cvt_pk_bf16_f32 v{96+m*4+d}, v{64+m*8+2*d}, v{65+m*8+2*d}")
        A(f"buffer_store_dwordx4 {vr(96+m*4,4)}, v1, {srd(SP)}, s{sKR} offen offset:{m*1024} {CFG['stfl']}")
    if CFG["fuse"]:
        A(f"""
        s_waitcnt vmcnt(0)
        s_barrier
        s_cmp_lg_u32 s{sW}, 3
        s_cbranch_scc1 L_nopush
        s_mov_b64 exec, 0xff
        global_store_dword v12, v13, s[{sWS}:{sWS+1}] offset:32 sc1
        s_mov_b64 exec, -1
        L_nopush:
        """)
        stamp(A, 6)
        A(f"""
        s_cmp_lg_u32 s{sBR}, {'s%d' % sBR if CFG['own'] else 0}
        s_cbranch_scc1 L_fin
        s_mov_b32 s8, s100
        s_mov_b32 s9, s101
        s_mov_b32 s10, {16*96*1152*2}
        s_mov_b32 s11, 0x20000
        s_mov_b32 s{SP+2}, {PART if CFG['own'] else 17*PART}
        s_lshl_b32 s{sT0}, s{sG}, 3
        s_add_u32 s{sT0}, s{sT0}, s{sJJ}
        s_lshl_b32 s{sT0}, s{sT0}, 8
        s_add_u32 s{sT0}, s{sT0}, {FLAG_OFF}
        s_lshl_b32 s{sT1}, s{sBR}, 6
        s_add_u32 s{sT0}, s{sT0}, s{sT1}
        v_and_b32 v2, 7, v{vLane}
        v_lshlrev_b32 v2, 2, v2
        v_add_u32 v2, s{sT0}, v2
        v_and_b32 v3, 31, v{vLane}
        v_lshrrev_b32 v5, 5, v{vLane}
        v_mul_u32_u24 v4, 2304, v3
        v_lshl_add_u32 v4, v5, 5, v4
        s_mov_b32 s64, 0x3f80
        s_mov_b32 s65, 0x3f800000
        s_lshl_b32 s66, s{sBR}, 1
        s_add_u32 s78, s66, {2 if CFG['own'] else 4}
        L_stage:
        s_and_b32 s67, s66, 1
        s_add_u32 s68, s67, 3
        s_mul_i32 s68, s68, s{sJJ}
        s_add_u32 s68, s68, s{sW}              ; idx
        s_add_u32 s69, s67, 2
        s_cmp_gt_u32 s{sW}, s69
        s_cbranch_scc1 L_next
        s_cmp_ge_u32 s68, 30
        s_cbranch_scc1 L_next
        s_and_b32 s69, s{sB}, 1
        s_xor_b32 s69, s69, s67
        s_lshl_b32 s69, s69, 1                  ; 2*half
        s_mul_i32 s70, s68, 43
        s_lshr_b32 s70, s70, 8                  ; w' = idx/6
        s_mul_i32 s71, s70, 6
        s_sub_u32 s71, s68, s71                 ; r = idx%6
        s_lshr_b32 s72, s71, 1                  ; qb
        s_and_b32 s73, s71, 1                   ; c
        s_cmp_eq_u32 s70, 4
        s_cselect_b32 s69, 0, s69
        s_cselect_b32 s74, 1, 2
        s_add_u32 s73, s73, s69                 ; ct
        s_lshl_b32 s74, s72, s74
        s_add_u32 s74, s74, s73
        s_mul_i32 s75, s70, 12
        s_add_u32 s74, s74, s75                 ; tt
        s_lshl_b32 s74, s74, 11
        s_lshr_b32 s75, s66, 1
        s_mul_i32 s76, s75, {0 if CFG['own'] else 16*PART}
        s_add_u32 s74, s74, s76
        s_mul_i32 s76, s{sB}, {96*2304}
        s_mul_i32 s75, s75, 1152
        s_add_u32 s76, s76, s75
        s_lshl_b32 s75, s70, 8
        s_add_u32 s76, s76, s75
        s_mul_i32 s75, s72, {32*2304}
        s_add_u32 s76, s76, s75
        s_lshl_b32 s75, s73, 6
        s_add_u32 s76, s76, s75
        s_mov_b32 s77, 0
        L_poll:
        global_load_dword v6, v2, s[{sWS}:{sWS+1}] sc1
        s_waitcnt vmcnt(0)
        v_cmp_ne_u32 vcc, 1, v6
        s_add_u32 s77, s77, 1
        s_cbranch_vccz L_go
        s_sleep {CFG['slp']}
        s_cmp_lt_u32 s77, 0x80000
        s_cbranch_scc1 L_poll
        L_go:
        """)
        for p in range(8):
            for m in range(2):
                A(f"buffer_load_dwordx4 {vr(32+(p*2+m)*4,4)}, v1, {srd(SP)}, s74 offen offset:{1024*m} sc1")
            if p < 7: A(f"s_add_u32 s74, s74, {PCU}")
        for p in range(8):
            A(f"s_waitcnt vmcnt({14 - 2*p})")
            for m in range(2):
                for d in range(4):
                    src = 32 + (p*2+m)*4 + d
                    for hi in range(2):
                        acc = 8 + m*8 + d*2 + hi
                        A(f"v_dot2_f32_bf16 v{acc}, v{src}, s{65 if hi else 64}, {'0' if p == 0 else f'v{acc}'}")
        A("s_nop 2")
        for m in range(2):
            for d in range(4):
                A(f"v_cvt_pk_bf16_f32 v{24+m*4+d}, v{8+m*8+2*d}, v{9+m*8+2*d}")
            A(f"buffer_store_dwordx4 {vr(24+m*4,4)}, v4, s[8:11], s76 offen offset:{m*16}")
        A(f"""
        L_next:
        """)
        if CFG["stamps"]:
            A("s_cmp_lg_u32 s66, 1"); A("s_cbranch_scc1 L_nost7"); stamp(A, 7); A("L_nost7:")
        A(f"""
        v_add_u32 v2, 32, v2
        s_add_u32 s66, s66, 1
        s_cmp_lt_u32 s66, s78
        s_cbranch_scc1 L_stage
        L_fin:
        """)
    if CFG["stamps"]:
        A("s_waitcnt vmcnt(0)")
        stamp(A, 10)
        if not CFG["fuse"]:
            stamp(A, 6)
            if not CFG.get("sst"): stamp(A, 7)
    stamps_out(A, 12)
    A("L_end:")
    A("s_endpgm")
    for site, qb in sites:
        A(f"L_tramp_{site}:")
        A(f"s_call_b64 s[{sRET}:{sRET+1}], L_rare_{qb}")
        A(f"s_branch L_back_{site}")
    for qb in range(3):
        s = vS + 16 * qb
        A(f"L_rare_{qb}:")
        for x in rowmax(qb, vT, vT+1): A(x)
        A(f"v_max_f32 v{vT}, 0, v{vT}")
        A(f"v_exp_f32 v{vT+1}, -v{vT}")
        for i in range(16): A(f"v_sub_f32 v{vNM+16*qb+i}, v{vNM+16*qb+i}, v{vT}")
        A(f"v_mul_f32 v{vL+qb}, v{vL+qb}, v{vT+1}")
        for i in range(64):
            A(f"v_accvgpr_read_b32 v{vT+2+i%4}, a{aO+qb*64+i}")
            A(f"v_mul_f32 v{vT+2+i%4}, v{vT+2+i%4}, v{vT+1}")
            A(f"v_accvgpr_write_b32 a{aO+qb*64+i}, v{vT+2+i%4}")
        A(f"v_mov_b32 v{vPS}, 0")
        for i in range(0, 16, 2):
            A(f"v_sub_f32 v{vE}, v{s+i}, v{vT}")
            A(f"v_sub_f32 v{vE+1}, v{s+i+1}, v{vT}")
            A(f"v_exp_f32 v{vE}, v{vE}")
            A(f"v_exp_f32 v{vE+1}, v{vE+1}")
            A("s_nop 0")
            A(f"v_add_f32 v{vPS}, v{vPS}, v{vE}")
            A(f"v_add_f32 v{vPS}, v{vPS}, v{vE+1}")
            A(f"v_cvt_pk_bf16_f32 v{vP+8*qb+i//2}, v{vE}, v{vE+1}")
        A("s_nop 1")
        A(f"s_setpc_b64 s[{sRET}:{sRET+1}]")

def gen_reduce_kernel(A, name):
    kernel_begin(A, name)
    A("s_cmp_ge_u32 s2, 864")
    A("s_cbranch_scc1 L_rk_end")
    stamp(A, 0)
    A(f"""
    s_load_dwordx2 s[{sWS}:{sWS+1}], s[0:1], 96
    s_load_dwordx2 s[8:9], s[0:1], 80
    v_lshrrev_b32 v1, 6, v0
    v_and_b32 v7, 63, v0
    v_readfirstlane_b32 s3, v1
    v_lshlrev_b32 v1, 4, v7
    s_mul_i32 s24, s2, 2428
    s_lshr_b32 s24, s24, 16
    s_mul_i32 s25, s24, 27
    s_sub_u32 s25, s2, s25
    s_lshl_b32 s25, s25, 1
    s_add_u32 s25, s25, s3             ; tt
    s_mul_i32 s26, s24, {PART}
    s_lshl_b32 s27, s25, 11
    s_add_u32 s26, s26, s27
    s_mov_b32 s22, {32*PART}
    s_mov_b32 s23, 0x20000
    s_mov_b32 s10, {16*96*1152*2}
    s_mov_b32 s11, 0x20000
    s_waitcnt lgkmcnt(0)
    s_mov_b32 s20, s{sWS}
    s_mov_b32 s21, s{sWS+1}
    """)
    for p in range(8):
        for m in range(2):
            A(f"buffer_load_dwordx4 {vr(32+(p*2+m)*4,4)}, v1, s[20:23], s26 offen offset:{1024*m} {CFG['rfl']}")
        if p < 7: A(f"s_add_u32 s26, s26, {PCU}")
    stamp(A, 1)
    A(f"""
    s_mov_b32 s30, 0x3f80
    s_mov_b32 s31, 0x3f800000
    s_and_b32 s27, s24, 15
    s_mul_i32 s28, s27, {96*2304}
    s_lshr_b32 s27, s24, 4
    s_mul_i32 s27, s27, 1152
    s_add_u32 s28, s28, s27
    s_mul_i32 s27, s25, 43
    s_lshr_b32 s27, s27, 9             ; w' (4 = extra)
    s_mul_i32 s29, s27, 12
    s_sub_u32 s29, s25, s29            ; T
    s_cmp_eq_u32 s27, 4
    s_cselect_b32 s32, 1, 2
    s_cselect_b32 s33, 1, 3
    s_lshl_b32 s27, s27, 8
    s_add_u32 s28, s28, s27
    s_lshr_b32 s27, s29, s32           ; qb
    s_mul_i32 s27, s27, {32*2304}
    s_add_u32 s28, s28, s27
    s_and_b32 s27, s29, s33            ; ct
    s_lshl_b32 s27, s27, 6
    s_add_u32 s28, s28, s27
    v_and_b32 v2, 31, v7
    v_lshrrev_b32 v3, 5, v7
    v_mul_u32_u24 v4, 2304, v2
    v_lshl_add_u32 v4, v3, 5, v4
    """)
    for p in range(8):
        A(f"s_waitcnt vmcnt({14 - 2*p})")
        for m in range(2):
            for d in range(4):
                src = 32 + (p*2+m)*4 + d
                for hi in range(2):
                    acc = 8 + m*8 + d*2 + hi
                    A(f"v_dot2_f32_bf16 v{acc}, v{src}, s{31 if hi else 30}, {'0' if p == 0 else f'v{acc}'}")
    A("s_nop 2")
    for m in range(2):
        for d in range(4):
            A(f"v_cvt_pk_bf16_f32 v{24+m*4+d}, v{8+m*8+2*d}, v{9+m*8+2*d}")
        A(f"buffer_store_dwordx4 {vr(24+m*4,4)}, v4, s[8:11], s28 offen offset:{m*16}")
    if CFG["stamps"]:
        A("s_waitcnt vmcnt(0)")
        stamp(A, 2)
        A("s_cmp_lg_u32 s3, 0")
        A("s_cbranch_scc1 L_rk_end")
        A("s_waitcnt lgkmcnt(0)")
        A(f"s_lshl_b32 s34, s2, 6")
        A(f"s_add_u32 s34, s34, {STAMP_OFF + 1024 * 64}")
        A("v_mov_b32 v1, s34")
        for i in range(3):
            A(f"v_mov_b32 v2, s{sST[i]}")
            A(f"global_store_dword v1, v2, s[{sWS}:{sWS+1}] offset:{4*i}")
    A("L_rk_end:")
    A("s_endpgm")

def gen(**kw):
    CFG.update(kw)
    if CFG["fuse"]: CFG["split_reduce"] = False
    CFG["stfl"] = CFG["fst"] if CFG["fst"] is not None else ("" if (CFG["split_reduce"] or CFG["wb"]) else "sc1")
    A = Asm()
    for l in open("cdna_kernels/" + NAME + ".s.ref").read().split("\n"):
        if not l.startswith(";"): break
        if "@launch" in l or "Override launch" in l or "grid=ceil" in l: continue
        A.L.append(l)
    if CFG["split_reduce"]:
        header(A, ["; @launch kernel=main_kernel grid=(256,1,1) block=(256,1,1) lds=163840",
                   "; @launch kernel=reduce_kernel grid=(864,1,1) block=(128,1,1) lds=0"])
        gen_main(A, "main_kernel")
        gen_reduce_kernel(A, "reduce_kernel")
        descriptor(A, "main_kernel")
        descriptor(A, "reduce_kernel", vgpr=96, accum=96, first=False)
    else:
        header(A, ["; @launch grid=(256,1,1) block=(256,1,1) lds=163840"])
        gen_main(A, NAME + "_kernel")
        descriptor(A, NAME + "_kernel")
    return A.text()

if __name__ == "__main__":
    out = sys.argv[1] if len(sys.argv) > 1 else "cdna_kernels/" + NAME + ".s"
    kw = {}
    for a in sys.argv[2:]:
        k, v = a.split("=")
        kw[k] = eval(v)
    open(out, "w").write(gen(**kw))
```

```python
import sys, struct
from asmlib import *

LOG2E = 1.4426950408889634
def f2u(x): return struct.unpack("<I", struct.pack("<f", x))[0]

CFG = dict(stamps=False, thr=256.0, nokv=False, split_reduce=True, wopf=-1, share=True, tlb=False, qbud=6, da=4, wqf='', xf='', wof='', pff='nt', wqn=4, pf2=True, pfs=12, xrot=1, won=2, slp=4, early=True, wb=False, fst='sc1', rfl='', xfill=60, nopk=True, xf2='', kvpf=0, kvs=4, kvd=4, kv0=2, kve=28, kvf='', apf=2, apm=0, aps=2, ap0=4, apfl='', fuse=True, fine=False, bpf=True, own=False, dv=1, tls=-1, coop=False, hbud=7, hrot=4, kvstart=0, q16=True, ipf=True)

REG = 34816
XB = 4 * REG
K1O, V1O, K0O, V0O = 0, 8704, 16896, 25600
KVD = 16896
RINGO = 18432
STAMP_OFF = 64 << 20
FLAG_OFF = 48 << 20
QOFF = 40 << 20
PCU = 108 * 1024
PART = 8 * PCU

sW = 3
SX, SWQ, SK, SV, SP = 4, 8, 12, 16, 20
SWO, SOUT = 4, 8
sBR, sJJ, sB, sH = 24, 25, 27, 28
sCI = 29
sRET = 52
sWQ0, sX0 = 32, 33
sT0, sT1, sT2, sT3 = 34, 35, 36, 37
sRG = 38
sLX = 39
sCNT = 40
sWC, sXC = 41, 42
sCX = 43
sTO, sTO2 = 44, 45
sTHR = 46
sSC = 84
sKD, sKR = 50, 51
sG = 95
sRW, sR3 = 26, 47
sKVB = 50
sKL, sVL = 26, 47
sST = [30, 54, 56, 58, 60, 62, 84, 86, 88, 90, 92, 48]
sWS = 96
sDBG = 98
vWoX, vLane = 3, 7
vKd, vVd, vKr, vVr = 8, 9, 10, 12
vS, vNM, vP, vE, vL, vPS, vT, vQ = 16, 64, 112, 136, 144, 147, 148, 160
vWd, vXd, vWr, vXr = 40, 44, 20, 24
vHd, vHr = 52, 28
vQA = 64
aO, aK, aV = 0, 192, 224
aWf, aXf = 192, 224

def srd(n): return f"s[{n}:{n+3}]"
def vr(n, c): return f"v[{n}:{n+c-1}]"
def ar(n, c): return f"a[{n}:{n+c-1}]"

class VM:
    def __init__(self): self.ops = []; self.ctx = None
    def add(self, tag): self.ops.append(tag)
    def need(self, tag):
        idx = max(i for i, t in enumerate(self.ops) if t == tag)
        return len(self.ops) - 1 - idx

def emit(A, vm, items):
    for x in items:
        if isinstance(x, str): A(x)
        elif x[0] == "vm":
            vm.add(x[1]); A(x[2])
            if x[2].endswith("lds"): vm.ctx = None
        elif x[0] == "dma":
            if vm.ctx != x[1]:
                for y in x[2]: A(y)
                vm.ctx = x[1]
            vm.add(x[3]); A(x[4])
        elif x[0] == "wait":
            n = min(vm.need(t) for t in x[1])
            assert n <= 63
            A(f"s_waitcnt vmcnt({n}) {x[2]}".strip())

def interleave(A, mfmas, gaps, vm=None):
    emit(A, vm, gaps.get(-1, []))
    for i, m in enumerate(mfmas):
        emit(A, vm, gaps.get(("pre", i), []))
        A(m)
        emit(A, vm, gaps.get(i, []))

DUAL = {2: 4, 8: 5, 9: 6, 3: 7, 0: 11}
def stamp(A, idx):
    if CFG.get("dual"):
        if idx in DUAL.values(): return
        if idx in DUAL: A(f"s_memtime s[{sST[DUAL[idx]]}:{sST[DUAL[idx]]+1}]")
    if CFG["stamps"]:
        A(f"{'s_memtime' if CFG.get('cyc') else 's_memrealtime'} s[{sST[idx]}:{sST[idx]+1}]")

def stamps_out(A, n, add=0):
    if not CFG["stamps"]: return
    A("s_waitcnt lgkmcnt(0)")
    A(f"s_lshl_b32 s{sT0}, s2, 2")
    A(f"s_add_u32 s{sT0}, s{sT0}, s{sW}")
    A(f"s_lshl_b32 s{sT0}, s{sT0}, 6")
    A(f"s_add_u32 s{sT0}, s{sT0}, {STAMP_OFF + add * 64}")
    A(f"v_mov_b32 v1, s{sT0}")
    for i in range(n):
        A(f"v_mov_b32 v2, s{sST[i]}")
        A(f"global_store_dword v1, v2, s[{sWS}:{sWS+1}] offset:{4*i}")

def k_piece(p, slot, tag=None, shared=False):
    base = (K0O if slot == 0 else K1O + (REG if shared else 0)) + 1088 * p - 1024 * (p % 4)
    so = sTO if (p < 4 and not shared) else sTO2
    ld = f"buffer_load_dwordx4 v{vKd}, {srd(SK)}, s{so} offen offset:{1024*(p%4)} nt lds"
    return [f"s_add_u32 m0, s{sKL if shared else sRG}, {base}", "s_nop 0", ("vm", tag, ld) if tag else ld]
def v_piece(p, slot, tag=None, force_m0=False, shared=False):
    so = sTO if (p < 4 and not shared) else sTO2
    r = []
    if p % 4 == 0 or force_m0:
        base = (V0O if slot == 0 else V1O + (REG if shared else 0)) + 4096 * (p // 4)
        r += [f"s_add_u32 m0, s{sVL if shared else sRG}, {base}", "s_nop 0"]
    ld = f"buffer_load_dwordx4 v{vVd}, {srd(SV)}, s{so} offen offset:{1024*(p%4)} nt lds"
    r.append(("vm", tag, ld) if tag else ld)
    return r
def tile_advance(shared=False):
    return [f"s_add_u32 s{sTO}, s{sTO}, 8192", f"s_and_b32 s{sTO}, s{sTO}, 0x3ffff",
            f"s_add_u32 s{sTO2}, s{sTO}, s{sCX}" if shared else f"s_add_u32 s{sTO2}, s{sTO}, 4096"]

def decode(A):
    A(f"""
    v_lshrrev_b32 v1, 6, v0
    v_and_b32 v{vLane}, 63, v0
    v_readfirstlane_b32 s{sW}, v1
    s_and_b32 s{sJJ}, s2, 7
    s_lshr_b32 s{sT1}, s2, 3
    s_and_b32 s{sBR}, s{sT1}, 1
    s_lshr_b32 s{sB}, s{sT1}, 1
    """)

def part_srd(A):
    A(f"""
    s_lshl_b32 s{sT0}, s{sBR}, 4
    s_add_u32 s{sT0}, s{sT0}, s{sB}
    s_mul_i32 s{sT0}, s{sT0}, {PART}
    s_add_u32 s{SP}, s{sWS}, s{sT0}
    s_addc_u32 s{SP+1}, s{sWS+1}, 0
    s_mov_b32 s{SP+2}, {0 if CFG.get('nost') else PART}
    s_mov_b32 s{SP+3}, 0x20000
    """)

def gen_main(A, name):
    KVN = 0 if CFG['nokv'] else 0x40000
    kernel_begin(A, name)
    A("s_cmp_ge_u32 s2, 256")
    A("s_cbranch_scc1 L_end")
    stamp(A, 0)
    A(f"""
    s_load_dwordx16 s[64:79], s[0:1], 0
    s_load_dwordx4 s[80:83], s[0:1], 64
    s_load_dwordx2 s[{sWS}:{sWS+1}], s[0:1], 96
    s_load_dwordx2 s[{sDBG}:{sDBG+1}], s[0:1], 88
    s_load_dwordx2 s[100:101], s[0:1], 80
    """)
    decode(A)
    if CFG["ipf"]:
        A(f"""
        s_getpc_b64 s[86:87]
        L_pc:
        s_lshr_b32 s{sT0}, s2, 3
        s_lshl_b32 s{sT0}, s{sT0}, 2
        s_add_u32 s{sT0}, s{sT0}, s{sW}
        s_lshl_b32 s{sT0}, s{sT0}, 7
        v_lshlrev_b32 v63, 14, v{vLane}
        v_add_u32 v63, s{sT0}, v63
        v_cmp_gt_u32 vcc, L_code_end-L_pc-4, v63
        s_and_saveexec_b64 s[88:89], vcc
        global_load_dword v62, v63, s[86:87]
        s_mov_b64 exec, -1
        """)
    A(f"""
    s_lshl_b32 s{sG}, s{sBR}, 4
    s_and_b32 s{sG}, s{sG}, {16 if CFG['own'] else 0}
    s_add_u32 s{sG}, s{sG}, s{sB}
    s_lshl_b32 s{sH}, s{sJJ}, 2
    s_add_u32 s{sH}, s{sH}, s{sW}
    s_mul_i32 s{sCI}, s{sB}, {8 if CFG['fine'] else 9}
    s_lshr_b32 s{sCI}, s{sCI}, 4
    s_and_b32 s{sKR}, s{sB}, {1 if CFG['fine'] else 0}
    s_mul_i32 s{sT2}, s{sJJ}, {CFG['xrot']}
    s_add_u32 s{sCI}, s{sCI}, s{sT2}
    s_sub_u32 s{sT2}, s{sCI}, 9
    s_cmp_ge_u32 s{sCI}, 9
    s_cselect_b32 s{sCI}, s{sT2}, s{sCI}
    s_mov_b32 s{sCX}, s{sCI}
    s_lshl_b32 s{sWQ0}, s{sH}, 8
    s_lshl_b32 s{sT2}, s{sKR}, 18
    s_add_u32 s{sWQ0}, s{sWQ0}, s{sT2}
    s_mul_i32 s{sX0}, s{sB}, 96
    s_mul_i32 s{sT2}, s{sW}, 24
    s_add_u32 s{sX0}, s{sX0}, s{sT2}
    s_mul_i32 s{sX0}, s{sX0}, 1152
    s_mul_i32 s{sRG}, s{sW}, {REG}
    s_mul_i32 s{sLX}, s{sW}, 3072
    s_add_u32 s{sLX}, s{sLX}, {XB}
    v_lshrrev_b32 v1, 4, v{vLane}         ; t = l/16
    v_and_b32 v2, 15, v{vLane}
    v_lshlrev_b32 v33, 2, v1
    v_xor_b32 v33, v2, v33
    v_lshlrev_b32 v33, 4, v33
    v_lshl_add_u32 v{vWd}, v1, 13, v33
    v_add_u32 v{vWd+1}, {32768-1024}, v{vWd}
    v_xor_b32 v34, {32 if CFG['q16'] else 0}, v{vWd}
    v_add_u32 v{vWd+2}, {2*(32768-1024)}, v34
    v_add_u32 v{vWd+3}, {3*(32768-1024)}, v34
    v_lshl_add_u32 v{vVd}, v1, 8, v33
    v_xor_b32 v33, v2, v1
    v_lshlrev_b32 v33, 4, v33
    v_lshl_add_u32 v{vKd}, v1, 8, v33
    ; x dma: row = 24w + 8p + t ; f = (row>>1)&7 = (4*(w+p) + (t>>1)) & 7
    v_lshrrev_b32 v1, 3, v{vLane}         ; t = l/8
    v_and_b32 v2, 7, v{vLane}
    v_lshrrev_b32 v33, 1, v1
    v_xor_b32 v34, v2, v33
    s_and_b32 s{sT0}, s{sW}, 1
    s_lshl_b32 s{sT0}, s{sT0}, 2
    v_xor_b32 v34, s{sT0}, v34
    v_lshlrev_b32 v34, 4, v34
    v_mul_u32_u24 v1, 1152, v1
    v_add_u32 v{vXd}, v1, v34
    v_add_u32 v{vXd+2}, {2*(8*1152-1024)}, v{vXd}
    v_xor_b32 v34, 64, v34
    v_add_u32 v{vXd+1}, v1, v34
    v_add_u32 v{vXd+1}, {8*1152-1024}, v{vXd+1}
    ; wo dma: t*1152 + ((l&7) ^ (((t>>1)&1)<<2))*16
    v_and_b32 v33, 1, v33
    v_lshlrev_b32 v33, 2, v33
    v_xor_b32 v2, v2, v33
    v_lshl_add_u32 v47, v2, 4, v1
    v_lshrrev_b32 v1, 3, v{vLane}
    v_lshlrev_b32 v1, 13, v1
    v_lshl_add_u32 v{vHd}, v2, 4, v1
    v_add_u32 v{vHd+1}, {65536-1024}, v{vHd}
    v_add_u32 v{vHd+2}, {2*(65536-1024)}, v{vHd}
    v_add_u32 v{vHd+3}, {3*(65536-1024)}, v{vHd}
    {"s_memrealtime s[90:91]" if CFG.get("sst") else ""}
    s_waitcnt lgkmcnt(0)
    {"s_memrealtime s[88:89]" if CFG.get("sst") else ""}
    s_cmp_eq_u32 s{sBR}, 0
    s_cselect_b32 s{SX}, s{74 if CFG['coop'] else 64}, s74
    s_cselect_b32 s{SX+1}, s{75 if CFG['coop'] else 65}, s75
    s_cselect_b32 s{SWQ}, s{80 if CFG['coop'] else 70}, s80
    s_cselect_b32 s{SWQ+1}, s{81 if CFG['coop'] else 71}, s81
    s_cselect_b32 s{SK}, s66, s76
    s_cselect_b32 s{SK+1}, s67, s77
    s_cselect_b32 s{SV}, s68, s78
    s_cselect_b32 s{SV+1}, s69, s79
    s_mov_b32 s{SX+2}, {0 if CFG.get('nox') else 16*110592}
    s_mov_b32 s{SX+3}, 0x20000
    s_mov_b32 s{SWQ+2}, {0 if CFG.get('nowq') else 576*8192}
    s_mov_b32 s{SWQ+3}, 0x20000
    """)
    vm = VM()
    R = 8
    def wq_gran(n):
        G = []
        for p in range(4):
            g = []
            if n % 4 == 0 and p == 0:
                g += [f"s_lshl_b32 s{sWC}, s{sCI}, 19", f"s_add_u32 s{sWC}, s{sWC}, s{sWQ0}",
                      f"s_add_u32 s{sCI}, s{sCI}, 1", f"s_cmp_eq_u32 s{sCI}, 9", f"s_cselect_b32 s{sCI}, 0, s{sCI}"]
            setup = [f"s_add_u32 m0, s{sRG}, {(n % R) * 4096}", f"s_xor_b32 s{sT2}, s{sWC}, {(n % 4) * 16 * 8192}"]
            g.append(("dma", f"w{n}", setup, f"w{n}",
                      f"buffer_load_dwordx4 v{vWd+p}, {srd(SWQ)}, s{sT2} offen offset:{1024*p} {CFG['wqf'] if n < CFG['wqn'] else ''} lds"))
            G.append(g)
        return G
    def x_chunk(c):
        G = []
        for p in range(3):
            g = []
            if p == 0:
                g += [f"s_lshl_b32 s{sXC}, s{sCX}, 7", f"s_add_u32 s{sXC}, s{sXC}, s{sX0}",
                      f"s_add_u32 s{sCX}, s{sCX}, 1", f"s_cmp_eq_u32 s{sCX}, 9", f"s_cselect_b32 s{sCX}, 0, s{sCX}"]
            setup = [f"s_add_u32 m0, s{sLX}, {(c % 2) * 12288}", "s_nop 0"]
            g.append(("dma", f"x{c}", setup, f"x{c}",
                      f"buffer_load_dwordx4 v{vXd+p}, {srd(SX)}, s{sXC} offen offset:{1024*p} {CFG['xf'] if c == 0 else CFG['xf2']} lds"))
            G.append(g)
        return G
    if CFG["wopf"] == -3:
        A(f"""
        s_cmp_lg_u32 s{sBR}, 0
        s_cbranch_scc1 L_nopf0
        s_lshl_b32 s{sT0}, s{sB}, 2
        s_add_u32 s{sT0}, s{sT0}, s{sW}
        s_mul_i32 s{sT0}, s{sT0}, {72*128}
        s_mul_i32 s{sT1}, s{sJJ}, {512*1152}
        s_add_u32 s{sT0}, s{sT0}, s{sT1}
        v_lshlrev_b32 v40, 7, v{vLane}
        v_add_u32 v40, s{sT0}, v40
        global_load_dword v41, v40, s[72:73] {CFG['pff']}
        global_load_dword v42, v40, s[72:73] offset:1024 {CFG['pff']}
        global_load_dword v43, v40, s[82:83] {CFG['pff']}
        global_load_dword v44, v40, s[82:83] offset:1024 {CFG['pff']}
        L_nopf0:
        """)
    if CFG["apf"]:
        A(f"""
        s_cmp_lg_u32 s{sBR}, 0
        s_cbranch_scc1 L_noapf
        s_lshl_b32 s{sT1}, s{sB}, 5
        s_add_u32 s{sT1}, s{sT1}, s{sH}
        s_lshl_b32 s{sT0}, s{sT1}, 18
        s_add_u32 s{SP}, s76, s{sT0}
        s_addc_u32 s{SP+1}, s77, 0
        s_mov_b32 s{SP+2}, 0x40000
        s_mov_b32 s{SP+3}, 0x20000
        s_add_u32 s52, s78, s{sT0}
        s_addc_u32 s53, s79, 0
        s_mov_b32 s54, 0x40000
        s_mov_b32 s55, 0x20000
        s_and_b32 s{sT0}, s{sB}, {CFG['apm']}
        s_mul_i32 s{sT0}, s{sT0}, {CFG['aps']}
        s_add_u32 s{sT1}, s{sT1}, s{sT0}
        s_add_u32 s{sT1}, s{sT1}, {CFG['ap0']}
        s_add_u32 s{sT1}, s{sT1}, s{sB}
        v_lshlrev_b32 v48, 4, v{vLane}
        s_mov_b32 s{sCNT}, {CFG['apf']}
        L_apf:
        s_and_b32 s{sT0}, s{sT1}, 31
        s_lshl_b32 s{sT0}, s{sT0}, 13
        s_add_u32 s{sT3}, s{sT0}, 4096
        """)
        for i in range(16):
            sr = srd(SP) if i < 8 else "s[52:55]"
            A(f"buffer_load_dwordx4 {vr(64+4*i,4)}, v48, {sr}, s{sT0 if i % 8 < 4 else sT3} offen offset:{(i%4)*1024} {CFG['apfl']}")
            A(f"s_waitcnt vmcnt(12)")
        A(f"""
        s_add_u32 s{sT1}, s{sT1}, 1
        s_sub_u32 s{sCNT}, s{sCNT}, 1
        s_cmp_lg_u32 s{sCNT}, 0
        s_cbranch_scc1 L_apf
        L_noapf:
        """)
    def h_gran(m):
        G = []
        for p in range(4):
            g = []
            if m % 2 == 0 and p == 0:
                g += [f"s_lshl_b32 s{sWC}, s{sCI}, 19", f"s_add_u32 s{sWC}, s{sWC}, s{sWQ0}",
                      f"s_add_u32 s{sCI}, s{sCI}, 1", f"s_cmp_eq_u32 s{sCI}, 9", f"s_cselect_b32 s{sCI}, 0, s{sCI}"]
            setup = [f"s_add_u32 m0, s{sRG}, {(m % 4) * 4096}", f"s_add_u32 s{sT2}, s{sWC}, {(m % 2) * 32 * 8192}"]
            g.append(("dma", f"h{m}", setup, f"h{m}", f"buffer_load_dwordx4 v{vHd+p}, {srd(SWQ)}, s{sT2} offen offset:{1024*p} lds"))
            G.append(g)
        return G
    if CFG["coop"]:
        A(f"""
        s_xor_b32 s{sT0}, s{sBR}, 1
        s_lshl_b32 s{sT1}, s{sT0}, 7
        s_add_u32 s{sWQ0}, s{sWQ0}, s{sT1}
        s_mul_i32 s{sT0}, s{sT0}, {CFG['hrot']}
        s_add_u32 s{sCI}, s{sCI}, s{sT0}
        s_sub_u32 s{sT2}, s{sCI}, 9
        s_cmp_ge_u32 s{sCI}, 9
        s_cselect_b32 s{sCI}, s{sT2}, s{sCI}
        s_mov_b32 s{sCX}, s{sCI}
        """)
        for g in x_chunk(0) + h_gran(0) + x_chunk(1) + h_gran(1): emit(A, vm, g)
    else:
        for g in x_chunk(0) + wq_gran(0) + wq_gran(1): emit(A, vm, g)
    A(f"""
    s_lshl_b32 s{sT1}, s{sB}, 5
    s_add_u32 s{sT1}, s{sT1}, s{sH}
    s_lshr_b32 s{sT0}, s{sT1}, 1
    s_cmp_eq_u32 s{sBR}, 0
    s_cselect_b32 s{sT0}, s{sT0}, s{sT1}
    s_add_u32 s{sTO}, s{sT0}, s{sB}
    s_and_b32 s{sTO}, s{sTO}, 31
    s_lshl_b32 s{sTO}, s{sTO}, 13
    s_add_u32 s{sTO2}, s{sTO}, 4096
    s_lshl_b32 s{sT0}, s{sT0}, 18
    s_add_u32 s{SK}, s{SK}, s{sT0}
    s_addc_u32 s{SK+1}, s{SK+1}, 0
    s_add_u32 s{SV}, s{SV}, s{sT0}
    s_addc_u32 s{SV+1}, s{SV+1}, 0
    s_mov_b32 s{SK+2}, {KVN}
    s_mov_b32 s{SK+3}, 0x20000
    s_mov_b32 s{SV+2}, {KVN}
    s_mov_b32 s{SV+3}, 0x20000
    """)
    if CFG["share"]:
        A(f"""
        s_and_b32 s{sT0}, s{sW}, 1
        s_lshl_b32 s{sT1}, s{sBR}, 1
        s_or_b32 s{sT0}, s{sT0}, s{sT1}
        s_cmp_eq_u32 s{sT0}, 0
        s_cselect_b32 s{sCNT}, 0, s{SK+2}
        s_cmp_eq_u32 s{sT0}, 1
        s_cselect_b32 s{SK+2}, 0, s{SK+2}
        s_mov_b32 s{SV+2}, s{SK+2}
        """)
    part_srd(A)
    if CFG["tlb"]:
        A(f"""
        s_cmp_eq_u32 s{sBR}, 0
        s_cselect_b32 s72, s72, s82
        s_cselect_b32 s73, s73, s83
        s_mul_i32 s{sT0}, s{sH}, {128*1152}
        s_load_dword s64, s[72:73], s{sT0}
        s_load_dword s65, s[{SK}:{SK+1}], 0
        s_load_dword s66, s[{SV}:{SV+1}], 0
        s_mul_i32 s{sT1}, s{sW}, {(PART - 4096) // 3}
        s_load_dword s67, s[{SP}:{SP+1}], s{sT1}
        s_mul_i32 s{sT3}, s{sB}, {96*2304}
        s_load_dword s68, s[100:101], s{sT3}
        s_load_dword s69, s[{sDBG}:{sDBG+1}], 0
        s_mov_b32 s82, s72
        s_mov_b32 s83, s73
        """)
    A(f"""
    s_mov_b32 s{sTHR}, {f2u(CFG['thr'])}
    s_mov_b32 s{sSC}, {f2u(LOG2E * 128 ** -0.5)}
    s_mov_b32 s{sSC+1}, {f2u(LOG2E * 128 ** -0.5)}
    v_bfe_u32 v1, v{vLane}, 4, 1          ; dsub
    v_lshrrev_b32 v2, 5, v{vLane}         ; h
    v_bfe_u32 v3, v{vLane}, 2, 2          ; r
    v_and_b32 v4, 3, v{vLane}             ; c
    v_lshl_add_u32 v30, v2, 2, v3
    v_lshlrev_b32 v30, 8, v30
    v_lshl_add_u32 v30, v1, 5, v30
    v_lshl_add_u32 v30, v4, 3, v30
    s_and_b32 s{sT0}, s{sW}, 2
    s_cmp_eq_u32 s{sBR}, {0 if CFG['share'] else 7}
    s_cselect_b32 s{sT0}, s{sT0}, s{sW}
    s_mul_i32 s{sKD}, s{sT0}, {REG}
    s_add_u32 s{sT0}, s{sKD}, {V1O}
    v_add_u32 v30, s{sT0}, v30
    """)
    for db in range(4):
        A(f"v_xor_b32 v31, {db}, v3")
        A(f"v_lshl_add_u32 v{vVr+db}, v31, 6, v30")
    A(f"""
    v_lshl_add_u32 v30, v2, 3, v3
    v_lshlrev_b32 v30, 8, v30
    v_lshl_add_u32 v30, v1, 5, v30
    v_and_b32 v31, 1, v4
    v_lshl_add_u32 v30, v31, 4, v30
    v_lshrrev_b32 v31, 1, v4
    v_lshl_add_u32 v30, v31, 3, v30
    """)
    for db in range(4):
        A(f"v_xor_b32 v31, {db}, v3")
        A(f"v_lshl_add_u32 v31, v31, 6, v30")
        A(f"v_add_u32 v{vWr+db}, s{sRG}, v31")
    A(f"""
    v_lshl_add_u32 v31, v2, 3, v3
    v_lshlrev_b32 v31, 7, v31
    v_sub_u32 v30, v30, v31
    v_add_u32 v30, s{sRG}, v30
    v_lshrrev_b32 v31, 1, v3
    v_lshl_add_u32 v{vHr}, v31, 6, v30
    v_xor_b32 v31, 1, v31
    v_lshl_add_u32 v{vHr+1}, v31, 6, v30
    v_and_b32 v1, 31, v{vLane}
    v_bfe_u32 v3, v{vLane}, 1, 3
    v_xor_b32 v3, v3, v2
    s_lshl_b32 s{sT0}, s{sKR}, 2
    v_xor_b32 v3, s{sT0}, v3
    v_lshlrev_b32 v30, 7, v1
    v_add_u32 v30, {XB}, v30
    """)
    for s in range(4):
        A(f"v_xor_b32 v31, {2*s}, v3")
        A(f"v_lshl_add_u32 v{vXr+s}, v31, 4, v30")
    A(f"""
    v_lshrrev_b32 v3, 2, v1
    v_mul_u32_u24 v3, 1088, v3
    v_lshl_add_u32 v3, v4, 8, v3
    v_add_u32 v3, s{sKD}, v3
    v_xor_b32 v30, v2, v4
    v_lshl_add_u32 v{vKr}, v30, 4, v3
    v_xor_b32 v30, 2, v30
    v_lshl_add_u32 v{vKr+1}, v30, 4, v3
    """)
    if CFG["q16"]:
        A(f"""
        v_lshrrev_b32 v1, 4, v{vLane}          ; kq
        v_bfe_u32 v2, v{vLane}, 2, 2           ; r
        v_lshl_add_u32 v30, v1, 3, v2
        v_lshlrev_b32 v30, 8, v30
        v_and_b32 v31, 1, v{vLane}
        v_lshl_add_u32 v30, v31, 3, v30
        v_add_u32 v30, s{sRG}, v30
        v_bfe_u32 v31, v{vLane}, 1, 1
        v_lshl_add_u32 v31, v2, 2, v31
        v_and_b32 v2, 1, v1
        v_lshl_add_u32 v31, v2, 1, v31
        """)
        for dt in range(8):
            A(f"v_xor_b32 v2, {2*dt}, v31")
            A(f"v_lshl_add_u32 v{16+dt}, v2, 4, v30")
        A(f"""
        v_and_b32 v2, 15, v{vLane}
        v_lshlrev_b32 v30, 7, v2
        v_add_u32 v30, {XB}, v30
        v_lshrrev_b32 v2, 1, v2
        v_xor_b32 v2, v2, v1
        v_lshl_add_u32 v24, v2, 4, v30
        v_xor_b32 v2, 4, v2
        v_lshl_add_u32 v25, v2, 4, v30
        """)
    A(f"s_and_b32 s{sT0}, s{sB}, 1")
    A(f"s_lshl_b32 s{sT0}, s{sT0}, 7")
    A(f"v_add_u32 v47, s{sT0}, v47")
    for p in range(4): A(f"v_add_u32 v{vWoX+p}, {p*(8*1152-1024)}, v47")
    for g in (h_gran(2) if CFG["coop"] else wq_gran(2)): emit(A, vm, g)
    allinit = CFG['own'] or CFG['coop']
    if CFG["fuse"]:
        A(f"""
        s_lshl_b32 s94, s{sBR}, 4
        s_add_u32 s94, s94, s{sB}
        s_or_b32 s{sT0}, s{sW if allinit else sBR}, s{sW}
        s_cmp_lg_u32 s{sT0}, 0
        s_cbranch_scc1 L_noinit
        s_lshl_b32 s{sT0}, s94, 3
        s_add_u32 s{sT0}, s{sT0}, s{sJJ}
        s_lshl_b32 s{sT0}, s{sT0}, 8
        s_add_u32 s{sT0}, s{sT0}, {FLAG_OFF}
        v_lshlrev_b32 v48, 2, v{vLane}
        v_add_u32 v48, s{sT0}, v48
        v_mov_b32 v49, 0
        global_store_dword v48, v49, s[{sWS}:{sWS+1}] sc1
        L_noinit:
        """)
    def qp_reads(n):
        fb = n & 1
        L = []
        for qb in range(3):
            L.append(f"ds_read_b128 {ar(aXf + fb*12 + qb*4, 4)}, v{vXr + n % 4} offset:{((n // 4) % 2) * 12288 + qb*4096}")
        for db in range(4):
            for u in range(2):
                L.append(f"ds_read_b64_tr_b16 {ar(aWf + fb*16 + db*4 + u*2, 2)}, v{vWr+db} offset:{(n % R) * 4096 + u * 1024}")
        return L
    init2 = [f"s_or_b32 s{sT0}, s{sW if allinit else sBR}, s{sW}", f"s_cmp_lg_u32 s{sT0}, 0", "s_cbranch_scc1 L_noinit2",
             "s_waitcnt vmcnt(0)",
             f"s_lshl_b32 s{sT0}, s94, 3", f"v_mov_b32 v48, s{sT0}", "v_mov_b32 v49, 1", "s_mov_b64 exec, 1",
             f"global_atomic_add v48, v49, s[{sDBG}:{sDBG+1}] sc1", "s_mov_b64 exec, -1", "L_noinit2:"]
    def k_read(s, slot, sh=False):
        return f"ds_read_b128 {ar(aK+4*s,4)}, v{vKr+(s&1)} offset:{(KVD if slot==0 else (REG if sh else 0)) + 64*(s>>1)}"
    wo_srd = [f"s_cmp_eq_u32 s{sBR}, 0", f"s_cselect_b32 s{SWO}, s72, s82", f"s_cselect_b32 s{SWO+1}, s73, s83",
              f"s_mov_b32 s{SWO+2}, {0 if CFG.get('nowo') else 4096*1152}", f"s_mov_b32 s{SWO+3}, 0x20000"]
    if CFG["coop"]:
        aHB = 144
        def h_reads(m):
            fb = m & 1
            L = [f"ds_read_b64_tr_b16 {ar(aWf + fb*16 + (kk*2+db)*4 + u*2, 2)}, v{vHr+db} offset:{(m % 4)*4096 + (16*kk+4*u)*128}"
                 for kk in range(2) for db in range(2) for u in range(2)]
            X = [f"ds_read_b128 {ar(aHB + fb*24 + kk*12 + qb*4, 4)}, v{vXr + 2*(m%2) + kk} offset:{((m // 2) % 2) * 12288 + qb*4096}"
                 for kk in range(2) for qb in range(3)]
            return L[:4] + X[:3] + L[4:] + X[3:]
        A(f"""
        s_mov_b32 s{sKR}, s{SK+2}
        s_cmp_eq_u32 s{sBR}, 0
        s_cselect_b32 s{SK+2}, 0, s{SK+2}
        s_mov_b32 s{SV+2}, s{SK+2}
        """)
        emit(A, vm, [("wait", ["x0", "h0"], ""), "s_barrier"])
        stamp(A, 11)
        for r in h_reads(0): A(r)
        hq = []
        for m in range(3, 18):
            for g in h_gran(m): hq.append((max(0, m - 4), g))
        for p in range(8): hq.append((0, k_piece(p, 0, tag="K0")))
        for p in range(8): hq.append((0, v_piece(p, 0, tag="V0", force_m0=True)))
        for m in range(18):
            fb = m & 1
            mf = []
            for kk in range(2):
                for db in range(2):
                    for qb in range(3):
                        acc = vr(64 + (qb*2+db)*16, 16)
                        mf.append(f"v_mfma_f32_32x32x16_bf16 {acc}, {ar(aWf+fb*16+(kk*2+db)*4,4)}, {ar(aHB+fb*24+kk*12+qb*4,4)}, {'0' if (m == 0 and kk == 0) else acc}")
            gaps = {}
            dma = []
            if m < 17:
                tags = [f"h{m+1}"] + ([f"x{m//2+1}"] if m % 2 == 1 else [])
                gaps[-1] = [("wait", tags, "lgkmcnt(0)")]
                if m % 2 == 1:
                    gaps[-1].append("s_barrier")
                    if m // 2 + 2 < 9: dma += x_chunk(m // 2 + 2)
                rd = h_reads(m + 1)
                for i, r in enumerate(rd): gaps.setdefault(i * 11 // len(rd), []).append(r)
            else:
                gaps[-1] = ["s_waitcnt lgkmcnt(0)", "s_barrier"]
            while hq and hq[0][0] <= m and len(dma) < CFG["hbud"]:
                dma.append(hq.pop(0)[1])
            for i, g in enumerate(dma): gaps.setdefault((i * 12) // len(dma), []).extend(g)
            if m == 4: gaps.setdefault(11, []).extend(init2)
            if m == 13:
                gaps.setdefault(11, []).extend([f"s_lshl_b32 s{sT0}, s{sB}, 3", f"s_add_u32 s{sT0}, s{sT0}, 128", f"v_mov_b32 v50, s{sT0}",
                    ("vm", "ic", f"global_load_dword v51, v50, s[{sDBG}:{sDBG+1}] sc1")])
            interleave(A, mf, gaps, vm)
        assert not hq
        if CFG.get("hst"): stamp(A, 8)
        hconv = []
        for qb in range(3):
            for db in range(2):
                src = 64 + (qb*2+db)*16
                hconv += [f"v_pk_mul_f32 {vr(src+2*i,2)}, {vr(src+2*i,2)}, s[{sSC}:{sSC+1}]" for i in range(8)]
                hconv += [f"v_cvt_pk_bf16_f32 v{vQ+32*qb+8*db+i}, v{src+2*i}, v{src+2*i+1}" for i in range(8)]
        A(f"""
        s_lshl_b32 s{sT0}, s{sB}, 5
        s_add_u32 s{sT0}, s{sT0}, s{sH}
        s_mul_i32 s{sT0}, s{sT0}, 12288
        s_add_u32 s{sT0}, s{sT0}, {QOFF}
        v_lshlrev_b32 v56, 4, v{vLane}
        v_add_u32 v56, s{sT0}, v56
        v_add_u32 v57, 4096, v56
        v_add_u32 v58, 8192, v56
        s_lshl_b32 s{sT0}, s{sB}, 3
        s_add_u32 s{sT0}, s{sT0}, s{sJJ}
        s_lshl_b32 s{sT0}, s{sT0}, 8
        s_lshl_b32 s{sT1}, s{sW}, 2
        s_add_u32 s{sT0}, s{sT0}, s{sT1}
        s_add_u32 s{sT0}, s{sT0}, {FLAG_OFF + 128*256 + 128}
        v_mov_b32 v59, s{sT0}
        s_cmp_eq_u32 s{sBR}, 0
        s_cbranch_scc1 L_hA
        """)
        vmB = VM(); vmB.ops = list(vm.ops)
        rest = [tile_advance() + k_piece(0, 1, tag="K1")] + [k_piece(p, 1, tag="K1") for p in range(1, 8)]
        rest += [v_piece(p, 1, tag="V1", force_m0=True) for p in range(8)]
        rest[-1] = rest[-1] + tile_advance()
        emit(A, vmB, wo_srd)
        for i, o in enumerate(hconv):
            A(o)
            if i % 6 == 0 and rest: emit(A, vmB, rest.pop(0))
        assert not rest
        for i in range(192): A(f"v_accvgpr_write_b32 a{aO+i}, 0")
        emit(A, vmB, [("wait", ["K0"], "")])
        for sx in range(8): A(k_read(sx, 0))
        A(f"""
        s_mov_b32 s{sT1}, 0
        L_hpoll:
        global_load_dword v60, v59, s[{sWS}:{sWS+1}] sc1
        s_waitcnt vmcnt(0)
        v_cmp_ne_u32 vcc, 1, v60
        s_add_u32 s{sT1}, s{sT1}, 1
        s_cbranch_vccz L_hgo
        s_sleep 2
        s_cmp_lt_u32 s{sT1}, 0x80000
        s_cbranch_scc1 L_hpoll
        L_hgo:
        """)
        for qb in range(3):
            for j in range(4):
                A(f"global_load_dwordx4 {vr(vQ+32*qb+16+4*j,4)}, v{56+qb}, s[{sWS}:{sWS+1}] offset:{1024*j} sc1")
        stamp(A, 1)
        A("s_waitcnt vmcnt(0)")
        A("s_branch L_qdone")
        A(f"""
        L_hA:
        s_mov_b32 s{SX}, s64
        s_mov_b32 s{SX+1}, s65
        s_mov_b32 s{SWQ}, s70
        s_mov_b32 s{SWQ+1}, s71
        s_sub_u32 s{sWQ0}, s{sWQ0}, 128
        s_mov_b32 s{SK+2}, s{sKR}
        s_mov_b32 s{SV+2}, s{sKR}
        """)
        for k, o in enumerate(hconv):
            A(o)
            if k % 16 == 15:
                qb, db = (k // 16) // 2, (k // 16) % 2
                for hf in range(2):
                    A(f"global_store_dwordx4 v{56+qb}, {vr(vQ+32*qb+8*db+4*hf,4)}, s[{sWS}:{sWS+1}] offset:{1024*(2*db+hf)} sc1")
        vm = VM()
        vm.add("qs")
        for g in x_chunk(0) + wq_gran(0): emit(A, vm, g)
        emit(A, vm, [("wait", ["qs"], "")])
        A(f"""
        v_readfirstlane_b32 s{sT0}, v51
        s_mov_b32 s{sT1}, 0
        s_cmp_ge_u32 s{sT0}, 8
        s_cbranch_scc1 L_hok
        L_hipoll:
        global_load_dword v51, v50, s[{sDBG}:{sDBG+1}] sc1
        s_waitcnt vmcnt(0)
        v_readfirstlane_b32 s{sT0}, v51
        s_add_u32 s{sT1}, s{sT1}, 1
        s_cmp_ge_u32 s{sT0}, 8
        s_cbranch_scc1 L_hok
        s_sleep 4
        s_cmp_lt_u32 s{sT1}, 0x80000
        s_cbranch_scc1 L_hipoll
        L_hok:
        v_mov_b32 v60, 1
        s_mov_b64 exec, 1
        global_store_dword v59, v60, s[{sWS}:{sWS+1}] sc1
        s_mov_b64 exec, -1
        """)
        vm.add("fl")
        if CFG.get("hst"): stamp(A, 9)
        for g in wq_gran(1) + wq_gran(2): emit(A, vm, g)
    def q16_reads(m):
        fb = m & 1
        X = [f"ds_read_b128 {ar(192 + fb*24 + qt*4, 4)}, v{24 + m % 2} offset:{((m // 2) % 2) * 12288 + qt*2048}" for qt in range(6)]
        L = [f"ds_read_b64_tr_b16 {ar(128 + fb*32 + dt*4 + u*2, 2)}, v{16+dt} offset:{((2*m) % R) * 4096 + u * 1024}"
             for dt in range(8) for u in range(2)]
        return L[:2] + X + L[2:]
    if CFG["q16"]:
        for g in wq_gran(3): emit(A, vm, g)
    emit(A, vm, [("wait", ["x0", "w1" if CFG["q16"] else "w0"], ""), "s_barrier"])
    if not CFG["coop"]: stamp(A, 11)
    for r in (q16_reads(0) if CFG["q16"] else qp_reads(0)): A(r)
    wqq = []
    for n in range(4 if CFG["q16"] else 3, 36):
        for g in wq_gran(n): wqq.append((max(0, n - R), g))
    for (kind, slot) in (("k", 0), ("v", 0), ("k", 1), ("v", 1)):
        for p in range(8):
            if kind == "k":
                lo = (K0O if slot == 0 else K1O) + 1088 * p
                g = k_piece(p, slot, tag=f"K{slot}")
            else:
                lo = (V0O if slot == 0 else V1O) + 1024 * p
                g = v_piece(p, slot, tag=f"V{slot}", force_m0=True)
                if p == 7: g = g + tile_advance()
            slots = [sl for sl in range(R) if lo < (sl + 1) * 4096 and lo + 1024 > sl * 4096]
            avail = max([max(n for n in range(36) if n % R == sl) for sl in slots] + [0])
            if CFG["share"] and kind == "v" and p == 7:
                if slot == 0: g = g + [f"s_mov_b32 s{SK+2}, s{sCNT}", f"s_mov_b32 s{SV+2}, s{sCNT}"]
                else: g = g + [f"s_mov_b32 s{SK+2}, {KVN}", f"s_mov_b32 s{SV+2}, {KVN}"]
            avail = max(avail, CFG["kvstart"])
            wqq.append((avail, g))
    zero_o = [f"v_accvgpr_write_b32 a{aO+i}, 0" for i in range(192)]
    if CFG["q16"]:
        zero_o = zero_o[:128]
        for m in range(18):
            fb = m & 1
            mf = []
            for dt in range(8):
                for qt in range(6):
                    acc = vr(vQA + (((qt // 2) * 8 + dt) * 2 + qt % 2) * 4, 4)
                    mf.append(f"v_mfma_f32_16x16x32_bf16 {acc}, {ar(128+fb*32+dt*4,4)}, {ar(192+fb*24+qt*4,4)}, {acc if m > 0 else '0'}")
            fill = []
            dma = []
            if m < 17:
                tags = [f"w{2*m+3}"] + ([f"x{m//2+1}"] if m % 2 == 1 else [])
                pre = [("wait", tags, "lgkmcnt(0)")]
                if m % 2 == 1:
                    pre.append("s_barrier")
                    if m // 2 + 2 < 9: dma += x_chunk(m // 2 + 2)
                rd = q16_reads(m + 1)
            else:
                pre = ["s_waitcnt lgkmcnt(0)"]; rd = []
            if m == 0: dma += x_chunk(1)
            while wqq and wqq[0][0] <= 2 * m + 1 and len(dma) < 2 * CFG["qbud"]:
                dma.append(wqq.pop(0)[1])
            gaps = {-1: pre}
            if m == 0:
                gaps[-1] = ["s_waitcnt lgkmcnt(0)"]
                gaps[36] = [("wait", ["w3"], "")]
                for i, r in enumerate(rd): gaps.setdefault(36 + i // 2, []).append(r)
                for i, g in enumerate(dma): gaps.setdefault(37 + (i * 11) // len(dma), []).extend(g)
            else:
                for i, r in enumerate(rd): gaps.setdefault(2 * i, []).append(r)
                for i, g in enumerate(dma): gaps.setdefault(2 * ((i * 24) // len(dma)) + 1, []).extend(g)
            if m == 17: zero_o += [f"v_accvgpr_write_b32 a{128+i}, 0" for i in range(32)]
            if CFG["kvpf"]:
                for n in (2 * m, 2 * m + 1):
                    if CFG["kvs"] <= n < CFG["kve"]:
                        tot = 4 * CFG["kvpf"]; span = CFG["kve"] - CFG["kvs"]
                        for i in range((n - CFG["kvs"]) * tot // span, (n + 1 - CFG["kvs"]) * tot // span):
                            g = [f"v_lshlrev_b32 v61, 6, v{vLane}"] if i == 0 else []
                            g += [f"s_add_u32 s{sT0}, s{sTO}, {(CFG['kv0'] + i // 4) * 8192 + (i % 2) * 4096}", f"s_and_b32 s{sT0}, s{sT0}, 0x3ffff",
                                  ("vm", "pf", f"buffer_load_dword v62, v61, {srd(SK if i % 4 < 2 else SV)}, s{sT0} offen {CFG['kvf']}")]
                            gaps.setdefault(46 - 2 * (n % 2), []).extend(g)
            if m == 3 and CFG["fuse"]: gaps.setdefault(47, []).extend(init2)
            if m >= 4:
                for i in range(48):
                    if zero_o and i not in gaps: gaps[i] = [zero_o.pop(0)]
            interleave(A, mf, gaps, vm)
            if m in (1, 8) and not (CFG.get("midst") or CFG.get("gst")): stamp(A, 8 if m == 1 else 9)
    for n in range(0 if CFG["q16"] else 36):
        fb = n & 1
        mf = []
        for db in range(4):
            for qb in range(3):
                T = qb * 4 + db
                c = vr(vQA+16*T, 16) if n > 0 else "0"
                mf.append(f"v_mfma_f32_32x32x16_bf16 {vr(vQA+16*T,16)}, {ar(aWf+fb*16+db*4,4)}, {ar(aXf+fb*12+qb*4,4)}, {c}")
        gaps = {}
        pre = []
        dma = []
        if n < 35:
            tags = [f"w{n+1}"]
            if n % 4 == 3: tags.append(f"x{n//4+1}")
            pre.append(("wait", tags, "lgkmcnt(0)"))
            if n % 4 == 3:
                pre.append("s_barrier")
                if n // 4 + 2 < 9: dma += x_chunk(n // 4 + 2)
            for i, r in enumerate(qp_reads(n + 1)): gaps.setdefault(i, []).append(r)
        else:
            pre += ["s_waitcnt lgkmcnt(0)"]
        gaps[-1] = pre
        if n == 0:
            dma += [wqq.pop(0)[1] for _ in range(4)] + x_chunk(1)
        while wqq and wqq[0][0] <= n and len(dma) < CFG["qbud"]:
            dma.append(wqq.pop(0)[1])
        for i, g in enumerate(dma):
            gaps.setdefault((i * 12) // len(dma), []).extend(g)
        if CFG["wopf"] == -4 and n == CFG["pfs"]:
            gaps.setdefault(11, []).extend([
                f"s_cmp_eq_u32 s{sBR}, 0", f"s_cselect_b32 s72, s72, s82", f"s_cselect_b32 s73, s73, s83",
                f"s_lshl_b32 s{sT0}, s{sB}, 2", f"s_add_u32 s{sT0}, s{sT0}, s{sW}", f"s_mul_i32 s{sT0}, s{sT0}, {72*128}",
                f"s_mul_i32 s{sT1}, s{sJJ}, {512*1152}", f"s_add_u32 s{sT0}, s{sT0}, s{sT1}", f"v_lshlrev_b32 v40, 7, v{vLane}",
                f"v_add_u32 v40, s{sT0}, v40",
                ("vm", "pf", f"global_load_dword v41, v40, s[72:73] nt"),
                "s_mov_b64 exec, 0xff",
                f"v_add_u32 v45, 8192, v40",
                ("vm", "pf", f"global_load_dword v42, v45, s[72:73] nt"),
                "s_mov_b64 exec, -1"])
        if CFG["wopf"] == -4 and n == CFG["pfs"] + 5:
            gaps.setdefault(11, []).extend([
                ("vm", "pf", f"global_load_dword v43, v40, s[72:73] sc1"),
                "s_mov_b64 exec, 0xff",
                ("vm", "pf", f"global_load_dword v44, v45, s[72:73] sc1"),
                "s_mov_b64 exec, -1"])
        if CFG["kvpf"] and n >= CFG["kvs"] and n < CFG["kve"]:
            tot = 4 * CFG["kvpf"]
            span = CFG["kve"] - CFG["kvs"]
            lo, hi = (n - CFG["kvs"]) * tot // span, (n + 1 - CFG["kvs"]) * tot // span
            for k, i in enumerate(range(lo, hi)):
                g = []
                if i == 0: g.append(f"v_lshlrev_b32 v61, 6, v{vLane}")
                g += [f"s_add_u32 s{sT0}, s{sTO}, {(CFG['kv0'] + i // 4) * 8192 + (i % 2) * 4096}", f"s_and_b32 s{sT0}, s{sT0}, 0x3ffff",
                      ("vm", "pf", f"buffer_load_dword v62, v61, {srd(SK if i % 4 < 2 else SV)}, s{sT0} offen {CFG['kvf']}")]
                gaps.setdefault(11 - 4 * k, []).extend(g)
        if n == CFG["tls"]:
            gaps.setdefault(5, []).extend([f"v_mov_b32 v50, s{sTO}",
                ("vm", "tl", f"global_load_dword v51, v50, s[{SK}:{SK+1}] nt"), ("vm", "tl", f"global_load_dword v52, v50, s[{SV}:{SV+1}] nt")])
        if n == 6 and CFG["fuse"] and not CFG["coop"]: gaps.setdefault(11, []).extend(init2)
        if n >= 8 and zero_o:
            for i in range(12):
                if zero_o: gaps.setdefault(i, []).append(zero_o.pop(0))
        interleave(A, mf, gaps, vm)
        if n in (3, 17) and not (CFG.get("midst") or CFG.get("gst") or CFG.get("sst") or CFG.get("hst")): stamp(A, 8 if n == 3 else 9)
    assert not zero_o
    kvq = [g for _, g in wqq]
    stamp(A, 1)
    def k_read(s, slot, sh=False):
        return f"ds_read_b128 {ar(aK+4*s,4)}, v{vKr+(s&1)} offset:{(KVD if slot==0 else (REG if sh else 0)) + 64*(s>>1)}"
    def v_read(f, u, slot, sh=False):
        ks, db = f // 4, f % 4
        return f"ds_read_b64_tr_b16 {ar(aV+(db*2+ks)*4+2*u,2)}, v{vVr+db} offset:{(KVD if slot==0 else (REG if sh else 0)) + (16*ks+8*u)*256}"
    A(f"""
    s_cmp_eq_u32 s{sBR}, 0
    s_cselect_b32 s{SWO}, s72, s82
    s_cselect_b32 s{SWO+1}, s73, s83
    s_mov_b32 s{SWO+2}, {0 if CFG.get('nowo') else 4096*1152}
    s_mov_b32 s{SWO+3}, 0x20000
    s_nop 7
    """)
    for j in range(95, -1, -1):
        s0 = vQA + 2 * j
        A(f"v_pk_mul_f32 {vr(s0,2)}, {vr(s0,2)}, s[{sSC}:{sSC+1}]")
        if j < 95:
            A(f"v_cvt_pk_bf16_f32 v{vQ+j+1}, v{vQA+2*j+2}, v{vQA+2*j+3}")
        if j % (4 if CFG["kvstart"] < 34 else 2) == 0 and kvq: emit(A, vm, kvq.pop(0))
        if j == 8:
            assert not kvq
            emit(A, vm, [("wait", ["K0"], "")] + (["s_barrier"] if CFG["share"] else []))
            for s in range(8): A(k_read(s, 0))
    A(f"v_cvt_pk_bf16_f32 v{vQ}, v{vQA}, v{vQA+1}")
    if CFG["q16"]:
        for g in range(23, -1, -1):
            A(f"v_permlane16_swap_b32 v{vQ+4*g}, v{vQ+4*g+2}")
            A(f"v_permlane16_swap_b32 v{vQ+4*g+1}, v{vQ+4*g+3}")
    A("L_qdone:")
    zz = [f"v_accvgpr_write_b32 a{aV+i}, 0" for i in range(32)] + [f"v_mov_b32 v{vP+16+i}, 0" for i in range(8)] + [f"v_mov_b32 v{vL+i}, 0" for i in range(3)]
    if CFG["q16"]: zz += [f"v_accvgpr_write_b32 a{160+i}, 0" for i in range(32)]
    A("s_nop 0")
    A("s_waitcnt lgkmcnt(0)")
    def qk(qb, s, cinit=None):
        c = vr(vS+16*qb, 16) if s > 0 else (cinit if cinit is not None else vr(vNM+16*qb, 16))
        return f"v_mfma_f32_32x32x16_bf16 {vr(vS+16*qb,16)}, {ar(aK+4*s,4)}, {vr(vQ+32*qb+4*s,4)}, {c}"
    def pv(qb, m):
        ks, db = m // 4, m % 4
        o = ar(aO + (qb*4+db)*16, 16)
        return f"v_mfma_f32_32x32x16_bf16 {o}, {ar(aV+(db*2+ks)*4,4)}, {vr(vP+8*qb+4*ks,4)}, {o}"
    def rowmax(qb, dst, tmp):
        s = vS + 16 * qb
        L = [f"v_max3_f32 v{dst}, v{s}, v{s+1}, v{s+2}"]
        for i in range(3, 15, 2):
            L.append(f"v_max3_f32 v{dst}, v{dst}, v{s+i}, v{s+i+1}")
        L.append(f"v_max_f32 v{dst}, v{dst}, v{s+15}")
        L += [f"v_mov_b32 v{tmp}, v{dst}", "s_nop 1", f"v_permlane32_swap_b32 v{dst}, v{tmp}", "s_nop 1",
              f"v_max_f32 v{dst}, v{dst}, v{tmp}"]
        return L
    def init_ops(qb):
        L = rowmax(qb, vT, vT+1)
        L += [f"v_sub_f32 v{vNM+16*qb+i}, 0, v{vT}" for i in range(16)]
        if qb == 0: L += [f"v_sub_f32 v{vS+i}, v{vS+i}, v{vT}" for i in range(16)]
        return L
    mf = [qk(qb, s, cinit="0") for qb in range(3) for s in range(8)]
    gaps = {}
    for i, o in enumerate(zz): gaps.setdefault(i * 10 // len(zz), []).append(o)
    gaps[9].append("s_nop 1")
    ops = init_ops(0)
    for i, o in enumerate(ops): gaps.setdefault(10 + i * 8 // len(ops), []).append(o)
    ops = init_ops(1)
    for i, o in enumerate(ops): gaps.setdefault(19 + i * 5 // len(ops), []).append(o)
    interleave(A, mf, gaps)
    A("s_nop 7")
    for o in init_ops(2): A(o)
    stamp(A, 2)
    sites = []
    def softmax_ops(qb, site):
        s = vS + 16 * qb
        ops = []
        for i in range(16):
            ops.append((8, f"v_exp_f32 v{vE+i%8}, v{s+i}"))
            if i == 2: ops.append((4, f"v_add_f32 v{vPS}, v{vE}, v{vE+1}"))
            elif i > 2: ops.append((4, f"v_add_f32 v{vPS}, v{vPS}, v{vE+(i-1)%8}"))
            if i >= 2 and i % 2 == 0:
                ops.append((4, f"v_cvt_pk_bf16_f32 v{vP+8*qb+(i-2)//2}, v{vE+(i-2)%8}, v{vE+(i-1)%8}"))
        ops.append((4, f"v_add_f32 v{vPS}, v{vPS}, v{vE+7}"))
        ops.append((4, f"v_cvt_pk_bf16_f32 v{vP+8*qb+7}, v{vE+6}, v{vE+7}"))
        tail = [f"v_cmp_nge_f32 vcc, s{sTHR}, v{vPS}", f"s_cbranch_vccnz L_tramp_{site}", f"L_back_{site}:",
                f"v_add_f32 v{vL+qb}, v{vL+qb}, v{vPS}"]
        sites.append((site, qb))
        return ops, tail
    def double_phase(mf, qb_sm, site, extra):
        ops, tail = softmax_ops(qb_sm, site)
        gaps = {k: list(v) for k, v in extra.items()}
        total = sum(c for c, _ in ops)
        g0, g1 = 2, len(mf) - 1
        acc = 0
        for c, o in ops:
            g = g0 + min(g1 - g0 - 1, int(acc * (g1 - g0) / total))
            gaps.setdefault(g, []).append(o)
            acc += c
        gaps.setdefault(len(mf) - 1, []).extend(tail)
        n = 3
        for k in (-1, ("pre", 0), 0, ("pre", 1), 1, ("pre", 2)):
            n += len([x for x in gaps.get(k, []) if not x.endswith(":")])
        n += 3
        for x in gaps[2]:
            if x.startswith("v_exp"): break
            n += 1
        if n < 12:
            gaps.setdefault(1, []).append(f"s_nop {12 - n - 1}")
        interleave(A, mf, gaps)
    def wox_piece(p):
        r = []
        if p % 4 == 0:
            g = p // 4
            r += [f"s_add_u32 m0, s{sRG}, {RINGO + 1024 * p}", f"s_add_u32 s{sT2}, s{sX0 if g % 2 == 0 else sWC}, {32 * 1152 * (g // 2)}"]
        return r + [f"buffer_load_dwordx4 v{vWoX + p % 4}, {srd(SWO)}, s{sT2} offen offset:{1024 * (p % 4)} {CFG['wof']} lds"]
    TW = list(range(64, 76))
    TL = list(range(76, 84)) + [8, 9, 10, 11]
    def tables():
        L = [f"s_lshr_b32 s{sCI}, s{sB}, 1", f"s_mul_i32 s{sCI}, s{sCI}, 3", f"s_lshr_b32 s{sCI}, s{sCI}, 1",
             f"s_lshl_b32 s{sXC}, s{sW}, 2", f"s_add_u32 s{sXC}, s{sXC}, 4"]
        G = [L]
        for i in range(12):
            G.append([f"s_add_u32 s{sT1}, s{sCI}, s{sXC}", f"s_and_b32 s{sT1}, s{sT1}, 15",
                      f"s_add_u32 s{sCI}, s{sCI}, 1", f"s_cmp_eq_u32 s{sCI}, 12", f"s_cselect_b32 s{sCI}, 0, s{sCI}"])
            G.append([f"s_mul_i32 s{TW[i]}, s{sT1}, {32*1152}", f"s_add_u32 s{TW[i]}, s{TW[i]}, s{sWQ0}",
                      f"s_lshr_b32 s{sT0}, s{sT1}, 2", f"s_and_b32 s{sT1}, s{sT1}, 3", f"s_mul_i32 s{TL[i]}, s{sT0}, {REG}"])
            G.append([f"s_mul_i32 s{sT3}, s{sT1}, 6144", f"s_add_u32 s{TL[i]}, s{TL[i]}, s{sT3}",
                      f"s_mul_i32 s{sT0}, s{sT0}, 6144", f"s_add_u32 s{sT0}, s{sT0}, {XB}",
                      f"s_cmp_eq_u32 s{sT1}, 3", f"s_cselect_b32 s{TL[i]}, s{sT0}, s{TL[i]}"])
        return G
    def tile(par, mode, tagp, sh):
        ex = [dict(), dict(), dict()]
        def put(gam, instrs): ex[gam // 16].setdefault(gam % 16, []).extend(instrs)
        bar = ["s_barrier"] if sh else []
        if CFG.get("trace"):
            put(41, ["s_memrealtime s[92:93]"])
            put(47, ["s_waitcnt lgkmcnt(0)", "s_mov_b32 m0, s91", "v_writelane_b32 v159, s92, m0", "s_add_u32 s91, s91, 1"])
        ex[0][-1] = ["s_waitcnt vmcnt(%d)" % (0 if mode == "last" else (8 if sh else 16))] + bar
        for k in range(16):
            put(k // 2 if k < 4 else k - 2, [v_read(k // 2, k % 2, par, sh)])
        ex[1][("pre", 0)] = ["s_waitcnt lgkmcnt(4)"]
        ex[1][("pre", 6)] = ["s_waitcnt lgkmcnt(0)"]
        if mode != "last":
            if sh: n = 8 if mode == "steady" else 4
            else: n = 19 if mode == "steady" else 8
            ex[2][-1] = ["s_waitcnt vmcnt(%d)" % n] + bar
            for s in range(8): put(32 + s // 4, [k_read(s, par ^ 1, sh)])
            ex[2][("pre", 8)] = ["s_waitcnt lgkmcnt(0)"]
        else:
            ex[2][-1] = bar
        if mode == "steady":
            if sh:
                for p in range(4):
                    th = [f"s_waitcnt vmcnt({CFG['da']})"] if CFG["da"] >= 0 else []
                    put(6 * p + 1, th + k_piece(p, par, shared=True))
                    th = [f"s_waitcnt vmcnt({CFG['da'] + CFG['dv']})"] if CFG["da"] >= 0 else []
                    put(34 + 4 * p, th + v_piece(p, par, shared=True))
                put(47, tile_advance(True))
            else:
                for p in range(8):
                    put(3 * p, k_piece(p, par))
                    put(24 + 3 * p, v_piece(p, par))
                put(46, tile_advance())
        if mode == "prelast":
            for i, g in enumerate(tables()): put(i + 3, g)
            if CFG["fuse"]:
                put(44, [f"s_lshl_b32 s{sT0}, s{sG}, 3", f"v_mov_b32 v157, s{sT0}",
                         f"global_load_dword v158, v157, s[{sDBG}:{sDBG+1}] sc1"])
        if mode == "last":
            for p in range(16): put(2 * p, wox_piece(p))
        double_phase([pv(2, m) for m in range(8)] + [qk(1, s) for s in range(8)], 0, f"{tagp}a", ex[0])
        double_phase([pv(0, m) for m in range(8)] + [qk(2, s) for s in range(8)], 1, f"{tagp}b", ex[1])
        double_phase([pv(1, m) for m in range(8)] + ([qk(0, s) for s in range(8)] if mode != "last" else []), 2, f"{tagp}c", ex[2])
    A(f"s_mov_b32 s{sCNT}, 0")
    if CFG.get("trace"): A("s_mov_b32 s91, 0")
    A(f"""
    s_mul_i32 s{sWQ0}, s{sJJ}, {512*1152}
    s_lshl_b32 s{sT0}, s{sW}, 8
    s_add_u32 s{sWQ0}, s{sWQ0}, s{sT0}
    s_mul_i32 s{sWC}, s{sW}, {128*1152}
    s_add_u32 s{sWC}, s{sWC}, s{sWQ0}
    s_mul_i32 s{sX0}, s{sH}, {128*1152}
    s_add_u32 s{sX0}, s{sX0}, 1024
    s_and_b32 s{sT0}, s{sB}, 1
    s_lshl_b32 s{sT0}, s{sT0}, 7
    s_sub_u32 s{sX0}, s{sX0}, s{sT0}
    """)
    def attn_loop(sh):
        L = "A" if sh else "B"
        A(".p2align 6")
        A(f"L_main{L}:")
        tile(0, "steady", L + "s0", sh)
        tile(1, "steady", L + "s1", sh)
        if CFG["wopf"] >= 0:
            A(f"""
            s_cmp_lg_u32 s{sCNT}, {CFG["wopf"]}
            s_cbranch_scc1 L_nopf{L}
            s_lshl_b32 s{sT0}, s{sB}, 2
            s_add_u32 s{sT0}, s{sT0}, s{sW}
            s_mul_i32 s{sT0}, s{sT0}, {72*128}
            s_mul_i32 s{sT1}, s{sJJ}, {512*1152}
            s_add_u32 s{sT0}, s{sT0}, s{sT1}
            v_lshlrev_b32 v1, 6, v{vLane}
            buffer_load_dword v154, v1, {srd(SWO)}, s{sT0} offen {CFG['pff']}
            s_add_u32 s{sT0}, s{sT0}, 4096
            buffer_load_dword v155, v1, {srd(SWO)}, s{sT0} offen {CFG['pff']}
            buffer_load_dword v156, v1, {srd(SWO)}, s{sT0} offen offset:1024 {CFG['pff']}
            L_nopf{L}:
            """)
            if CFG["pf2"]:
                A(f"""
                s_cmp_lg_u32 s{sCNT}, {CFG["wopf"] + 1}
                s_cbranch_scc1 L_nopf2{L}
                buffer_load_dword v2, v1, {srd(SWO)}, s{sT0} offen sc1
                buffer_load_dword v3, v1, {srd(SWO)}, s{sT0} offen offset:1024 sc1
                L_nopf2{L}:
                """)
        if CFG.get("midst"):
            for idx, c in ((8, 4), (9, 9)):
                A(f"s_cmp_lg_u32 s{sCNT}, {c}")
                A(f"s_cbranch_scc1 L_nost{idx}{L}")
                stamp(A, idx)
                A(f"L_nost{idx}{L}:")
        A(f"""
        s_add_u32 s{sCNT}, s{sCNT}, 1
        s_cmp_lt_u32 s{sCNT}, 15
        s_cbranch_scc1 L_main{L}
        """)
        tile(0, "prelast", L + "p0", sh)
        tile(1, "last", L + "p1", sh)
    if CFG["share"]:
        A(f"""
        s_cmp_lg_u32 s{sBR}, 0
        s_cbranch_scc1 L_mainB
        s_and_b32 s{sT0}, s{sW}, 1
        s_mul_i32 s{sKL}, s{sT0}, 4352
        s_add_u32 s{sKL}, s{sKL}, s{sKVB}
        s_lshl_b32 s{sCX}, s{sT0}, 12
        s_add_u32 s{sVL}, s{sCX}, s{sKVB}
        s_add_u32 s{sTO2}, s{sTO}, s{sCX}
        """)
        attn_loop(True)
        A("s_branch L_attn_done")
    attn_loop(False)
    A("L_attn_done:")
    vF = 16
    vXa, vOa = 8, 10
    vOwn = 40
    def norm_frag(kl, qb, n):
        db, half = kl // 2, kl % 2
        tb = 24 + (n % 2) * 8
        dst = vOwn + ((kl % 2) * 3 + qb) * 4
        L = [f"v_accvgpr_read_b32 v{tb+i}, a{aO+(qb*4+db)*16+8*half+i}" for i in range(8)]
        if CFG["nopk"]: L += [f"v_mul_f32 v{tb+i}, v{tb+i}, v{vF+2*qb}" for i in range(8)]
        else: L += [f"v_pk_mul_f32 {vr(tb+2*i,2)}, {vr(tb+2*i,2)}, {vr(vF+2*qb,2)}" for i in range(4)]
        L += [f"v_cvt_pk_bf16_f32 v{dst+i}, v{tb+2*i}, v{tb+2*i+1}" for i in range(4)]
        L.append(f"ds_write_b128 v2, {vr(dst,4)} offset:{kl*3072 + qb*1024}" if kl < 6 else
                 f"ds_write_b128 v14, {vr(dst,4)} offset:{(kl-6)*3072 + qb*1024}")
        return L
    cnt = [0]
    def norm_group(kl):
        L = []
        for qb in range(3):
            L += norm_frag(kl, qb, cnt[0]); cnt[0] += 1
        return L
    setup = f"""
    v_lshlrev_b32 v1, 4, v{vLane}
    v_add_u32 v2, s{sRG}, v1
    s_mul_i32 s{sT0}, s{sW}, 6144
    s_add_u32 s{sT0}, s{sT0}, {XB}
    v_add_u32 v14, s{sT0}, v1
    v_bfe_u32 v12, v{vLane}, 4, 1
    v_and_b32 v13, 1, v{vLane}
    v_lshlrev_b32 v13, 5, v13
    v_lshl_add_u32 v13, v12, 4, v13
    v_bfe_u32 v12, v{vLane}, 1, 1
    v_lshl_add_u32 v13, v12, 3, v13
    v_lshrrev_b32 v12, 5, v{vLane}
    v_bfe_u32 v15, v{vLane}, 2, 2
    v_lshl_add_u32 v12, v12, 2, v15
    v_lshl_add_u32 v13, v12, 7, v13
    v_add_u32 v13, {RINGO}, v13
    v_lshrrev_b32 v15, 1, v15
    v_lshl_add_u32 v12, v15, 6, v13
    v_xor_b32 v15, 1, v15
    v_lshl_add_u32 v13, v15, 6, v13
    v_add_u32 v{vXa}, s{sRG}, v12
    v_add_u32 v{vXa+1}, s{sRG}, v13
    s_mul_i32 s{sKD}, s{sJJ}, {PCU}
    s_mul_i32 s{sKR}, s{sW}, 3072
    s_add_u32 s{sKR}, s{sKR}, s{sKD}
    s_add_u32 s{sKR}, s{sKR}, {96*1024}
    s_mul_i32 s{sT0}, s{sW}, {24*1024}
    s_add_u32 s{sKD}, s{sKD}, s{sT0}
    s_and_b32 s{sT0}, s{sB}, 1
    s_lshl_b32 s{sT0}, s{sT0}, 12
    s_add_u32 s{sKD}, s{sKD}, s{sT0}
    s_lshl_b32 s{sT0}, s{sT0}, 1
    s_sub_u32 s{sLX}, 4096, s{sT0}
    s_ashr_i32 s{sTO}, s{sLX}, 5
    """
    setup = [x.strip() for x in setup.split("\n") if x.strip()]
    vm = VM()
    for p in range(16): vm.add(f"g{p//4}")
    aXB = 96
    def op_gran(z):
        G = []
        for p in range(4):
            g = []
            if z == 20 and p == 0:
                g += [f"v_add_u32 v{vWoX+i}, s{sTO}, v{vWoX+i}" for i in range(4)]
            m0 = f"s_add_u32 m0, s{sRG}, {RINGO + (z % 4) * 4096}"
            if z < 8: setup, so = [m0, f"s_add_u32 s{sT2}, s{sX0 if z % 2 == 0 else sWC}, {(z // 2) * 32 * 1152}"], sT2
            elif z < 20: setup, so = [m0, "s_nop 0"], TW[z - 8]
            elif z < 24: setup, so = [m0, f"s_add_u32 s{sT2}, s{sWC}, {(z - 20) * 32 * 1152}"], sT2
            else: setup, so = [m0, "s_nop 0"], TW[z - 24]
            g.append(("dma", f"g{z}", setup, f"g{z}", f"buffer_load_dwordx4 v{vWoX+p}, {srd(SWO)}, s{so} offen offset:{1024*p} {CFG['wof']} lds"))
            G.append(g)
        return G
    def op_reads(z):
        fb = z & 1
        if z < 8:
            return [[f"ds_read_b64_tr_b16 {ar(aWf + fb*16 + (sx*2+ct)*4 + u*2, 2)}, v{vXa+ct} offset:{(((z//2)*2+sx) % 4)*4096 + (16*(z%2)+8*u)*128}"]
                    for sx in range(2) for ct in range(2) for u in range(2)]
        L = [[f"ds_read_b64_tr_b16 {ar(aWf + fb*16 + (kk*2+ct)*4 + u*2, 2)}, v{vXa+ct} offset:{(z%4)*4096 + (16*kk+8*u)*128}"]
             for kk in range(2) for ct in range(2) for u in range(2)]
        if 20 <= z < 24:
            va, off = (2, (z % 4) * 6144) if z % 4 < 3 else (14, 0)
        else:
            va, off = vOa + fb, 0
            L[0] = [f"v_add_u32 v{va}, s{TL[z - 8 if z < 20 else z - 24]}, v1"] + L[0]
        R_ = [[f"ds_read_b128 {ar(aXB + fb*24 + kk*12 + qb*4, 4)}, v{va} offset:{off + kk*3072 + qb*1024}"]
              for kk in range(2) for qb in range(3)]
        return L[:4] + R_[:3] + L[4:] + R_[3:]
    def conv_store(ps):
        base, dst0 = ((160, 160), (64, 208))[ps]
        cv, st = [], []
        tiles = [(qb, ct) for qb in range(3) for ct in range(2)] if ps == 0 else [(qb, ct) for ct in range(2) for qb in range(3)]
        for k, (qb, ct) in enumerate(tiles):
            tb = dst0 + k * 8
            src = base + (qb*2+ct) * 16
            c = [f"v_cvt_pk_bf16_f32 v{tb+i}, v{src+2*i}, v{src+2*i+1}" for i in range(8)]
            t = []
            if ps == 1 and k == 0: t.append(f"s_add_u32 s{sKD}, s{sKD}, s{sLX}")
            t.append(f"s_add_u32 s{sT3}, s{sKD}, {(qb*4 + ct)*2048}")
            for half in range(2):
                t.append(("vm", "st", f"buffer_store_dwordx4 {vr(tb+4*half,4)}, v1, {srd(SP)}, s{sT3} offen offset:{half*1024} {CFG['stfl']}"))
            cv.append(c); st.append(t)
        return cv, st
    fin = [f"v_mov_b32 v{vT+qb}, v{vL+qb}" for qb in range(3)] + setup[:2]
    fin += [f"v_permlane32_swap_b32 v{vL+qb}, v{vT+qb}" for qb in range(3)] + setup[2:5]
    fin += [f"v_add_f32 v{vL+qb}, v{vL+qb}, v{vT+qb}" for qb in range(3)]
    fin += [f"v_rcp_f32 v{vF+2*qb}, v{vL+qb}" for qb in range(3)] + setup[5:]
    fin += [f"v_mov_b32 v{vF+2*qb+1}, v{vF+2*qb}" for qb in range(3)]
    gaps = {}
    for i, o in enumerate(fin): gaps.setdefault(i * 8 // len(fin), []).append(o)
    interleave(A, [pv(2, m) for m in range(8)], gaps)
    stamp(A, 3)
    if CFG.get("trace"):
        A(f"""
        s_lshl_b32 s{sT0}, s2, 2
        s_add_u32 s{sT0}, s{sT0}, s{sW}
        s_lshl_b32 s{sT0}, s{sT0}, 8
        s_add_u32 s{sT0}, s{sT0}, {(66 << 20)}
        v_lshlrev_b32 v156, 2, v{vLane}
        v_add_u32 v156, s{sT0}, v156
        global_store_dword v156, v159, s[{sWS}:{sWS+1}]
        """)
    if CFG["fuse"]: A(f"v_readfirstlane_b32 s{sCNT}, v158")
    emit(A, vm, [("wait", ["g1"], "")])
    for g in op_reads(0): emit(A, vm, g)
    emit(A, vm, norm_group(0))
    stamp(A, 4)
    push_setup = f"""
        s_cmp_lg_u32 s{sW}, 3
        s_cbranch_scc1 L_nopush1
        s_cmp_ge_u32 s{sCNT}, 8
        s_cbranch_scc1 L_initok
        s_lshl_b32 s{sT0}, s{sG}, 3
        v_mov_b32 v12, s{sT0}
        s_mov_b32 s{sT1}, 0
        L_ipoll:
        global_load_dword v13, v12, s[{sDBG}:{sDBG+1}] sc1
        s_waitcnt vmcnt(0)
        v_readfirstlane_b32 s{sCNT}, v13
        s_add_u32 s{sT1}, s{sT1}, 1
        s_cmp_ge_u32 s{sCNT}, 8
        s_cbranch_scc1 L_initok
        s_sleep 8
        s_cmp_lt_u32 s{sT1}, 0x80000
        s_cbranch_scc1 L_ipoll
        L_initok:
        s_lshl_b32 s{sT0}, s{sG}, 11
        s_lshl_b32 s{sT1}, s{sBR}, 6
        s_add_u32 s{sT0}, s{sT0}, s{sT1}
        s_lshl_b32 s{sT1}, s{sJJ}, 2
        s_add_u32 s{sT0}, s{sT0}, s{sT1}
        s_add_u32 s{sT0}, s{sT0}, {FLAG_OFF}
        v_lshlrev_b32 v12, 8, v{vLane}
        v_add_u32 v12, s{sT0}, v12
        v_mov_b32 v13, 1
        s_mov_b64 exec, 0xff
        global_store_dword v12, v13, s[{sWS}:{sWS+1}] sc1
        s_mov_b64 exec, -1
        L_nopush1:
    """
    push_setup = [x.strip() for x in push_setup.split("\n") if x.strip()]
    pend = []
    for z in range(36):
        fb = z & 1
        mf = []
        for kk in range(2):
            for ct in range(2):
                for qb in range(3):
                    if z < 8:
                        acc = vr((64 if kk == 0 else 160) + (qb*2+ct)*16, 16)
                        c = "0" if z == 0 else acc
                        bop = vr(vOwn + ((z % 2)*3+qb)*4, 4)
                    else:
                        acc = vr((160 if z < 20 else 64) + (qb*2+ct)*16, 16)
                        c = "0" if (z == 20 and kk == 0) else acc
                        bop = ar(aXB+fb*24+kk*12+qb*4, 4)
                    mf.append(f"v_mfma_f32_32x32x16_bf16 {acc}, {ar(aWf+fb*16+(kk*2+ct)*4,4)}, {bop}, {c}")
        gaps = {}
        if z < 35:
            need = (z + 1) | 1 if z + 1 < 8 else z + 1
            tags = [f"g{need}"] + (["st"] if (z == 30 and CFG["fuse"]) else [])
            gaps[-1] = [("wait", tags, "lgkmcnt(0)")]
            if z == 7 or (z == 30 and CFG["fuse"]): gaps[-1].append("s_barrier")
            rd = op_reads(z + 1)
            for i, g in enumerate(rd): gaps.setdefault(i * 11 // len(rd), []).extend(g)
        else:
            gaps[-1] = ["s_waitcnt lgkmcnt(0)"]
        if z < 8:
            if z % 2 == 1:
                for i, g in enumerate(op_gran(z + 3) + op_gran(z + 4)): gaps.setdefault(i, []).extend(g)
        elif z < 32:
            for i, g in enumerate(op_gran(z + 4)): gaps.setdefault(3 * i + 1, []).extend(g)
        if z < 7:
            ng = norm_group(z + 1)
            for i, o in enumerate(ng): gaps.setdefault(i * 11 // len(ng), []).append(o)
        if z == 9:
            pend = [f"v_cvt_pk_bf16_f32 v{16+i}, v{64+2*i}, v{65+2*i}" for i in range(48)]
            if CFG["bpf"]:
                pend += [[f"s_cmp_lg_u32 s{sBR}, 0", "s_cbranch_scc1 L_nobpf", "s_load_dwordx2 s[12:13], s[0:1], 72",
                         f"s_lshl_b32 s{sT0}, s{sB}, 2", f"s_add_u32 s{sT0}, s{sT0}, s{sW}", f"s_mul_i32 s{sT0}, s{sT0}, {72*128}",
                         f"s_mul_i32 s{sT1}, s{sJJ}, {512*1152}", f"s_add_u32 s{sT0}, s{sT0}, s{sT1}",
                         f"v_lshlrev_b32 v12, 6, v{vLane}", f"v_add_u32 v12, s{sT0}, v12", f"v_add_u32 v13, 4096, v12",
                         "s_waitcnt lgkmcnt(0)",
                         "global_load_dword v15, v12, s[12:13]", "global_load_dword v15, v13, s[12:13]",
                         "global_load_dword v15, v13, s[12:13] offset:1024", "L_nobpf:"]]
        if z == 21:
            pend = sum([c + t for c, t in zip(*conv_store(0))], [])
        if z == 30 and CFG["fuse"]: gaps.setdefault(0, []).extend(push_setup)
        if 32 <= z < 35:
            for i in range(4):
                xf = (z - 32) * 4 + i
                gaps.setdefault(3 * i + 1, []).append(f"ds_write_b128 v2, {vr(16+4*xf,4)} offset:{RINGO + xf*1024}")
        for i in range(12):
            if pend:
                o = pend.pop(0)
                gaps.setdefault(i, []).extend(o if isinstance(o, list) else [o])
        interleave(A, mf, gaps, vm)
        if z == 7 and CFG.get("gst"): stamp(A, 8)
        if CFG.get("gst2"):
            if z == 20: stamp(A, 1)
            if z == 30: stamp(A, 2)
            if z == 3: stamp(A, 11)
    assert not pend
    if CFG.get("gst"): stamp(A, 9)
    A(f"""
    s_barrier
    s_mul_i32 s{sT0}, s{sW}, 3072
    s_add_u32 s{sT0}, s{sT0}, {RINGO}
    v_add_u32 v10, s{sT0}, v1
    v_add_u32 v11, {2*REG}, v10
    s_mov_b32 s64, 0x3f80
    s_mov_b32 s65, 0x3f800000
    """)
    for src in range(4):
        for m in range(3):
            A(f"ds_read_b128 {vr(16+(src*3+m)*4,4)}, v{10 + src // 2} offset:{(src % 2)*REG + m*1024}")
    for c, t in zip(*conv_store(1)): emit(A, vm, c + t)
    stamp(A, 5)
    A("s_waitcnt lgkmcnt(0)")
    for src in range(4):
        for m in range(3):
            for d in range(4):
                for hi in range(2):
                    acc = 64 + m*8 + d*2 + hi
                    A(f"v_dot2_f32_bf16 v{acc}, v{16+(src*3+m)*4+d}, s{65 if hi else 64}, {'0' if src == 0 else f'v{acc}'}")
    A("s_nop 2")
    for m in range(3):
        for d in range(4): A(f"v_cvt_pk_bf16_f32 v{96+m*4+d}, v{64+m*8+2*d}, v{65+m*8+2*d}")
        A(f"buffer_store_dwordx4 {vr(96+m*4,4)}, v1, {srd(SP)}, s{sKR} offen offset:{m*1024} {CFG['stfl']}")
    if CFG["fuse"]:
        A(f"""
        s_waitcnt vmcnt(0)
        s_barrier
        s_cmp_lg_u32 s{sW}, 3
        s_cbranch_scc1 L_nopush
        s_mov_b64 exec, 0xff
        global_store_dword v12, v13, s[{sWS}:{sWS+1}] offset:32 sc1
        s_mov_b64 exec, -1
        L_nopush:
        """)
        stamp(A, 6)
        A(f"""
        s_cmp_lg_u32 s{sBR}, {'s%d' % sBR if CFG['own'] else 0}
        s_cbranch_scc1 L_fin
        s_mov_b32 s8, s100
        s_mov_b32 s9, s101
        s_mov_b32 s10, {16*96*1152*2}
        s_mov_b32 s11, 0x20000
        s_mov_b32 s{SP+2}, {PART if CFG['own'] else 17*PART}
        s_lshl_b32 s{sT0}, s{sG}, 3
        s_add_u32 s{sT0}, s{sT0}, s{sJJ}
        s_lshl_b32 s{sT0}, s{sT0}, 8
        s_add_u32 s{sT0}, s{sT0}, {FLAG_OFF}
        s_lshl_b32 s{sT1}, s{sBR}, 6
        s_add_u32 s{sT0}, s{sT0}, s{sT1}
        v_and_b32 v2, 7, v{vLane}
        v_lshlrev_b32 v2, 2, v2
        v_add_u32 v2, s{sT0}, v2
        v_and_b32 v3, 31, v{vLane}
        v_lshrrev_b32 v5, 5, v{vLane}
        v_mul_u32_u24 v4, 2304, v3
        v_lshl_add_u32 v4, v5, 5, v4
        s_mov_b32 s64, 0x3f80
        s_mov_b32 s65, 0x3f800000
        s_lshl_b32 s66, s{sBR}, 1
        s_add_u32 s78, s66, {2 if CFG['own'] else 4}
        L_stage:
        s_and_b32 s67, s66, 1
        s_add_u32 s68, s67, 3
        s_mul_i32 s68, s68, s{sJJ}
        s_add_u32 s68, s68, s{sW}              ; idx
        s_add_u32 s69, s67, 2
        s_cmp_gt_u32 s{sW}, s69
        s_cbranch_scc1 L_next
        s_cmp_ge_u32 s68, 30
        s_cbranch_scc1 L_next
        s_and_b32 s69, s{sB}, 1
        s_xor_b32 s69, s69, s67
        s_lshl_b32 s69, s69, 1                  ; 2*half
        s_mul_i32 s70, s68, 43
        s_lshr_b32 s70, s70, 8                  ; w' = idx/6
        s_mul_i32 s71, s70, 6
        s_sub_u32 s71, s68, s71                 ; r = idx%6
        s_lshr_b32 s72, s71, 1                  ; qb
        s_and_b32 s73, s71, 1                   ; c
        s_cmp_eq_u32 s70, 4
        s_cselect_b32 s69, 0, s69
        s_cselect_b32 s74, 1, 2
        s_add_u32 s73, s73, s69                 ; ct
        s_lshl_b32 s74, s72, s74
        s_add_u32 s74, s74, s73
        s_mul_i32 s75, s70, 12
        s_add_u32 s74, s74, s75                 ; tt
        s_lshl_b32 s74, s74, 11
        s_lshr_b32 s75, s66, 1
        s_mul_i32 s76, s75, {0 if CFG['own'] else 16*PART}
        s_add_u32 s74, s74, s76
        s_mul_i32 s76, s{sB}, {96*2304}
        s_mul_i32 s75, s75, 1152
        s_add_u32 s76, s76, s75
        s_lshl_b32 s75, s70, 8
        s_add_u32 s76, s76, s75
        s_mul_i32 s75, s72, {32*2304}
        s_add_u32 s76, s76, s75
        s_lshl_b32 s75, s73, 6
        s_add_u32 s76, s76, s75
        s_mov_b32 s77, 0
        L_poll:
        global_load_dword v6, v2, s[{sWS}:{sWS+1}] sc1
        s_waitcnt vmcnt(0)
        v_cmp_ne_u32 vcc, 1, v6
        s_add_u32 s77, s77, 1
        s_cbranch_vccz L_go
        s_sleep {CFG['slp']}
        s_cmp_lt_u32 s77, 0x80000
        s_cbranch_scc1 L_poll
        L_go:
        """)
        for p in range(8):
            for m in range(2):
                A(f"buffer_load_dwordx4 {vr(32+(p*2+m)*4,4)}, v1, {srd(SP)}, s74 offen offset:{1024*m} sc1")
            if p < 7: A(f"s_add_u32 s74, s74, {PCU}")
        for p in range(8):
            A(f"s_waitcnt vmcnt({14 - 2*p})")
            for m in range(2):
                for d in range(4):
                    src = 32 + (p*2+m)*4 + d
                    for hi in range(2):
                        acc = 8 + m*8 + d*2 + hi
                        A(f"v_dot2_f32_bf16 v{acc}, v{src}, s{65 if hi else 64}, {'0' if p == 0 else f'v{acc}'}")
        A("s_nop 2")
        for m in range(2):
            for d in range(4):
                A(f"v_cvt_pk_bf16_f32 v{24+m*4+d}, v{8+m*8+2*d}, v{9+m*8+2*d}")
            A(f"buffer_store_dwordx4 {vr(24+m*4,4)}, v4, s[8:11], s76 offen offset:{m*16}")
        A(f"""
        L_next:
        """)
        if CFG["stamps"]:
            A("s_cmp_lg_u32 s66, 1"); A("s_cbranch_scc1 L_nost7"); stamp(A, 7); A("L_nost7:")
        A(f"""
        v_add_u32 v2, 32, v2
        s_add_u32 s66, s66, 1
        s_cmp_lt_u32 s66, s78
        s_cbranch_scc1 L_stage
        L_fin:
        """)
    if CFG["stamps"]:
        A("s_waitcnt vmcnt(0)")
        stamp(A, 10)
        if not CFG["fuse"]:
            stamp(A, 6)
            if not CFG.get("sst"): stamp(A, 7)
    if CFG.get("dbgout"):
        A(f"""
        s_waitcnt lgkmcnt(0)
        s_and_b32 s{sT0}, s2, 0xf7
        s_or_b32 s{sT0}, s{sT0}, s{sW}
        s_cmp_lg_u32 s{sT0}, 0
        s_cbranch_scc1 L_end
        s_lshl_b32 s{sT0}, s{sBR}, 5
        v_mov_b32 v1, s{sT0}
        """)
        for k, idx in enumerate((11, 2, 3, 10)):
            A(f"s_sub_u32 s{sT1}, s{sST[idx]}, s{sST[0]}")
            A(f"v_mov_b32 v2, s{sT1}")
            A(f"global_store_dword v1, v2, s[{sDBG}:{sDBG+1}] offset:{8*k+4}")
    else:
        stamps_out(A, 12)
    A("L_end:")
    A("s_endpgm")
    for site, qb in sites:
        A(f"L_tramp_{site}:")
        A(f"s_call_b64 s[{sRET}:{sRET+1}], L_rare_{qb}")
        A(f"s_branch L_back_{site}")
    for qb in range(3):
        s = vS + 16 * qb
        A(f"L_rare_{qb}:")
        for x in rowmax(qb, vT, vT+1): A(x)
        A(f"v_max_f32 v{vT}, 0, v{vT}")
        A(f"v_exp_f32 v{vT+1}, -v{vT}")
        for i in range(16): A(f"v_sub_f32 v{vNM+16*qb+i}, v{vNM+16*qb+i}, v{vT}")
        A(f"v_mul_f32 v{vL+qb}, v{vL+qb}, v{vT+1}")
        for i in range(64):
            A(f"v_accvgpr_read_b32 v{vT+2+i%4}, a{aO+qb*64+i}")
            A(f"v_mul_f32 v{vT+2+i%4}, v{vT+2+i%4}, v{vT+1}")
            A(f"v_accvgpr_write_b32 a{aO+qb*64+i}, v{vT+2+i%4}")
        A(f"v_mov_b32 v{vPS}, 0")
        for i in range(0, 16, 2):
            A(f"v_sub_f32 v{vE}, v{s+i}, v{vT}")
            A(f"v_sub_f32 v{vE+1}, v{s+i+1}, v{vT}")
            A(f"v_exp_f32 v{vE}, v{vE}")
            A(f"v_exp_f32 v{vE+1}, v{vE+1}")
            A("s_nop 0")
            A(f"v_add_f32 v{vPS}, v{vPS}, v{vE}")
            A(f"v_add_f32 v{vPS}, v{vPS}, v{vE+1}")
            A(f"v_cvt_pk_bf16_f32 v{vP+8*qb+i//2}, v{vE}, v{vE+1}")
        A("s_nop 1")
        A(f"s_setpc_b64 s[{sRET}:{sRET+1}]")
    A("L_code_end:")
    A("s_endpgm")

def gen_reduce_kernel(A, name):
    kernel_begin(A, name)
    A("s_cmp_ge_u32 s2, 864")
    A("s_cbranch_scc1 L_rk_end")
    stamp(A, 0)
    A(f"""
    s_load_dwordx2 s[{sWS}:{sWS+1}], s[0:1], 96
    s_load_dwordx2 s[8:9], s[0:1], 80
    v_lshrrev_b32 v1, 6, v0
    v_and_b32 v7, 63, v0
    v_readfirstlane_b32 s3, v1
    v_lshlrev_b32 v1, 4, v7
    s_mul_i32 s24, s2, 2428
    s_lshr_b32 s24, s24, 16
    s_mul_i32 s25, s24, 27
    s_sub_u32 s25, s2, s25
    s_lshl_b32 s25, s25, 1
    s_add_u32 s25, s25, s3             ; tt
    s_mul_i32 s26, s24, {PART}
    s_lshl_b32 s27, s25, 11
    s_add_u32 s26, s26, s27
    s_mov_b32 s22, {32*PART}
    s_mov_b32 s23, 0x20000
    s_mov_b32 s10, {16*96*1152*2}
    s_mov_b32 s11, 0x20000
    s_waitcnt lgkmcnt(0)
    s_mov_b32 s20, s{sWS}
    s_mov_b32 s21, s{sWS+1}
    """)
    for p in range(8):
        for m in range(2):
            A(f"buffer_load_dwordx4 {vr(32+(p*2+m)*4,4)}, v1, s[20:23], s26 offen offset:{1024*m} {CFG['rfl']}")
        if p < 7: A(f"s_add_u32 s26, s26, {PCU}")
    stamp(A, 1)
    A(f"""
    s_mov_b32 s30, 0x3f80
    s_mov_b32 s31, 0x3f800000
    s_and_b32 s27, s24, 15
    s_mul_i32 s28, s27, {96*2304}
    s_lshr_b32 s27, s24, 4
    s_mul_i32 s27, s27, 1152
    s_add_u32 s28, s28, s27
    s_mul_i32 s27, s25, 43
    s_lshr_b32 s27, s27, 9             ; w' (4 = extra)
    s_mul_i32 s29, s27, 12
    s_sub_u32 s29, s25, s29            ; T
    s_cmp_eq_u32 s27, 4
    s_cselect_b32 s32, 1, 2
    s_cselect_b32 s33, 1, 3
    s_lshl_b32 s27, s27, 8
    s_add_u32 s28, s28, s27
    s_lshr_b32 s27, s29, s32           ; qb
    s_mul_i32 s27, s27, {32*2304}
    s_add_u32 s28, s28, s27
    s_and_b32 s27, s29, s33            ; ct
    s_lshl_b32 s27, s27, 6
    s_add_u32 s28, s28, s27
    v_and_b32 v2, 31, v7
    v_lshrrev_b32 v3, 5, v7
    v_mul_u32_u24 v4, 2304, v2
    v_lshl_add_u32 v4, v3, 5, v4
    """)
    for p in range(8):
        A(f"s_waitcnt vmcnt({14 - 2*p})")
        for m in range(2):
            for d in range(4):
                src = 32 + (p*2+m)*4 + d
                for hi in range(2):
                    acc = 8 + m*8 + d*2 + hi
                    A(f"v_dot2_f32_bf16 v{acc}, v{src}, s{31 if hi else 30}, {'0' if p == 0 else f'v{acc}'}")
    A("s_nop 2")
    for m in range(2):
        for d in range(4):
            A(f"v_cvt_pk_bf16_f32 v{24+m*4+d}, v{8+m*8+2*d}, v{9+m*8+2*d}")
        A(f"buffer_store_dwordx4 {vr(24+m*4,4)}, v4, s[8:11], s28 offen offset:{m*16}")
    if CFG["stamps"]:
        A("s_waitcnt vmcnt(0)")
        stamp(A, 2)
        A("s_cmp_lg_u32 s3, 0")
        A("s_cbranch_scc1 L_rk_end")
        A("s_waitcnt lgkmcnt(0)")
        A(f"s_lshl_b32 s34, s2, 6")
        A(f"s_add_u32 s34, s34, {STAMP_OFF + 1024 * 64}")
        A("v_mov_b32 v1, s34")
        for i in range(3):
            A(f"v_mov_b32 v2, s{sST[i]}")
            A(f"global_store_dword v1, v2, s[{sWS}:{sWS+1}] offset:{4*i}")
    A("L_rk_end:")
    A("s_endpgm")

def gen(**kw):
    CFG.update(kw)
    if CFG["fuse"]: CFG["split_reduce"] = False
    if CFG["coop"]: CFG["apf"] = 0
    CFG["stfl"] = CFG["fst"] if CFG["fst"] is not None else ("" if (CFG["split_reduce"] or CFG["wb"]) else "sc1")
    A = Asm()
    for l in open("cdna_kernels/" + NAME + ".s.ref").read().split("\n"):
        if not l.startswith(";"): break
        if "@launch" in l or "Override launch" in l or "grid=ceil" in l: continue
        A.L.append(l)
    if CFG["split_reduce"]:
        header(A, ["; @launch kernel=main_kernel grid=(256,1,1) block=(256,1,1) lds=163840",
                   "; @launch kernel=reduce_kernel grid=(864,1,1) block=(128,1,1) lds=0"])
        gen_main(A, "main_kernel")
        gen_reduce_kernel(A, "reduce_kernel")
        descriptor(A, "main_kernel")
        descriptor(A, "reduce_kernel", vgpr=96, accum=96, first=False)
    else:
        header(A, ["; @launch grid=(256,1,1) block=(256,1,1) lds=163840"])
        gen_main(A, NAME + "_kernel")
        descriptor(A, NAME + "_kernel")
    return A.text()

if __name__ == "__main__":
    out = sys.argv[1] if len(sys.argv) > 1 else "cdna_kernels/" + NAME + ".s"
    kw = {}
    for a in sys.argv[2:]:
        k, v = a.split("=")
        kw[k] = eval(v)
    open(out, "w").write(gen(**kw))
```

```python
import sys, struct
from asmlib import *

LOG2E = 1.4426950408889634
def f2u(x): return struct.unpack("<I", struct.pack("<f", x))[0]

CFG = dict(stamps=False, thr=256.0, nokv=False, split_reduce=True, wopf=-1, share=True, tlb=False, qbud=6, da=4, wqf='', xf='', wof='', pff='nt', wqn=4, pf2=True, pfs=12, xrot=1, won=2, slp=4, early=True, wb=False, fst='sc1', rfl='', xfill=60, nopk=True, xf2='', kvpf=0, kvs=4, kvd=4, kv0=2, kve=28, kvf='', apf=2, apm=0, aps=2, ap0=4, apfl='', fuse=True, fine=False, bpf=True, own=False, dv=1, tls=-1, coop=False, hbud=7, hrot=4, kvstart=0, q16=True, ipf=True)

REG = 34816
XB = 4 * REG
K1O, V1O, K0O, V0O = 0, 8704, 16896, 25600
KVD = 16896
RINGO = 18432
STAMP_OFF = 64 << 20
FLAG_OFF = 48 << 20
QOFF = 40 << 20
PCU = 108 * 1024
PART = 8 * PCU

sW = 3
SX, SWQ, SK, SV, SP = 4, 8, 12, 16, 20
SWO, SOUT = 4, 8
sBR, sJJ, sB, sH = 24, 25, 27, 28
sCI = 29
sRET = 52
sWQ0, sX0 = 32, 33
sT0, sT1, sT2, sT3 = 34, 35, 36, 37
sRG = 38
sLX = 39
sCNT = 40
sWC, sXC = 41, 42
sCX = 43
sTO, sTO2 = 44, 45
sTHR = 46
sSC = 84
sKD, sKR = 50, 51
sG = 95
sRW, sR3 = 26, 47
sKVB = 50
sKL, sVL = 26, 47
sST = [30, 54, 56, 58, 60, 62, 84, 86, 88, 90, 92, 48]
sWS = 96
sDBG = 98
vWoX, vLane = 3, 7
vKd, vVd, vKr, vVr = 8, 9, 10, 12
vS, vNM, vP, vE, vL, vPS, vT, vQ = 16, 64, 112, 136, 144, 147, 148, 160
vWd, vXd, vWr, vXr = 40, 44, 20, 24
vHd, vHr = 52, 28
vQA = 64
aO, aK, aV = 0, 192, 224
aWf, aXf = 192, 224

def srd(n): return f"s[{n}:{n+3}]"
def vr(n, c): return f"v[{n}:{n+c-1}]"
def ar(n, c): return f"a[{n}:{n+c-1}]"

class VM:
    def __init__(self): self.ops = []; self.ctx = None
    def add(self, tag): self.ops.append(tag)
    def need(self, tag):
        idx = max(i for i, t in enumerate(self.ops) if t == tag)
        return len(self.ops) - 1 - idx

def emit(A, vm, items):
    for x in items:
        if isinstance(x, str): A(x)
        elif x[0] == "vm":
            vm.add(x[1]); A(x[2])
            if x[2].endswith("lds"): vm.ctx = None
        elif x[0] == "dma":
            if vm.ctx != x[1]:
                for y in x[2]: A(y)
                vm.ctx = x[1]
            vm.add(x[3]); A(x[4])
        elif x[0] == "wait":
            n = min(vm.need(t) for t in x[1])
            assert n <= 63
            A(f"s_waitcnt vmcnt({n}) {x[2]}".strip())

def interleave(A, mfmas, gaps, vm=None):
    emit(A, vm, gaps.get(-1, []))
    for i, m in enumerate(mfmas):
        emit(A, vm, gaps.get(("pre", i), []))
        A(m)
        emit(A, vm, gaps.get(i, []))

DUAL = {2: 4, 8: 5, 9: 6, 3: 7, 0: 11}
def stamp(A, idx):
    if CFG.get("dual"):
        if idx in DUAL.values(): return
        if idx in DUAL: A(f"s_memtime s[{sST[DUAL[idx]]}:{sST[DUAL[idx]]+1}]")
    if CFG["stamps"]:
        A(f"{'s_memtime' if CFG.get('cyc') else 's_memrealtime'} s[{sST[idx]}:{sST[idx]+1}]")

def stamps_out(A, n, add=0):
    if not CFG["stamps"]: return
    A("s_waitcnt lgkmcnt(0)")
    A(f"s_lshl_b32 s{sT0}, s2, 2")
    A(f"s_add_u32 s{sT0}, s{sT0}, s{sW}")
    A(f"s_lshl_b32 s{sT0}, s{sT0}, 6")
    A(f"s_add_u32 s{sT0}, s{sT0}, {STAMP_OFF + add * 64}")
    A(f"v_mov_b32 v1, s{sT0}")
    for i in range(n):
        A(f"v_mov_b32 v2, s{sST[i]}")
        A(f"global_store_dword v1, v2, s[{sWS}:{sWS+1}] offset:{4*i}")

def k_piece(p, slot, tag=None, shared=False):
    base = (K0O if slot == 0 else K1O + (REG if shared else 0)) + 1088 * p - 1024 * (p % 4)
    so = sTO if (p < 4 and not shared) else sTO2
    ld = f"buffer_load_dwordx4 v{vKd}, {srd(SK)}, s{so} offen offset:{1024*(p%4)} nt lds"
    return [f"s_add_u32 m0, s{sKL if shared else sRG}, {base}", "s_nop 0", ("vm", tag, ld) if tag else ld]
def v_piece(p, slot, tag=None, force_m0=False, shared=False):
    so = sTO if (p < 4 and not shared) else sTO2
    r = []
    if p % 4 == 0 or force_m0:
        base = (V0O if slot == 0 else V1O + (REG if shared else 0)) + 4096 * (p // 4)
        r += [f"s_add_u32 m0, s{sVL if shared else sRG}, {base}", "s_nop 0"]
    ld = f"buffer_load_dwordx4 v{vVd}, {srd(SV)}, s{so} offen offset:{1024*(p%4)} nt lds"
    r.append(("vm", tag, ld) if tag else ld)
    return r
def tile_advance(shared=False):
    return [f"s_add_u32 s{sTO}, s{sTO}, 8192", f"s_and_b32 s{sTO}, s{sTO}, 0x3ffff",
            f"s_add_u32 s{sTO2}, s{sTO}, s{sCX}" if shared else f"s_add_u32 s{sTO2}, s{sTO}, 4096"]

def decode(A):
    A(f"""
    v_lshrrev_b32 v1, 6, v0
    v_and_b32 v{vLane}, 63, v0
    v_readfirstlane_b32 s{sW}, v1
    s_and_b32 s{sJJ}, s2, 7
    s_lshr_b32 s{sT1}, s2, 3
    s_and_b32 s{sBR}, s{sT1}, 1
    s_lshr_b32 s{sB}, s{sT1}, 1
    """)

def part_srd(A):
    A(f"""
    s_lshl_b32 s{sT0}, s{sBR}, 4
    s_add_u32 s{sT0}, s{sT0}, s{sB}
    s_mul_i32 s{sT0}, s{sT0}, {PART}
    s_add_u32 s{SP}, s{sWS}, s{sT0}
    s_addc_u32 s{SP+1}, s{sWS+1}, 0
    s_mov_b32 s{SP+2}, {0 if CFG.get('nost') else PART}
    s_mov_b32 s{SP+3}, 0x20000
    """)

def gen_main(A, name):
    KVN = 0 if CFG['nokv'] else 0x40000
    kernel_begin(A, name)
    A("s_cmp_ge_u32 s2, 256")
    A("s_cbranch_scc1 L_end")
    stamp(A, 0)
    A(f"""
    s_load_dwordx16 s[64:79], s[0:1], 0
    s_load_dwordx4 s[80:83], s[0:1], 64
    s_load_dwordx2 s[{sWS}:{sWS+1}], s[0:1], 96
    s_load_dwordx2 s[{sDBG}:{sDBG+1}], s[0:1], 88
    s_load_dwordx2 s[100:101], s[0:1], 80
    """)
    decode(A)
    if CFG["ipf"]:
        A(f"""
        s_getpc_b64 s[86:87]
        L_pc:
        s_lshr_b32 s{sT0}, s2, 3
        s_lshl_b32 s{sT0}, s{sT0}, 2
        s_add_u32 s{sT0}, s{sT0}, s{sW}
        s_lshl_b32 s{sT0}, s{sT0}, 7
        v_lshlrev_b32 v63, 14, v{vLane}
        v_add_u32 v63, s{sT0}, v63
        v_cmp_gt_u32 vcc, L_code_end-L_pc-4, v63
        s_and_saveexec_b64 s[88:89], vcc
        global_load_dword v62, v63, s[86:87]
        s_mov_b64 exec, -1
        """)
    A(f"""
    s_lshl_b32 s{sG}, s{sBR}, 4
    s_and_b32 s{sG}, s{sG}, {16 if CFG['own'] else 0}
    s_add_u32 s{sG}, s{sG}, s{sB}
    s_lshl_b32 s{sH}, s{sJJ}, 2
    s_add_u32 s{sH}, s{sH}, s{sW}
    s_mul_i32 s{sCI}, s{sB}, {8 if CFG['fine'] else 9}
    s_lshr_b32 s{sCI}, s{sCI}, 4
    s_and_b32 s{sKR}, s{sB}, {1 if CFG['fine'] else 0}
    s_mul_i32 s{sT2}, s{sJJ}, {CFG['xrot']}
    s_add_u32 s{sCI}, s{sCI}, s{sT2}
    s_sub_u32 s{sT2}, s{sCI}, 9
    s_cmp_ge_u32 s{sCI}, 9
    s_cselect_b32 s{sCI}, s{sT2}, s{sCI}
    s_mov_b32 s{sCX}, s{sCI}
    s_lshl_b32 s{sWQ0}, s{sH}, 8
    s_lshl_b32 s{sT2}, s{sKR}, 18
    s_add_u32 s{sWQ0}, s{sWQ0}, s{sT2}
    s_mul_i32 s{sX0}, s{sB}, 96
    s_mul_i32 s{sT2}, s{sW}, 24
    s_add_u32 s{sX0}, s{sX0}, s{sT2}
    s_mul_i32 s{sX0}, s{sX0}, 1152
    s_mul_i32 s{sRG}, s{sW}, {REG}
    s_mul_i32 s{sLX}, s{sW}, 3072
    s_add_u32 s{sLX}, s{sLX}, {XB}
    v_lshrrev_b32 v1, 4, v{vLane}         ; t = l/16
    v_and_b32 v2, 15, v{vLane}
    v_lshlrev_b32 v33, 2, v1
    v_xor_b32 v33, v2, v33
    v_lshlrev_b32 v33, 4, v33
    v_lshl_add_u32 v{vWd}, v1, 13, v33
    v_add_u32 v{vWd+1}, {32768-1024}, v{vWd}
    v_xor_b32 v34, {32 if CFG['q16'] else 0}, v{vWd}
    v_add_u32 v{vWd+2}, {2*(32768-1024)}, v34
    v_add_u32 v{vWd+3}, {3*(32768-1024)}, v34
    v_lshl_add_u32 v{vVd}, v1, 8, v33
    v_xor_b32 v33, v2, v1
    v_lshlrev_b32 v33, 4, v33
    v_lshl_add_u32 v{vKd}, v1, 8, v33
    ; x dma: row = 24w + 8p + t ; f = (row>>1)&7 = (4*(w+p) + (t>>1)) & 7
    v_lshrrev_b32 v1, 3, v{vLane}         ; t = l/8
    v_and_b32 v2, 7, v{vLane}
    v_lshrrev_b32 v33, 1, v1
    v_xor_b32 v34, v2, v33
    s_and_b32 s{sT0}, s{sW}, 1
    s_lshl_b32 s{sT0}, s{sT0}, 2
    v_xor_b32 v34, s{sT0}, v34
    v_lshlrev_b32 v34, 4, v34
    v_mul_u32_u24 v1, 1152, v1
    v_add_u32 v{vXd}, v1, v34
    v_add_u32 v{vXd+2}, {2*(8*1152-1024)}, v{vXd}
    v_xor_b32 v34, 64, v34
    v_add_u32 v{vXd+1}, v1, v34
    v_add_u32 v{vXd+1}, {8*1152-1024}, v{vXd+1}
    ; wo dma: t*1152 + ((l&7) ^ (((t>>1)&1)<<2))*16
    v_and_b32 v33, 1, v33
    v_lshlrev_b32 v33, 2, v33
    v_xor_b32 v2, v2, v33
    v_lshl_add_u32 v47, v2, 4, v1
    v_lshrrev_b32 v1, 3, v{vLane}
    v_lshlrev_b32 v1, 13, v1
    v_lshl_add_u32 v{vHd}, v2, 4, v1
    v_add_u32 v{vHd+1}, {65536-1024}, v{vHd}
    v_add_u32 v{vHd+2}, {2*(65536-1024)}, v{vHd}
    v_add_u32 v{vHd+3}, {3*(65536-1024)}, v{vHd}
    {"s_memrealtime s[90:91]" if CFG.get("sst") else ""}
    s_waitcnt lgkmcnt(0)
    {"s_memrealtime s[88:89]" if CFG.get("sst") else ""}
    s_cmp_eq_u32 s{sBR}, 0
    s_cselect_b32 s{SX}, s{74 if CFG['coop'] else 64}, s74
    s_cselect_b32 s{SX+1}, s{75 if CFG['coop'] else 65}, s75
    s_cselect_b32 s{SWQ}, s{80 if CFG['coop'] else 70}, s80
    s_cselect_b32 s{SWQ+1}, s{81 if CFG['coop'] else 71}, s81
    s_cselect_b32 s{SK}, s66, s76
    s_cselect_b32 s{SK+1}, s67, s77
    s_cselect_b32 s{SV}, s68, s78
    s_cselect_b32 s{SV+1}, s69, s79
    s_mov_b32 s{SX+2}, {0 if CFG.get('nox') else 16*110592}
    s_mov_b32 s{SX+3}, 0x20000
    s_mov_b32 s{SWQ+2}, {0 if CFG.get('nowq') else 576*8192}
    s_mov_b32 s{SWQ+3}, 0x20000
    """)
    vm = VM()
    R = 8
    def wq_gran(n):
        G = []
        for p in range(4):
            g = []
            if n % 4 == 0 and p == 0:
                g += [f"s_lshl_b32 s{sWC}, s{sCI}, 19", f"s_add_u32 s{sWC}, s{sWC}, s{sWQ0}",
                      f"s_add_u32 s{sCI}, s{sCI}, 1", f"s_cmp_eq_u32 s{sCI}, 9", f"s_cselect_b32 s{sCI}, 0, s{sCI}"]
            setup = [f"s_add_u32 m0, s{sRG}, {(n % R) * 4096}", f"s_xor_b32 s{sT2}, s{sWC}, {(n % 4) * 16 * 8192}"]
            g.append(("dma", f"w{n}", setup, f"w{n}",
                      f"buffer_load_dwordx4 v{vWd+p}, {srd(SWQ)}, s{sT2} offen offset:{1024*p} {CFG['wqf'] if n < CFG['wqn'] else ''} lds"))
            G.append(g)
        return G
    def x_chunk(c):
        G = []
        for p in range(3):
            g = []
            if p == 0:
                g += [f"s_lshl_b32 s{sXC}, s{sCX}, 7", f"s_add_u32 s{sXC}, s{sXC}, s{sX0}",
                      f"s_add_u32 s{sCX}, s{sCX}, 1", f"s_cmp_eq_u32 s{sCX}, 9", f"s_cselect_b32 s{sCX}, 0, s{sCX}"]
            setup = [f"s_add_u32 m0, s{sLX}, {(c % 2) * 12288}", "s_nop 0"]
            g.append(("dma", f"x{c}", setup, f"x{c}",
                      f"buffer_load_dwordx4 v{vXd+p}, {srd(SX)}, s{sXC} offen offset:{1024*p} {CFG['xf'] if c == 0 else CFG['xf2']} lds"))
            G.append(g)
        return G
    if CFG["wopf"] == -3:
        A(f"""
        s_cmp_lg_u32 s{sBR}, 0
        s_cbranch_scc1 L_nopf0
        s_lshl_b32 s{sT0}, s{sB}, 2
        s_add_u32 s{sT0}, s{sT0}, s{sW}
        s_mul_i32 s{sT0}, s{sT0}, {72*128}
        s_mul_i32 s{sT1}, s{sJJ}, {512*1152}
        s_add_u32 s{sT0}, s{sT0}, s{sT1}
        v_lshlrev_b32 v40, 7, v{vLane}
        v_add_u32 v40, s{sT0}, v40
        global_load_dword v41, v40, s[72:73] {CFG['pff']}
        global_load_dword v42, v40, s[72:73] offset:1024 {CFG['pff']}
        global_load_dword v43, v40, s[82:83] {CFG['pff']}
        global_load_dword v44, v40, s[82:83] offset:1024 {CFG['pff']}
        L_nopf0:
        """)
    if CFG["apf"]:
        A(f"""
        s_cmp_lg_u32 s{sBR}, 0
        s_cbranch_scc1 L_noapf
        s_lshl_b32 s{sT1}, s{sB}, 5
        s_add_u32 s{sT1}, s{sT1}, s{sH}
        s_lshl_b32 s{sT0}, s{sT1}, 18
        s_add_u32 s{SP}, s76, s{sT0}
        s_addc_u32 s{SP+1}, s77, 0
        s_mov_b32 s{SP+2}, 0x40000
        s_mov_b32 s{SP+3}, 0x20000
        s_add_u32 s52, s78, s{sT0}
        s_addc_u32 s53, s79, 0
        s_mov_b32 s54, 0x40000
        s_mov_b32 s55, 0x20000
        s_and_b32 s{sT0}, s{sB}, {CFG['apm']}
        s_mul_i32 s{sT0}, s{sT0}, {CFG['aps']}
        s_add_u32 s{sT1}, s{sT1}, s{sT0}
        s_add_u32 s{sT1}, s{sT1}, {CFG['ap0']}
        s_add_u32 s{sT1}, s{sT1}, s{sB}
        v_lshlrev_b32 v48, 4, v{vLane}
        s_mov_b32 s{sCNT}, {CFG['apf']}
        L_apf:
        s_and_b32 s{sT0}, s{sT1}, 31
        s_lshl_b32 s{sT0}, s{sT0}, 13
        s_add_u32 s{sT3}, s{sT0}, 4096
        """)
        for i in range(16):
            sr = srd(SP) if i < 8 else "s[52:55]"
            A(f"buffer_load_dwordx4 {vr(64+4*i,4)}, v48, {sr}, s{sT0 if i % 8 < 4 else sT3} offen offset:{(i%4)*1024} {CFG['apfl']}")
            A(f"s_waitcnt vmcnt(12)")
        A(f"""
        s_add_u32 s{sT1}, s{sT1}, 1
        s_sub_u32 s{sCNT}, s{sCNT}, 1
        s_cmp_lg_u32 s{sCNT}, 0
        s_cbranch_scc1 L_apf
        L_noapf:
        """)
    def h_gran(m):
        G = []
        for p in range(4):
            g = []
            if m % 2 == 0 and p == 0:
                g += [f"s_lshl_b32 s{sWC}, s{sCI}, 19", f"s_add_u32 s{sWC}, s{sWC}, s{sWQ0}",
                      f"s_add_u32 s{sCI}, s{sCI}, 1", f"s_cmp_eq_u32 s{sCI}, 9", f"s_cselect_b32 s{sCI}, 0, s{sCI}"]
            setup = [f"s_add_u32 m0, s{sRG}, {(m % 4) * 4096}", f"s_add_u32 s{sT2}, s{sWC}, {(m % 2) * 32 * 8192}"]
            g.append(("dma", f"h{m}", setup, f"h{m}", f"buffer_load_dwordx4 v{vHd+p}, {srd(SWQ)}, s{sT2} offen offset:{1024*p} lds"))
            G.append(g)
        return G
    if CFG["coop"]:
        A(f"""
        s_xor_b32 s{sT0}, s{sBR}, 1
        s_lshl_b32 s{sT1}, s{sT0}, 7
        s_add_u32 s{sWQ0}, s{sWQ0}, s{sT1}
        s_mul_i32 s{sT0}, s{sT0}, {CFG['hrot']}
        s_add_u32 s{sCI}, s{sCI}, s{sT0}
        s_sub_u32 s{sT2}, s{sCI}, 9
        s_cmp_ge_u32 s{sCI}, 9
        s_cselect_b32 s{sCI}, s{sT2}, s{sCI}
        s_mov_b32 s{sCX}, s{sCI}
        """)
        for g in x_chunk(0) + h_gran(0) + x_chunk(1) + h_gran(1): emit(A, vm, g)
    else:
        for g in x_chunk(0) + wq_gran(0) + wq_gran(1): emit(A, vm, g)
    A(f"""
    s_lshl_b32 s{sT1}, s{sB}, 5
    s_add_u32 s{sT1}, s{sT1}, s{sH}
    s_lshr_b32 s{sT0}, s{sT1}, 1
    s_cmp_eq_u32 s{sBR}, 0
    s_cselect_b32 s{sT0}, s{sT0}, s{sT1}
    s_add_u32 s{sTO}, s{sT0}, s{sB}
    s_and_b32 s{sTO}, s{sTO}, 31
    s_lshl_b32 s{sTO}, s{sTO}, 13
    s_add_u32 s{sTO2}, s{sTO}, 4096
    s_lshl_b32 s{sT0}, s{sT0}, 18
    s_add_u32 s{SK}, s{SK}, s{sT0}
    s_addc_u32 s{SK+1}, s{SK+1}, 0
    s_add_u32 s{SV}, s{SV}, s{sT0}
    s_addc_u32 s{SV+1}, s{SV+1}, 0
    s_mov_b32 s{SK+2}, {KVN}
    s_mov_b32 s{SK+3}, 0x20000
    s_mov_b32 s{SV+2}, {KVN}
    s_mov_b32 s{SV+3}, 0x20000
    """)
    if CFG["share"]:
        A(f"""
        s_and_b32 s{sT0}, s{sW}, 1
        s_lshl_b32 s{sT1}, s{sBR}, 1
        s_or_b32 s{sT0}, s{sT0}, s{sT1}
        s_cmp_eq_u32 s{sT0}, 0
        s_cselect_b32 s{sCNT}, 0, s{SK+2}
        s_cmp_eq_u32 s{sT0}, 1
        s_cselect_b32 s{SK+2}, 0, s{SK+2}
        s_mov_b32 s{SV+2}, s{SK+2}
        """)
    part_srd(A)
    if CFG["tlb"]:
        A(f"""
        s_cmp_eq_u32 s{sBR}, 0
        s_cselect_b32 s72, s72, s82
        s_cselect_b32 s73, s73, s83
        s_mul_i32 s{sT0}, s{sH}, {128*1152}
        s_load_dword s64, s[72:73], s{sT0}
        s_load_dword s65, s[{SK}:{SK+1}], 0
        s_load_dword s66, s[{SV}:{SV+1}], 0
        s_mul_i32 s{sT1}, s{sW}, {(PART - 4096) // 3}
        s_load_dword s67, s[{SP}:{SP+1}], s{sT1}
        s_mul_i32 s{sT3}, s{sB}, {96*2304}
        s_load_dword s68, s[100:101], s{sT3}
        s_load_dword s69, s[{sDBG}:{sDBG+1}], 0
        s_mov_b32 s82, s72
        s_mov_b32 s83, s73
        """)
    A(f"""
    s_mov_b32 s{sTHR}, {f2u(CFG['thr'])}
    s_mov_b32 s{sSC}, {f2u(LOG2E * 128 ** -0.5)}
    s_mov_b32 s{sSC+1}, {f2u(LOG2E * 128 ** -0.5)}
    v_bfe_u32 v1, v{vLane}, 4, 1          ; dsub
    v_lshrrev_b32 v2, 5, v{vLane}         ; h
    v_bfe_u32 v3, v{vLane}, 2, 2          ; r
    v_and_b32 v4, 3, v{vLane}             ; c
    v_lshl_add_u32 v30, v2, 2, v3
    v_lshlrev_b32 v30, 8, v30
    v_lshl_add_u32 v30, v1, 5, v30
    v_lshl_add_u32 v30, v4, 3, v30
    s_and_b32 s{sT0}, s{sW}, 2
    s_cmp_eq_u32 s{sBR}, {0 if CFG['share'] else 7}
    s_cselect_b32 s{sT0}, s{sT0}, s{sW}
    s_mul_i32 s{sKD}, s{sT0}, {REG}
    s_add_u32 s{sT0}, s{sKD}, {V1O}
    v_add_u32 v30, s{sT0}, v30
    """)
    for db in range(4):
        A(f"v_xor_b32 v31, {db}, v3")
        A(f"v_lshl_add_u32 v{vVr+db}, v31, 6, v30")
    A(f"""
    v_lshl_add_u32 v30, v2, 3, v3
    v_lshlrev_b32 v30, 8, v30
    v_lshl_add_u32 v30, v1, 5, v30
    v_and_b32 v31, 1, v4
    v_lshl_add_u32 v30, v31, 4, v30
    v_lshrrev_b32 v31, 1, v4
    v_lshl_add_u32 v30, v31, 3, v30
    """)
    for db in range(4):
        A(f"v_xor_b32 v31, {db}, v3")
        A(f"v_lshl_add_u32 v31, v31, 6, v30")
        A(f"v_add_u32 v{vWr+db}, s{sRG}, v31")
    A(f"""
    v_lshl_add_u32 v31, v2, 3, v3
    v_lshlrev_b32 v31, 7, v31
    v_sub_u32 v30, v30, v31
    v_add_u32 v30, s{sRG}, v30
    v_lshrrev_b32 v31, 1, v3
    v_lshl_add_u32 v{vHr}, v31, 6, v30
    v_xor_b32 v31, 1, v31
    v_lshl_add_u32 v{vHr+1}, v31, 6, v30
    v_and_b32 v1, 31, v{vLane}
    v_bfe_u32 v3, v{vLane}, 1, 3
    v_xor_b32 v3, v3, v2
    s_lshl_b32 s{sT0}, s{sKR}, 2
    v_xor_b32 v3, s{sT0}, v3
    v_lshlrev_b32 v30, 7, v1
    v_add_u32 v30, {XB}, v30
    """)
    for s in range(4):
        A(f"v_xor_b32 v31, {2*s}, v3")
        A(f"v_lshl_add_u32 v{vXr+s}, v31, 4, v30")
    A(f"""
    v_lshrrev_b32 v3, 2, v1
    v_mul_u32_u24 v3, 1088, v3
    v_lshl_add_u32 v3, v4, 8, v3
    v_add_u32 v3, s{sKD}, v3
    v_xor_b32 v30, v2, v4
    v_lshl_add_u32 v{vKr}, v30, 4, v3
    v_xor_b32 v30, 2, v30
    v_lshl_add_u32 v{vKr+1}, v30, 4, v3
    """)
    if CFG["q16"]:
        A(f"""
        v_lshrrev_b32 v1, 4, v{vLane}          ; kq
        v_bfe_u32 v2, v{vLane}, 2, 2           ; r
        v_lshl_add_u32 v30, v1, 3, v2
        v_lshlrev_b32 v30, 8, v30
        v_and_b32 v31, 1, v{vLane}
        v_lshl_add_u32 v30, v31, 3, v30
        v_add_u32 v30, s{sRG}, v30
        v_bfe_u32 v31, v{vLane}, 1, 1
        v_lshl_add_u32 v31, v2, 2, v31
        v_and_b32 v2, 1, v1
        v_lshl_add_u32 v31, v2, 1, v31
        """)
        for dt in range(8):
            A(f"v_xor_b32 v2, {2*dt}, v31")
            A(f"v_lshl_add_u32 v{16+dt}, v2, 4, v30")
        A(f"""
        v_and_b32 v2, 15, v{vLane}
        v_lshlrev_b32 v30, 7, v2
        v_add_u32 v30, {XB}, v30
        v_lshrrev_b32 v2, 1, v2
        v_xor_b32 v2, v2, v1
        v_lshl_add_u32 v24, v2, 4, v30
        v_xor_b32 v2, 4, v2
        v_lshl_add_u32 v25, v2, 4, v30
        """)
    A(f"s_and_b32 s{sT0}, s{sB}, 1")
    A(f"s_lshl_b32 s{sT0}, s{sT0}, 7")
    A(f"v_add_u32 v47, s{sT0}, v47")
    for p in range(4): A(f"v_add_u32 v{vWoX+p}, {p*(8*1152-1024)}, v47")
    for g in (h_gran(2) if CFG["coop"] else wq_gran(2)): emit(A, vm, g)
    allinit = CFG['own'] or CFG['coop']
    if CFG["fuse"]:
        A(f"""
        s_lshl_b32 s94, s{sBR}, 4
        s_add_u32 s94, s94, s{sB}
        s_or_b32 s{sT0}, s{sW if allinit else sBR}, s{sW}
        s_cmp_lg_u32 s{sT0}, 0
        s_cbranch_scc1 L_noinit
        s_lshl_b32 s{sT0}, s94, 3
        s_add_u32 s{sT0}, s{sT0}, s{sJJ}
        s_lshl_b32 s{sT0}, s{sT0}, 8
        s_add_u32 s{sT0}, s{sT0}, {FLAG_OFF}
        v_lshlrev_b32 v48, 2, v{vLane}
        v_add_u32 v48, s{sT0}, v48
        v_mov_b32 v49, 0
        global_store_dword v48, v49, s[{sWS}:{sWS+1}] sc1
        L_noinit:
        """)
    def qp_reads(n):
        fb = n & 1
        L = []
        for qb in range(3):
            L.append(f"ds_read_b128 {ar(aXf + fb*12 + qb*4, 4)}, v{vXr + n % 4} offset:{((n // 4) % 2) * 12288 + qb*4096}")
        for db in range(4):
            for u in range(2):
                L.append(f"ds_read_b64_tr_b16 {ar(aWf + fb*16 + db*4 + u*2, 2)}, v{vWr+db} offset:{(n % R) * 4096 + u * 1024}")
        return L
    init2 = [f"s_or_b32 s{sT0}, s{sW if allinit else sBR}, s{sW}", f"s_cmp_lg_u32 s{sT0}, 0", "s_cbranch_scc1 L_noinit2",
             "s_waitcnt vmcnt(0)",
             f"s_lshl_b32 s{sT0}, s94, 3", f"v_mov_b32 v48, s{sT0}", "v_mov_b32 v49, 1", "s_mov_b64 exec, 1",
             f"global_atomic_add v48, v49, s[{sDBG}:{sDBG+1}] sc1", "s_mov_b64 exec, -1", "L_noinit2:"]
    def k_read(s, slot, sh=False):
        return f"ds_read_b128 {ar(aK+4*s,4)}, v{vKr+(s&1)} offset:{(KVD if slot==0 else (REG if sh else 0)) + 64*(s>>1)}"
    wo_srd = [f"s_cmp_eq_u32 s{sBR}, 0", f"s_cselect_b32 s{SWO}, s72, s82", f"s_cselect_b32 s{SWO+1}, s73, s83",
              f"s_mov_b32 s{SWO+2}, {0 if CFG.get('nowo') else 4096*1152}", f"s_mov_b32 s{SWO+3}, 0x20000"]
    if CFG["coop"]:
        aHB = 144
        def h_reads(m):
            fb = m & 1
            L = [f"ds_read_b64_tr_b16 {ar(aWf + fb*16 + (kk*2+db)*4 + u*2, 2)}, v{vHr+db} offset:{(m % 4)*4096 + (16*kk+4*u)*128}"
                 for kk in range(2) for db in range(2) for u in range(2)]
            X = [f"ds_read_b128 {ar(aHB + fb*24 + kk*12 + qb*4, 4)}, v{vXr + 2*(m%2) + kk} offset:{((m // 2) % 2) * 12288 + qb*4096}"
                 for kk in range(2) for qb in range(3)]
            return L[:4] + X[:3] + L[4:] + X[3:]
        A(f"""
        s_mov_b32 s{sKR}, s{SK+2}
        s_cmp_eq_u32 s{sBR}, 0
        s_cselect_b32 s{SK+2}, 0, s{SK+2}
        s_mov_b32 s{SV+2}, s{SK+2}
        """)
        emit(A, vm, [("wait", ["x0", "h0"], ""), "s_barrier"])
        stamp(A, 11)
        for r in h_reads(0): A(r)
        hq = []
        for m in range(3, 18):
            for g in h_gran(m): hq.append((max(0, m - 4), g))
        for p in range(8): hq.append((0, k_piece(p, 0, tag="K0")))
        for p in range(8): hq.append((0, v_piece(p, 0, tag="V0", force_m0=True)))
        for m in range(18):
            fb = m & 1
            mf = []
            for kk in range(2):
                for db in range(2):
                    for qb in range(3):
                        acc = vr(64 + (qb*2+db)*16, 16)
                        mf.append(f"v_mfma_f32_32x32x16_bf16 {acc}, {ar(aWf+fb*16+(kk*2+db)*4,4)}, {ar(aHB+fb*24+kk*12+qb*4,4)}, {'0' if (m == 0 and kk == 0) else acc}")
            gaps = {}
            dma = []
            if m < 17:
                tags = [f"h{m+1}"] + ([f"x{m//2+1}"] if m % 2 == 1 else [])
                gaps[-1] = [("wait", tags, "lgkmcnt(0)")]
                if m % 2 == 1:
                    gaps[-1].append("s_barrier")
                    if m // 2 + 2 < 9: dma += x_chunk(m // 2 + 2)
                rd = h_reads(m + 1)
                for i, r in enumerate(rd): gaps.setdefault(i * 11 // len(rd), []).append(r)
            else:
                gaps[-1] = ["s_waitcnt lgkmcnt(0)", "s_barrier"]
            while hq and hq[0][0] <= m and len(dma) < CFG["hbud"]:
                dma.append(hq.pop(0)[1])
            for i, g in enumerate(dma): gaps.setdefault((i * 12) // len(dma), []).extend(g)
            if m == 4: gaps.setdefault(11, []).extend(init2)
            if m == 13:
                gaps.setdefault(11, []).extend([f"s_lshl_b32 s{sT0}, s{sB}, 3", f"s_add_u32 s{sT0}, s{sT0}, 128", f"v_mov_b32 v50, s{sT0}",
                    ("vm", "ic", f"global_load_dword v51, v50, s[{sDBG}:{sDBG+1}] sc1")])
            interleave(A, mf, gaps, vm)
        assert not hq
        if CFG.get("hst"): stamp(A, 8)
        hconv = []
        for qb in range(3):
            for db in range(2):
                src = 64 + (qb*2+db)*16
                hconv += [f"v_pk_mul_f32 {vr(src+2*i,2)}, {vr(src+2*i,2)}, s[{sSC}:{sSC+1}]" for i in range(8)]
                hconv += [f"v_cvt_pk_bf16_f32 v{vQ+32*qb+8*db+i}, v{src+2*i}, v{src+2*i+1}" for i in range(8)]
        A(f"""
        s_lshl_b32 s{sT0}, s{sB}, 5
        s_add_u32 s{sT0}, s{sT0}, s{sH}
        s_mul_i32 s{sT0}, s{sT0}, 12288
        s_add_u32 s{sT0}, s{sT0}, {QOFF}
        v_lshlrev_b32 v56, 4, v{vLane}
        v_add_u32 v56, s{sT0}, v56
        v_add_u32 v57, 4096, v56
        v_add_u32 v58, 8192, v56
        s_lshl_b32 s{sT0}, s{sB}, 3
        s_add_u32 s{sT0}, s{sT0}, s{sJJ}
        s_lshl_b32 s{sT0}, s{sT0}, 8
        s_lshl_b32 s{sT1}, s{sW}, 2
        s_add_u32 s{sT0}, s{sT0}, s{sT1}
        s_add_u32 s{sT0}, s{sT0}, {FLAG_OFF + 128*256 + 128}
        v_mov_b32 v59, s{sT0}
        s_cmp_eq_u32 s{sBR}, 0
        s_cbranch_scc1 L_hA
        """)
        vmB = VM(); vmB.ops = list(vm.ops)
        rest = [tile_advance() + k_piece(0, 1, tag="K1")] + [k_piece(p, 1, tag="K1") for p in range(1, 8)]
        rest += [v_piece(p, 1, tag="V1", force_m0=True) for p in range(8)]
        rest[-1] = rest[-1] + tile_advance()
        emit(A, vmB, wo_srd)
        for i, o in enumerate(hconv):
            A(o)
            if i % 6 == 0 and rest: emit(A, vmB, rest.pop(0))
        assert not rest
        for i in range(192): A(f"v_accvgpr_write_b32 a{aO+i}, 0")
        emit(A, vmB, [("wait", ["K0"], "")])
        for sx in range(8): A(k_read(sx, 0))
        A(f"""
        s_mov_b32 s{sT1}, 0
        L_hpoll:
        global_load_dword v60, v59, s[{sWS}:{sWS+1}] sc1
        s_waitcnt vmcnt(0)
        v_cmp_ne_u32 vcc, 1, v60
        s_add_u32 s{sT1}, s{sT1}, 1
        s_cbranch_vccz L_hgo
        s_sleep 2
        s_cmp_lt_u32 s{sT1}, 0x80000
        s_cbranch_scc1 L_hpoll
        L_hgo:
        """)
        for qb in range(3):
            for j in range(4):
                A(f"global_load_dwordx4 {vr(vQ+32*qb+16+4*j,4)}, v{56+qb}, s[{sWS}:{sWS+1}] offset:{1024*j} sc1")
        stamp(A, 1)
        A("s_waitcnt vmcnt(0)")
        A("s_branch L_qdone")
        A(f"""
        L_hA:
        s_mov_b32 s{SX}, s64
        s_mov_b32 s{SX+1}, s65
        s_mov_b32 s{SWQ}, s70
        s_mov_b32 s{SWQ+1}, s71
        s_sub_u32 s{sWQ0}, s{sWQ0}, 128
        s_mov_b32 s{SK+2}, s{sKR}
        s_mov_b32 s{SV+2}, s{sKR}
        """)
        for k, o in enumerate(hconv):
            A(o)
            if k % 16 == 15:
                qb, db = (k // 16) // 2, (k // 16) % 2
                for hf in range(2):
                    A(f"global_store_dwordx4 v{56+qb}, {vr(vQ+32*qb+8*db+4*hf,4)}, s[{sWS}:{sWS+1}] offset:{1024*(2*db+hf)} sc1")
        vm = VM()
        vm.add("qs")
        for g in x_chunk(0) + wq_gran(0): emit(A, vm, g)
        emit(A, vm, [("wait", ["qs"], "")])
        A(f"""
        v_readfirstlane_b32 s{sT0}, v51
        s_mov_b32 s{sT1}, 0
        s_cmp_ge_u32 s{sT0}, 8
        s_cbranch_scc1 L_hok
        L_hipoll:
        global_load_dword v51, v50, s[{sDBG}:{sDBG+1}] sc1
        s_waitcnt vmcnt(0)
        v_readfirstlane_b32 s{sT0}, v51
        s_add_u32 s{sT1}, s{sT1}, 1
        s_cmp_ge_u32 s{sT0}, 8
        s_cbranch_scc1 L_hok
        s_sleep 4
        s_cmp_lt_u32 s{sT1}, 0x80000
        s_cbranch_scc1 L_hipoll
        L_hok:
        v_mov_b32 v60, 1
        s_mov_b64 exec, 1
        global_store_dword v59, v60, s[{sWS}:{sWS+1}] sc1
        s_mov_b64 exec, -1
        """)
        vm.add("fl")
        if CFG.get("hst"): stamp(A, 9)
        for g in wq_gran(1) + wq_gran(2): emit(A, vm, g)
    def q16_reads(m):
        fb = m & 1
        X = [f"ds_read_b128 {ar(192 + fb*24 + qt*4, 4)}, v{24 + m % 2} offset:{((m // 2) % 2) * 12288 + qt*2048}" for qt in range(6)]
        L = [f"ds_read_b64_tr_b16 {ar(128 + fb*32 + dt*4 + u*2, 2)}, v{16+dt} offset:{((2*m) % R) * 4096 + u * 1024}"
             for dt in range(8) for u in range(2)]
        return L[:2] + X + L[2:]
    if CFG["q16"]:
        for g in wq_gran(3): emit(A, vm, g)
    emit(A, vm, [("wait", ["x0", "w1" if CFG["q16"] else "w0"], ""), "s_barrier"])
    if not CFG["coop"]: stamp(A, 11)
    for r in (q16_reads(0) if CFG["q16"] else qp_reads(0)): A(r)
    wqq = []
    for n in range(4 if CFG["q16"] else 3, 36):
        for g in wq_gran(n): wqq.append((max(0, n - R), g))
    for (kind, slot) in (("k", 0), ("v", 0), ("k", 1), ("v", 1)):
        for p in range(8):
            if kind == "k":
                lo = (K0O if slot == 0 else K1O) + 1088 * p
                g = k_piece(p, slot, tag=f"K{slot}")
            else:
                lo = (V0O if slot == 0 else V1O) + 1024 * p
                g = v_piece(p, slot, tag=f"V{slot}", force_m0=True)
                if p == 7: g = g + tile_advance()
            slots = [sl for sl in range(R) if lo < (sl + 1) * 4096 and lo + 1024 > sl * 4096]
            avail = max([max(n for n in range(36) if n % R == sl) for sl in slots] + [0])
            if CFG["share"] and kind == "v" and p == 7:
                if slot == 0: g = g + [f"s_mov_b32 s{SK+2}, s{sCNT}", f"s_mov_b32 s{SV+2}, s{sCNT}"]
                else: g = g + [f"s_mov_b32 s{SK+2}, {KVN}", f"s_mov_b32 s{SV+2}, {KVN}"]
            avail = max(avail, CFG["kvstart"])
            wqq.append((avail, g))
    zero_o = [f"v_accvgpr_write_b32 a{aO+i}, 0" for i in range(192)]
    if CFG["q16"]:
        zero_o = zero_o[:128]
        for m in range(18):
            fb = m & 1
            mf = []
            for dt in range(8):
                for qt in range(6):
                    acc = vr(vQA + (((qt // 2) * 8 + dt) * 2 + qt % 2) * 4, 4)
                    mf.append(f"v_mfma_f32_16x16x32_bf16 {acc}, {ar(128+fb*32+dt*4,4)}, {ar(192+fb*24+qt*4,4)}, {acc if m > 0 else '0'}")
            fill = []
            dma = []
            if m < 17:
                tags = [f"w{2*m+3}"] + ([f"x{m//2+1}"] if m % 2 == 1 else [])
                pre = [("wait", tags, "lgkmcnt(0)")]
                if m % 2 == 1:
                    pre.append("s_barrier")
                    if m // 2 + 2 < 9: dma += x_chunk(m // 2 + 2)
                rd = q16_reads(m + 1)
            else:
                pre = ["s_waitcnt lgkmcnt(0)"]; rd = []
            if m == 0: dma += x_chunk(1)
            while wqq and wqq[0][0] <= 2 * m + 1 and len(dma) < 2 * CFG["qbud"]:
                dma.append(wqq.pop(0)[1])
            gaps = {-1: pre}
            if m == 0:
                gaps[-1] = ["s_waitcnt lgkmcnt(0)"]
                gaps[36] = [("wait", ["w3"], "")]
                for i, r in enumerate(rd): gaps.setdefault(36 + i // 2, []).append(r)
                for i, g in enumerate(dma): gaps.setdefault(37 + (i * 11) // len(dma), []).extend(g)
            else:
                for i, r in enumerate(rd): gaps.setdefault(2 * i, []).append(r)
                for i, g in enumerate(dma): gaps.setdefault(2 * ((i * 24) // len(dma)) + 1, []).extend(g)
            if m == 17: zero_o += [f"v_accvgpr_write_b32 a{128+i}, 0" for i in range(32)]
            if CFG["kvpf"]:
                for n in (2 * m, 2 * m + 1):
                    if CFG["kvs"] <= n < CFG["kve"]:
                        tot = 4 * CFG["kvpf"]; span = CFG["kve"] - CFG["kvs"]
                        for i in range((n - CFG["kvs"]) * tot // span, (n + 1 - CFG["kvs"]) * tot // span):
                            g = [f"v_lshlrev_b32 v61, 6, v{vLane}"] if i == 0 else []
                            g += [f"s_add_u32 s{sT0}, s{sTO}, {(CFG['kv0'] + i // 4) * 8192 + (i % 2) * 4096}", f"s_and_b32 s{sT0}, s{sT0}, 0x3ffff",
                                  ("vm", "pf", f"buffer_load_dword v62, v61, {srd(SK if i % 4 < 2 else SV)}, s{sT0} offen {CFG['kvf']}")]
                            gaps.setdefault(46 - 2 * (n % 2), []).extend(g)
            if m == 3 and CFG["fuse"]: gaps.setdefault(47, []).extend(init2)
            if m >= 4:
                for i in range(48):
                    if zero_o and i not in gaps: gaps[i] = [zero_o.pop(0)]
            interleave(A, mf, gaps, vm)
            if m in (1, 8) and not (CFG.get("midst") or CFG.get("gst")): stamp(A, 8 if m == 1 else 9)
    for n in range(0 if CFG["q16"] else 36):
        fb = n & 1
        mf = []
        for db in range(4):
            for qb in range(3):
                T = qb * 4 + db
                c = vr(vQA+16*T, 16) if n > 0 else "0"
                mf.append(f"v_mfma_f32_32x32x16_bf16 {vr(vQA+16*T,16)}, {ar(aWf+fb*16+db*4,4)}, {ar(aXf+fb*12+qb*4,4)}, {c}")
        gaps = {}
        pre = []
        dma = []
        if n < 35:
            tags = [f"w{n+1}"]
            if n % 4 == 3: tags.append(f"x{n//4+1}")
            pre.append(("wait", tags, "lgkmcnt(0)"))
            if n % 4 == 3:
                pre.append("s_barrier")
                if n // 4 + 2 < 9: dma += x_chunk(n // 4 + 2)
            for i, r in enumerate(qp_reads(n + 1)): gaps.setdefault(i, []).append(r)
        else:
            pre += ["s_waitcnt lgkmcnt(0)"]
        gaps[-1] = pre
        if n == 0:
            dma += [wqq.pop(0)[1] for _ in range(4)] + x_chunk(1)
        while wqq and wqq[0][0] <= n and len(dma) < CFG["qbud"]:
            dma.append(wqq.pop(0)[1])
        for i, g in enumerate(dma):
            gaps.setdefault((i * 12) // len(dma), []).extend(g)
        if CFG["wopf"] == -4 and n == CFG["pfs"]:
            gaps.setdefault(11, []).extend([
                f"s_cmp_eq_u32 s{sBR}, 0", f"s_cselect_b32 s72, s72, s82", f"s_cselect_b32 s73, s73, s83",
                f"s_lshl_b32 s{sT0}, s{sB}, 2", f"s_add_u32 s{sT0}, s{sT0}, s{sW}", f"s_mul_i32 s{sT0}, s{sT0}, {72*128}",
                f"s_mul_i32 s{sT1}, s{sJJ}, {512*1152}", f"s_add_u32 s{sT0}, s{sT0}, s{sT1}", f"v_lshlrev_b32 v40, 7, v{vLane}",
                f"v_add_u32 v40, s{sT0}, v40",
                ("vm", "pf", f"global_load_dword v41, v40, s[72:73] nt"),
                "s_mov_b64 exec, 0xff",
                f"v_add_u32 v45, 8192, v40",
                ("vm", "pf", f"global_load_dword v42, v45, s[72:73] nt"),
                "s_mov_b64 exec, -1"])
        if CFG["wopf"] == -4 and n == CFG["pfs"] + 5:
            gaps.setdefault(11, []).extend([
                ("vm", "pf", f"global_load_dword v43, v40, s[72:73] sc1"),
                "s_mov_b64 exec, 0xff",
                ("vm", "pf", f"global_load_dword v44, v45, s[72:73] sc1"),
                "s_mov_b64 exec, -1"])
        if CFG["kvpf"] and n >= CFG["kvs"] and n < CFG["kve"]:
            tot = 4 * CFG["kvpf"]
            span = CFG["kve"] - CFG["kvs"]
            lo, hi = (n - CFG["kvs"]) * tot // span, (n + 1 - CFG["kvs"]) * tot // span
            for k, i in enumerate(range(lo, hi)):
                g = []
                if i == 0: g.append(f"v_lshlrev_b32 v61, 6, v{vLane}")
                g += [f"s_add_u32 s{sT0}, s{sTO}, {(CFG['kv0'] + i // 4) * 8192 + (i % 2) * 4096}", f"s_and_b32 s{sT0}, s{sT0}, 0x3ffff",
                      ("vm", "pf", f"buffer_load_dword v62, v61, {srd(SK if i % 4 < 2 else SV)}, s{sT0} offen {CFG['kvf']}")]
                gaps.setdefault(11 - 4 * k, []).extend(g)
        if n == CFG["tls"]:
            gaps.setdefault(5, []).extend([f"v_mov_b32 v50, s{sTO}",
                ("vm", "tl", f"global_load_dword v51, v50, s[{SK}:{SK+1}] nt"), ("vm", "tl", f"global_load_dword v52, v50, s[{SV}:{SV+1}] nt")])
        if n == 6 and CFG["fuse"] and not CFG["coop"]: gaps.setdefault(11, []).extend(init2)
        if n >= 8 and zero_o:
            for i in range(12):
                if zero_o: gaps.setdefault(i, []).append(zero_o.pop(0))
        interleave(A, mf, gaps, vm)
        if n in (3, 17) and not (CFG.get("midst") or CFG.get("gst") or CFG.get("sst") or CFG.get("hst")): stamp(A, 8 if n == 3 else 9)
    assert not zero_o
    kvq = [g for _, g in wqq]
    stamp(A, 1)
    def k_read(s, slot, sh=False):
        return f"ds_read_b128 {ar(aK+4*s,4)}, v{vKr+(s&1)} offset:{(KVD if slot==0 else (REG if sh else 0)) + 64*(s>>1)}"
    def v_read(f, u, slot, sh=False):
        ks, db = f // 4, f % 4
        return f"ds_read_b64_tr_b16 {ar(aV+(db*2+ks)*4+2*u,2)}, v{vVr+db} offset:{(KVD if slot==0 else (REG if sh else 0)) + (16*ks+8*u)*256}"
    A(f"""
    s_cmp_eq_u32 s{sBR}, 0
    s_cselect_b32 s{SWO}, s72, s82
    s_cselect_b32 s{SWO+1}, s73, s83
    s_mov_b32 s{SWO+2}, {0 if CFG.get('nowo') else 4096*1152}
    s_mov_b32 s{SWO+3}, 0x20000
    s_nop 7
    """)
    for j in range(95, -1, -1):
        s0 = vQA + 2 * j
        A(f"v_pk_mul_f32 {vr(s0,2)}, {vr(s0,2)}, s[{sSC}:{sSC+1}]")
        if j < 95:
            A(f"v_cvt_pk_bf16_f32 v{vQ+j+1}, v{vQA+2*j+2}, v{vQA+2*j+3}")
        if j % (4 if CFG["kvstart"] < 34 else 2) == 0 and kvq: emit(A, vm, kvq.pop(0))
        if j == 8:
            assert not kvq
            emit(A, vm, [("wait", ["K0"], "")] + (["s_barrier"] if CFG["share"] else []))
            for s in range(8): A(k_read(s, 0))
    A(f"v_cvt_pk_bf16_f32 v{vQ}, v{vQA}, v{vQA+1}")
    if CFG["q16"]:
        for g in range(23, -1, -1):
            A(f"v_permlane16_swap_b32 v{vQ+4*g}, v{vQ+4*g+2}")
            A(f"v_permlane16_swap_b32 v{vQ+4*g+1}, v{vQ+4*g+3}")
    A("L_qdone:")
    zz = [f"v_accvgpr_write_b32 a{aV+i}, 0" for i in range(32)] + [f"v_mov_b32 v{vP+16+i}, 0" for i in range(8)] + [f"v_mov_b32 v{vL+i}, 0" for i in range(3)]
    if CFG["q16"]: zz += [f"v_accvgpr_write_b32 a{160+i}, 0" for i in range(32)]
    A("s_nop 0")
    A("s_waitcnt lgkmcnt(0)")
    def qk(qb, s, cinit=None):
        c = vr(vS+16*qb, 16) if s > 0 else (cinit if cinit is not None else vr(vNM+16*qb, 16))
        return f"v_mfma_f32_32x32x16_bf16 {vr(vS+16*qb,16)}, {ar(aK+4*s,4)}, {vr(vQ+32*qb+4*s,4)}, {c}"
    def pv(qb, m):
        ks, db = m // 4, m % 4
        o = ar(aO + (qb*4+db)*16, 16)
        return f"v_mfma_f32_32x32x16_bf16 {o}, {ar(aV+(db*2+ks)*4,4)}, {vr(vP+8*qb+4*ks,4)}, {o}"
    def rowmax(qb, dst, tmp):
        s = vS + 16 * qb
        L = [f"v_max3_f32 v{dst}, v{s}, v{s+1}, v{s+2}"]
        for i in range(3, 15, 2):
            L.append(f"v_max3_f32 v{dst}, v{dst}, v{s+i}, v{s+i+1}")
        L.append(f"v_max_f32 v{dst}, v{dst}, v{s+15}")
        L += [f"v_mov_b32 v{tmp}, v{dst}", "s_nop 1", f"v_permlane32_swap_b32 v{dst}, v{tmp}", "s_nop 1",
              f"v_max_f32 v{dst}, v{dst}, v{tmp}"]
        return L
    def init_ops(qb):
        L = rowmax(qb, vT, vT+1)
        L += [f"v_sub_f32 v{vNM+16*qb+i}, 0, v{vT}" for i in range(16)]
        if qb == 0: L += [f"v_sub_f32 v{vS+i}, v{vS+i}, v{vT}" for i in range(16)]
        return L
    mf = [qk(qb, s, cinit="0") for qb in range(3) for s in range(8)]
    gaps = {}
    for i, o in enumerate(zz): gaps.setdefault(i * 10 // len(zz), []).append(o)
    gaps[9].append("s_nop 1")
    ops = init_ops(0)
    for i, o in enumerate(ops): gaps.setdefault(10 + i * 8 // len(ops), []).append(o)
    ops = init_ops(1)
    for i, o in enumerate(ops): gaps.setdefault(19 + i * 5 // len(ops), []).append(o)
    interleave(A, mf, gaps)
    A("s_nop 7")
    for o in init_ops(2): A(o)
    stamp(A, 2)
    sites = []
    def softmax_ops(qb, site):
        s = vS + 16 * qb
        ops = []
        for i in range(16):
            ops.append((8, f"v_exp_f32 v{vE+i%8}, v{s+i}"))
            if i == 2: ops.append((4, f"v_add_f32 v{vPS}, v{vE}, v{vE+1}"))
            elif i > 2: ops.append((4, f"v_add_f32 v{vPS}, v{vPS}, v{vE+(i-1)%8}"))
            if i >= 2 and i % 2 == 0:
                ops.append((4, f"v_cvt_pk_bf16_f32 v{vP+8*qb+(i-2)//2}, v{vE+(i-2)%8}, v{vE+(i-1)%8}"))
        ops.append((4, f"v_add_f32 v{vPS}, v{vPS}, v{vE+7}"))
        ops.append((4, f"v_cvt_pk_bf16_f32 v{vP+8*qb+7}, v{vE+6}, v{vE+7}"))
        tail = [f"v_cmp_nge_f32 vcc, s{sTHR}, v{vPS}", f"s_cbranch_vccnz L_tramp_{site}", f"L_back_{site}:",
                f"v_add_f32 v{vL+qb}, v{vL+qb}, v{vPS}"]
        sites.append((site, qb))
        return ops, tail
    def double_phase(mf, qb_sm, site, extra):
        ops, tail = softmax_ops(qb_sm, site)
        gaps = {k: list(v) for k, v in extra.items()}
        total = sum(c for c, _ in ops)
        g0, g1 = 2, len(mf) - 1
        acc = 0
        for c, o in ops:
            g = g0 + min(g1 - g0 - 1, int(acc * (g1 - g0) / total))
            gaps.setdefault(g, []).append(o)
            acc += c
        gaps.setdefault(len(mf) - 1, []).extend(tail)
        n = 3
        for k in (-1, ("pre", 0), 0, ("pre", 1), 1, ("pre", 2)):
            n += len([x for x in gaps.get(k, []) if not x.endswith(":")])
        n += 3
        for x in gaps[2]:
            if x.startswith("v_exp"): break
            n += 1
        if n < 12:
            gaps.setdefault(1, []).append(f"s_nop {12 - n - 1}")
        interleave(A, mf, gaps)
    def wox_piece(p):
        r = []
        if p % 4 == 0:
            g = p // 4
            r += [f"s_add_u32 m0, s{sRG}, {RINGO + 1024 * p}", f"s_add_u32 s{sT2}, s{sX0 if g % 2 == 0 else sWC}, {32 * 1152 * (g // 2)}"]
        return r + [f"buffer_load_dwordx4 v{vWoX + p % 4}, {srd(SWO)}, s{sT2} offen offset:{1024 * (p % 4)} {CFG['wof']} lds"]
    TW = list(range(64, 76))
    TL = list(range(76, 84)) + [8, 9, 10, 11]
    def tables():
        L = [f"s_lshr_b32 s{sCI}, s{sB}, 1", f"s_mul_i32 s{sCI}, s{sCI}, 3", f"s_lshr_b32 s{sCI}, s{sCI}, 1",
             f"s_lshl_b32 s{sXC}, s{sW}, 2", f"s_add_u32 s{sXC}, s{sXC}, 4"]
        G = [L]
        for i in range(12):
            G.append([f"s_add_u32 s{sT1}, s{sCI}, s{sXC}", f"s_and_b32 s{sT1}, s{sT1}, 15",
                      f"s_add_u32 s{sCI}, s{sCI}, 1", f"s_cmp_eq_u32 s{sCI}, 12", f"s_cselect_b32 s{sCI}, 0, s{sCI}"])
            G.append([f"s_mul_i32 s{TW[i]}, s{sT1}, {32*1152}", f"s_add_u32 s{TW[i]}, s{TW[i]}, s{sWQ0}",
                      f"s_lshr_b32 s{sT0}, s{sT1}, 2", f"s_and_b32 s{sT1}, s{sT1}, 3", f"s_mul_i32 s{TL[i]}, s{sT0}, {REG}"])
            G.append([f"s_mul_i32 s{sT3}, s{sT1}, 6144", f"s_add_u32 s{TL[i]}, s{TL[i]}, s{sT3}",
                      f"s_mul_i32 s{sT0}, s{sT0}, 6144", f"s_add_u32 s{sT0}, s{sT0}, {XB}",
                      f"s_cmp_eq_u32 s{sT1}, 3", f"s_cselect_b32 s{TL[i]}, s{sT0}, s{TL[i]}"])
        return G
    def tile(par, mode, tagp, sh):
        ex = [dict(), dict(), dict()]
        def put(gam, instrs): ex[gam // 16].setdefault(gam % 16, []).extend(instrs)
        bar = ["s_barrier"] if sh else []
        if CFG.get("trace"):
            put(41, ["s_memrealtime s[92:93]"])
            put(47, ["s_waitcnt lgkmcnt(0)", "s_mov_b32 m0, s91", "v_writelane_b32 v159, s92, m0", "s_add_u32 s91, s91, 1"])
        ex[0][-1] = ["s_waitcnt vmcnt(%d)" % (0 if mode == "last" else (8 if sh else 16))] + bar
        for k in range(16):
            put(k // 2 if k < 4 else k - 2, [v_read(k // 2, k % 2, par, sh)])
        ex[1][("pre", 0)] = ["s_waitcnt lgkmcnt(4)"]
        ex[1][("pre", 6)] = ["s_waitcnt lgkmcnt(0)"]
        if mode != "last":
            if sh: n = 8 if mode == "steady" else 4
            else: n = 19 if mode == "steady" else 8
            ex[2][-1] = ["s_waitcnt vmcnt(%d)" % n] + bar
            for s in range(8): put(32 + s // 4, [k_read(s, par ^ 1, sh)])
            ex[2][("pre", 8)] = ["s_waitcnt lgkmcnt(0)"]
        else:
            ex[2][-1] = bar
        if mode == "steady":
            if sh:
                for p in range(4):
                    th = [f"s_waitcnt vmcnt({CFG['da']})"] if CFG["da"] >= 0 else []
                    put(6 * p + 1, th + k_piece(p, par, shared=True))
                    th = [f"s_waitcnt vmcnt({CFG['da'] + CFG['dv']})"] if CFG["da"] >= 0 else []
                    put(34 + 4 * p, th + v_piece(p, par, shared=True))
                put(47, tile_advance(True))
            else:
                for p in range(8):
                    put(3 * p, k_piece(p, par))
                    put(24 + 3 * p, v_piece(p, par))
                put(46, tile_advance())
        if mode == "prelast":
            for i, g in enumerate(tables()): put(i + 3, g)
            if CFG["fuse"]:
                put(44, [f"s_lshl_b32 s{sT0}, s{sG}, 3", f"v_mov_b32 v157, s{sT0}",
                         f"global_load_dword v158, v157, s[{sDBG}:{sDBG+1}] sc1"])
        if mode == "last":
            for p in range(16): put(2 * p, wox_piece(p))
        double_phase([pv(2, m) for m in range(8)] + [qk(1, s) for s in range(8)], 0, f"{tagp}a", ex[0])
        double_phase([pv(0, m) for m in range(8)] + [qk(2, s) for s in range(8)], 1, f"{tagp}b", ex[1])
        double_phase([pv(1, m) for m in range(8)] + ([qk(0, s) for s in range(8)] if mode != "last" else []), 2, f"{tagp}c", ex[2])
    A(f"s_mov_b32 s{sCNT}, 0")
    if CFG.get("trace"): A("s_mov_b32 s91, 0")
    A(f"""
    s_mul_i32 s{sWQ0}, s{sJJ}, {512*1152}
    s_lshl_b32 s{sT0}, s{sW}, 8
    s_add_u32 s{sWQ0}, s{sWQ0}, s{sT0}
    s_mul_i32 s{sWC}, s{sW}, {128*1152}
    s_add_u32 s{sWC}, s{sWC}, s{sWQ0}
    s_mul_i32 s{sX0}, s{sH}, {128*1152}
    s_add_u32 s{sX0}, s{sX0}, 1024
    s_and_b32 s{sT0}, s{sB}, 1
    s_lshl_b32 s{sT0}, s{sT0}, 7
    s_sub_u32 s{sX0}, s{sX0}, s{sT0}
    """)
    def attn_loop(sh):
        L = "A" if sh else "B"
        A(".p2align 6")
        A(f"L_main{L}:")
        tile(0, "steady", L + "s0", sh)
        tile(1, "steady", L + "s1", sh)
        if CFG["wopf"] >= 0:
            A(f"""
            s_cmp_lg_u32 s{sCNT}, {CFG["wopf"]}
            s_cbranch_scc1 L_nopf{L}
            s_lshl_b32 s{sT0}, s{sB}, 2
            s_add_u32 s{sT0}, s{sT0}, s{sW}
            s_mul_i32 s{sT0}, s{sT0}, {72*128}
            s_mul_i32 s{sT1}, s{sJJ}, {512*1152}
            s_add_u32 s{sT0}, s{sT0}, s{sT1}
            v_lshlrev_b32 v1, 6, v{vLane}
            buffer_load_dword v154, v1, {srd(SWO)}, s{sT0} offen {CFG['pff']}
            s_add_u32 s{sT0}, s{sT0}, 4096
            buffer_load_dword v155, v1, {srd(SWO)}, s{sT0} offen {CFG['pff']}
            buffer_load_dword v156, v1, {srd(SWO)}, s{sT0} offen offset:1024 {CFG['pff']}
            L_nopf{L}:
            """)
            if CFG["pf2"]:
                A(f"""
                s_cmp_lg_u32 s{sCNT}, {CFG["wopf"] + 1}
                s_cbranch_scc1 L_nopf2{L}
                buffer_load_dword v2, v1, {srd(SWO)}, s{sT0} offen sc1
                buffer_load_dword v3, v1, {srd(SWO)}, s{sT0} offen offset:1024 sc1
                L_nopf2{L}:
                """)
        if CFG.get("midst"):
            for idx, c in ((8, 4), (9, 9)):
                A(f"s_cmp_lg_u32 s{sCNT}, {c}")
                A(f"s_cbranch_scc1 L_nost{idx}{L}")
                stamp(A, idx)
                A(f"L_nost{idx}{L}:")
        A(f"""
        s_add_u32 s{sCNT}, s{sCNT}, 1
        s_cmp_lt_u32 s{sCNT}, 15
        s_cbranch_scc1 L_main{L}
        """)
        tile(0, "prelast", L + "p0", sh)
        tile(1, "last", L + "p1", sh)
    if CFG["share"]:
        A(f"""
        s_cmp_lg_u32 s{sBR}, 0
        s_cbranch_scc1 L_mainB
        s_and_b32 s{sT0}, s{sW}, 1
        s_mul_i32 s{sKL}, s{sT0}, 4352
        s_add_u32 s{sKL}, s{sKL}, s{sKVB}
        s_lshl_b32 s{sCX}, s{sT0}, 12
        s_add_u32 s{sVL}, s{sCX}, s{sKVB}
        s_add_u32 s{sTO2}, s{sTO}, s{sCX}
        """)
        attn_loop(True)
        A("s_branch L_attn_done")
    attn_loop(False)
    A("L_attn_done:")
    vF = 16
    vXa, vOa = 8, 10
    vOwn = 40
    def norm_frag(kl, qb, n):
        db, half = kl // 2, kl % 2
        tb = 24 + (n % 2) * 8
        dst = vOwn + ((kl % 2) * 3 + qb) * 4
        L = [f"v_accvgpr_read_b32 v{tb+i}, a{aO+(qb*4+db)*16+8*half+i}" for i in range(8)]
        if CFG["nopk"]: L += [f"v_mul_f32 v{tb+i}, v{tb+i}, v{vF+2*qb}" for i in range(8)]
        else: L += [f"v_pk_mul_f32 {vr(tb+2*i,2)}, {vr(tb+2*i,2)}, {vr(vF+2*qb,2)}" for i in range(4)]
        L += [f"v_cvt_pk_bf16_f32 v{dst+i}, v{tb+2*i}, v{tb+2*i+1}" for i in range(4)]
        L.append(f"ds_write_b128 v2, {vr(dst,4)} offset:{kl*3072 + qb*1024}" if kl < 6 else
                 f"ds_write_b128 v14, {vr(dst,4)} offset:{(kl-6)*3072 + qb*1024}")
        return L
    cnt = [0]
    def norm_group(kl):
        L = []
        for qb in range(3):
            L += norm_frag(kl, qb, cnt[0]); cnt[0] += 1
        return L
    setup = f"""
    v_lshlrev_b32 v1, 4, v{vLane}
    v_add_u32 v2, s{sRG}, v1
    s_mul_i32 s{sT0}, s{sW}, 6144
    s_add_u32 s{sT0}, s{sT0}, {XB}
    v_add_u32 v14, s{sT0}, v1
    v_bfe_u32 v12, v{vLane}, 4, 1
    v_and_b32 v13, 1, v{vLane}
    v_lshlrev_b32 v13, 5, v13
    v_lshl_add_u32 v13, v12, 4, v13
    v_bfe_u32 v12, v{vLane}, 1, 1
    v_lshl_add_u32 v13, v12, 3, v13
    v_lshrrev_b32 v12, 5, v{vLane}
    v_bfe_u32 v15, v{vLane}, 2, 2
    v_lshl_add_u32 v12, v12, 2, v15
    v_lshl_add_u32 v13, v12, 7, v13
    v_add_u32 v13, {RINGO}, v13
    v_lshrrev_b32 v15, 1, v15
    v_lshl_add_u32 v12, v15, 6, v13
    v_xor_b32 v15, 1, v15
    v_lshl_add_u32 v13, v15, 6, v13
    v_add_u32 v{vXa}, s{sRG}, v12
    v_add_u32 v{vXa+1}, s{sRG}, v13
    s_mul_i32 s{sKD}, s{sJJ}, {PCU}
    s_mul_i32 s{sKR}, s{sW}, 3072
    s_add_u32 s{sKR}, s{sKR}, s{sKD}
    s_add_u32 s{sKR}, s{sKR}, {96*1024}
    s_mul_i32 s{sT0}, s{sW}, {24*1024}
    s_add_u32 s{sKD}, s{sKD}, s{sT0}
    s_and_b32 s{sT0}, s{sB}, 1
    s_lshl_b32 s{sT0}, s{sT0}, 12
    s_add_u32 s{sKD}, s{sKD}, s{sT0}
    s_lshl_b32 s{sT0}, s{sT0}, 1
    s_sub_u32 s{sLX}, 4096, s{sT0}
    s_ashr_i32 s{sTO}, s{sLX}, 5
    """
    setup = [x.strip() for x in setup.split("\n") if x.strip()]
    vm = VM()
    for p in range(16): vm.add(f"g{p//4}")
    aXB = 96
    def op_gran(z):
        G = []
        for p in range(4):
            g = []
            if z == 20 and p == 0:
                g += [f"v_add_u32 v{vWoX+i}, s{sTO}, v{vWoX+i}" for i in range(4)]
            m0 = f"s_add_u32 m0, s{sRG}, {RINGO + (z % 4) * 4096}"
            if z < 8: setup, so = [m0, f"s_add_u32 s{sT2}, s{sX0 if z % 2 == 0 else sWC}, {(z // 2) * 32 * 1152}"], sT2
            elif z < 20: setup, so = [m0, "s_nop 0"], TW[z - 8]
            elif z < 24: setup, so = [m0, f"s_add_u32 s{sT2}, s{sWC}, {(z - 20) * 32 * 1152}"], sT2
            else: setup, so = [m0, "s_nop 0"], TW[z - 24]
            g.append(("dma", f"g{z}", setup, f"g{z}", f"buffer_load_dwordx4 v{vWoX+p}, {srd(SWO)}, s{so} offen offset:{1024*p} {CFG['wof']} lds"))
            G.append(g)
        return G
    def op_reads(z):
        fb = z & 1
        if z < 8:
            return [[f"ds_read_b64_tr_b16 {ar(aWf + fb*16 + (sx*2+ct)*4 + u*2, 2)}, v{vXa+ct} offset:{(((z//2)*2+sx) % 4)*4096 + (16*(z%2)+8*u)*128}"]
                    for sx in range(2) for ct in range(2) for u in range(2)]
        L = [[f"ds_read_b64_tr_b16 {ar(aWf + fb*16 + (kk*2+ct)*4 + u*2, 2)}, v{vXa+ct} offset:{(z%4)*4096 + (16*kk+8*u)*128}"]
             for kk in range(2) for ct in range(2) for u in range(2)]
        if 20 <= z < 24:
            va, off = (2, (z % 4) * 6144) if z % 4 < 3 else (14, 0)
        else:
            va, off = vOa + fb, 0
            L[0] = [f"v_add_u32 v{va}, s{TL[z - 8 if z < 20 else z - 24]}, v1"] + L[0]
        R_ = [[f"ds_read_b128 {ar(aXB + fb*24 + kk*12 + qb*4, 4)}, v{va} offset:{off + kk*3072 + qb*1024}"]
              for kk in range(2) for qb in range(3)]
        return L[:4] + R_[:3] + L[4:] + R_[3:]
    def conv_store(ps):
        base, dst0 = ((160, 160), (64, 208))[ps]
        cv, st = [], []
        tiles = [(qb, ct) for qb in range(3) for ct in range(2)] if ps == 0 else [(qb, ct) for ct in range(2) for qb in range(3)]
        for k, (qb, ct) in enumerate(tiles):
            tb = dst0 + k * 8
            src = base + (qb*2+ct) * 16
            c = [f"v_cvt_pk_bf16_f32 v{tb+i}, v{src+2*i}, v{src+2*i+1}" for i in range(8)]
            t = []
            if ps == 1 and k == 0: t.append(f"s_add_u32 s{sKD}, s{sKD}, s{sLX}")
            t.append(f"s_add_u32 s{sT3}, s{sKD}, {(qb*4 + ct)*2048}")
            for half in range(2):
                t.append(("vm", "st", f"buffer_store_dwordx4 {vr(tb+4*half,4)}, v1, {srd(SP)}, s{sT3} offen offset:{half*1024} {CFG['stfl']}"))
            cv.append(c); st.append(t)
        return cv, st
    fin = [f"v_mov_b32 v{vT+qb}, v{vL+qb}" for qb in range(3)] + setup[:2]
    fin += [f"v_permlane32_swap_b32 v{vL+qb}, v{vT+qb}" for qb in range(3)] + setup[2:5]
    fin += [f"v_add_f32 v{vL+qb}, v{vL+qb}, v{vT+qb}" for qb in range(3)]
    fin += [f"v_rcp_f32 v{vF+2*qb}, v{vL+qb}" for qb in range(3)] + setup[5:]
    fin += [f"v_mov_b32 v{vF+2*qb+1}, v{vF+2*qb}" for qb in range(3)]
    gaps = {}
    for i, o in enumerate(fin): gaps.setdefault(i * 8 // len(fin), []).append(o)
    interleave(A, [pv(2, m) for m in range(8)], gaps)
    stamp(A, 3)
    if CFG.get("trace"):
        A(f"""
        s_lshl_b32 s{sT0}, s2, 2
        s_add_u32 s{sT0}, s{sT0}, s{sW}
        s_lshl_b32 s{sT0}, s{sT0}, 8
        s_add_u32 s{sT0}, s{sT0}, {(66 << 20)}
        v_lshlrev_b32 v156, 2, v{vLane}
        v_add_u32 v156, s{sT0}, v156
        global_store_dword v156, v159, s[{sWS}:{sWS+1}]
        """)
    if CFG["fuse"]: A(f"v_readfirstlane_b32 s{sCNT}, v158")
    emit(A, vm, [("wait", ["g1"], "")])
    for g in op_reads(0): emit(A, vm, g)
    emit(A, vm, norm_group(0))
    stamp(A, 4)
    push_setup = f"""
        s_cmp_lg_u32 s{sW}, 3
        s_cbranch_scc1 L_nopush1
        s_cmp_ge_u32 s{sCNT}, 8
        s_cbranch_scc1 L_initok
        s_lshl_b32 s{sT0}, s{sG}, 3
        v_mov_b32 v12, s{sT0}
        s_mov_b32 s{sT1}, 0
        L_ipoll:
        global_load_dword v13, v12, s[{sDBG}:{sDBG+1}] sc1
        s_waitcnt vmcnt(0)
        v_readfirstlane_b32 s{sCNT}, v13
        s_add_u32 s{sT1}, s{sT1}, 1
        s_cmp_ge_u32 s{sCNT}, 8
        s_cbranch_scc1 L_initok
        s_sleep 8
        s_cmp_lt_u32 s{sT1}, 0x80000
        s_cbranch_scc1 L_ipoll
        L_initok:
        s_lshl_b32 s{sT0}, s{sG}, 11
        s_lshl_b32 s{sT1}, s{sBR}, 6
        s_add_u32 s{sT0}, s{sT0}, s{sT1}
        s_lshl_b32 s{sT1}, s{sJJ}, 2
        s_add_u32 s{sT0}, s{sT0}, s{sT1}
        s_add_u32 s{sT0}, s{sT0}, {FLAG_OFF}
        v_lshlrev_b32 v12, 8, v{vLane}
        v_add_u32 v12, s{sT0}, v12
        v_mov_b32 v13, 1
        s_mov_b64 exec, 0xff
        global_store_dword v12, v13, s[{sWS}:{sWS+1}] sc1
        s_mov_b64 exec, -1
        L_nopush1:
    """
    push_setup = [x.strip() for x in push_setup.split("\n") if x.strip()]
    pend = []
    for z in range(36):
        fb = z & 1
        mf = []
        for kk in range(2):
            for ct in range(2):
                for qb in range(3):
                    if z < 8:
                        acc = vr((64 if kk == 0 else 160) + (qb*2+ct)*16, 16)
                        c = "0" if z == 0 else acc
                        bop = vr(vOwn + ((z % 2)*3+qb)*4, 4)
                    else:
                        acc = vr((160 if z < 20 else 64) + (qb*2+ct)*16, 16)
                        c = "0" if (z == 20 and kk == 0) else acc
                        bop = ar(aXB+fb*24+kk*12+qb*4, 4)
                    mf.append(f"v_mfma_f32_32x32x16_bf16 {acc}, {ar(aWf+fb*16+(kk*2+ct)*4,4)}, {bop}, {c}")
        gaps = {}
        if z < 35:
            need = (z + 1) | 1 if z + 1 < 8 else z + 1
            tags = [f"g{need}"] + (["st"] if (z == 30 and CFG["fuse"]) else [])
            gaps[-1] = [("wait", tags, "lgkmcnt(0)")]
            if z == 7 or (z == 30 and CFG["fuse"]): gaps[-1].append("s_barrier")
            rd = op_reads(z + 1)
            for i, g in enumerate(rd): gaps.setdefault(i * 11 // len(rd), []).extend(g)
        else:
            gaps[-1] = ["s_waitcnt lgkmcnt(0)"]
        if z < 8:
            if z % 2 == 1:
                for i, g in enumerate(op_gran(z + 3) + op_gran(z + 4)): gaps.setdefault(i, []).extend(g)
        elif z < 32:
            for i, g in enumerate(op_gran(z + 4)): gaps.setdefault(3 * i + 1, []).extend(g)
        if z < 7:
            ng = norm_group(z + 1)
            for i, o in enumerate(ng): gaps.setdefault(i * 11 // len(ng), []).append(o)
        if z == 9:
            pend = [f"v_cvt_pk_bf16_f32 v{16+i}, v{64+2*i}, v{65+2*i}" for i in range(48)]
            if CFG["bpf"]:
                pend += [[f"s_cmp_lg_u32 s{sBR}, 0", "s_cbranch_scc1 L_nobpf", "s_load_dwordx2 s[12:13], s[0:1], 72",
                         f"s_lshl_b32 s{sT0}, s{sB}, 2", f"s_add_u32 s{sT0}, s{sT0}, s{sW}", f"s_mul_i32 s{sT0}, s{sT0}, {72*128}",
                         f"s_mul_i32 s{sT1}, s{sJJ}, {512*1152}", f"s_add_u32 s{sT0}, s{sT0}, s{sT1}",
                         f"v_lshlrev_b32 v12, 6, v{vLane}", f"v_add_u32 v12, s{sT0}, v12", f"v_add_u32 v13, 4096, v12",
                         "s_waitcnt lgkmcnt(0)",
                         "global_load_dword v15, v12, s[12:13]", "global_load_dword v15, v13, s[12:13]",
                         "global_load_dword v15, v13, s[12:13] offset:1024", "L_nobpf:"]]
        if z == 21:
            pend = sum([c + t for c, t in zip(*conv_store(0))], [])
        if z == 30 and CFG["fuse"]: gaps.setdefault(0, []).extend(push_setup)
        if 32 <= z < 35:
            for i in range(4):
                xf = (z - 32) * 4 + i
                gaps.setdefault(3 * i + 1, []).append(f"ds_write_b128 v2, {vr(16+4*xf,4)} offset:{RINGO + xf*1024}")
        for i in range(12):
            if pend:
                o = pend.pop(0)
                gaps.setdefault(i, []).extend(o if isinstance(o, list) else [o])
        interleave(A, mf, gaps, vm)
        if z == 7 and CFG.get("gst"): stamp(A, 8)
        if CFG.get("gst2"):
            if z == 20: stamp(A, 1)
            if z == 30: stamp(A, 2)
            if z == 3: stamp(A, 11)
    assert not pend
    if CFG.get("gst"): stamp(A, 9)
    A(f"""
    s_barrier
    s_mul_i32 s{sT0}, s{sW}, 3072
    s_add_u32 s{sT0}, s{sT0}, {RINGO}
    v_add_u32 v10, s{sT0}, v1
    v_add_u32 v11, {2*REG}, v10
    s_mov_b32 s64, 0x3f80
    s_mov_b32 s65, 0x3f800000
    """)
    for src in range(4):
        for m in range(3):
            A(f"ds_read_b128 {vr(16+(src*3+m)*4,4)}, v{10 + src // 2} offset:{(src % 2)*REG + m*1024}")
    for c, t in zip(*conv_store(1)): emit(A, vm, c + t)
    stamp(A, 5)
    A("s_waitcnt lgkmcnt(0)")
    for src in range(4):
        for m in range(3):
            for d in range(4):
                for hi in range(2):
                    acc = 64 + m*8 + d*2 + hi
                    A(f"v_dot2_f32_bf16 v{acc}, v{16+(src*3+m)*4+d}, s{65 if hi else 64}, {'0' if src == 0 else f'v{acc}'}")
    A("s_nop 2")
    for m in range(3):
        for d in range(4): A(f"v_cvt_pk_bf16_f32 v{96+m*4+d}, v{64+m*8+2*d}, v{65+m*8+2*d}")
        A(f"buffer_store_dwordx4 {vr(96+m*4,4)}, v1, {srd(SP)}, s{sKR} offen offset:{m*1024} {CFG['stfl']}")
    if CFG["fuse"]:
        A(f"""
        s_waitcnt vmcnt(0)
        s_barrier
        s_cmp_lg_u32 s{sW}, 3
        s_cbranch_scc1 L_nopush
        s_mov_b64 exec, 0xff
        global_store_dword v12, v13, s[{sWS}:{sWS+1}] offset:32 sc1
        s_mov_b64 exec, -1
        L_nopush:
        """)
        stamp(A, 6)
        A(f"""
        s_cmp_lg_u32 s{sBR}, {'s%d' % sBR if CFG['own'] else 0}
        s_cbranch_scc1 L_fin
        s_mov_b32 s8, s100
        s_mov_b32 s9, s101
        s_mov_b32 s10, {16*96*1152*2}
        s_mov_b32 s11, 0x20000
        s_mov_b32 s{SP+2}, {PART if CFG['own'] else 17*PART}
        s_lshl_b32 s{sT0}, s{sG}, 3
        s_add_u32 s{sT0}, s{sT0}, s{sJJ}
        s_lshl_b32 s{sT0}, s{sT0}, 8
        s_add_u32 s{sT0}, s{sT0}, {FLAG_OFF}
        s_lshl_b32 s{sT1}, s{sBR}, 6
        s_add_u32 s{sT0}, s{sT0}, s{sT1}
        v_and_b32 v2, 7, v{vLane}
        v_lshlrev_b32 v2, 2, v2
        v_add_u32 v2, s{sT0}, v2
        v_and_b32 v3, 31, v{vLane}
        v_lshrrev_b32 v5, 5, v{vLane}
        v_mul_u32_u24 v4, 2304, v3
        v_lshl_add_u32 v4, v5, 5, v4
        s_mov_b32 s64, 0x3f80
        s_mov_b32 s65, 0x3f800000
        s_lshl_b32 s66, s{sBR}, 1
        s_add_u32 s78, s66, {2 if CFG['own'] else 4}
        L_stage:
        s_and_b32 s67, s66, 1
        s_add_u32 s68, s67, 3
        s_mul_i32 s68, s68, s{sJJ}
        s_add_u32 s68, s68, s{sW}              ; idx
        s_add_u32 s69, s67, 2
        s_cmp_gt_u32 s{sW}, s69
        s_cbranch_scc1 L_next
        s_cmp_ge_u32 s68, 30
        s_cbranch_scc1 L_next
        s_and_b32 s69, s{sB}, 1
        s_xor_b32 s69, s69, s67
        s_lshl_b32 s69, s69, 1                  ; 2*half
        s_mul_i32 s70, s68, 43
        s_lshr_b32 s70, s70, 8                  ; w' = idx/6
        s_mul_i32 s71, s70, 6
        s_sub_u32 s71, s68, s71                 ; r = idx%6
        s_lshr_b32 s72, s71, 1                  ; qb
        s_and_b32 s73, s71, 1                   ; c
        s_cmp_eq_u32 s70, 4
        s_cselect_b32 s69, 0, s69
        s_cselect_b32 s74, 1, 2
        s_add_u32 s73, s73, s69                 ; ct
        s_lshl_b32 s74, s72, s74
        s_add_u32 s74, s74, s73
        s_mul_i32 s75, s70, 12
        s_add_u32 s74, s74, s75                 ; tt
        s_lshl_b32 s74, s74, 11
        s_lshr_b32 s75, s66, 1
        s_mul_i32 s76, s75, {0 if CFG['own'] else 16*PART}
        s_add_u32 s74, s74, s76
        s_mul_i32 s76, s{sB}, {96*2304}
        s_mul_i32 s75, s75, 1152
        s_add_u32 s76, s76, s75
        s_lshl_b32 s75, s70, 8
        s_add_u32 s76, s76, s75
        s_mul_i32 s75, s72, {32*2304}
        s_add_u32 s76, s76, s75
        s_lshl_b32 s75, s73, 6
        s_add_u32 s76, s76, s75
        s_mov_b32 s77, 0
        L_poll:
        global_load_dword v6, v2, s[{sWS}:{sWS+1}] sc1
        s_waitcnt vmcnt(0)
        v_cmp_ne_u32 vcc, 1, v6
        s_add_u32 s77, s77, 1
        s_cbranch_vccz L_go
        s_sleep {CFG['slp']}
        s_cmp_lt_u32 s77, 0x80000
        s_cbranch_scc1 L_poll
        L_go:
        """)
        for p in range(8):
            for m in range(2):
                A(f"buffer_load_dwordx4 {vr(32+(p*2+m)*4,4)}, v1, {srd(SP)}, s74 offen offset:{1024*m} sc1")
            if p < 7: A(f"s_add_u32 s74, s74, {PCU}")
        for p in range(8):
            A(f"s_waitcnt vmcnt({14 - 2*p})")
            for m in range(2):
                for d in range(4):
                    src = 32 + (p*2+m)*4 + d
                    for hi in range(2):
                        acc = 8 + m*8 + d*2 + hi
                        A(f"v_dot2_f32_bf16 v{acc}, v{src}, s{65 if hi else 64}, {'0' if p == 0 else f'v{acc}'}")
        A("s_nop 2")
        for m in range(2):
            for d in range(4):
                A(f"v_cvt_pk_bf16_f32 v{24+m*4+d}, v{8+m*8+2*d}, v{9+m*8+2*d}")
            A(f"buffer_store_dwordx4 {vr(24+m*4,4)}, v4, s[8:11], s76 offen offset:{m*16}")
        A(f"""
        L_next:
        """)
        if CFG["stamps"]:
            A("s_cmp_lg_u32 s66, 1"); A("s_cbranch_scc1 L_nost7"); stamp(A, 7); A("L_nost7:")
        A(f"""
        v_add_u32 v2, 32, v2
        s_add_u32 s66, s66, 1
        s_cmp_lt_u32 s66, s78
        s_cbranch_scc1 L_stage
        L_fin:
        """)
    if CFG["stamps"]:
        A("s_waitcnt vmcnt(0)")
        stamp(A, 10)
        if not CFG["fuse"]:
            stamp(A, 6)
            if not CFG.get("sst"): stamp(A, 7)
    if CFG.get("probe"):
        wg, idx, mul, base = CFG["probe"]
        A(f"""
        s_waitcnt lgkmcnt(0)
        s_xor_b32 s{sT0}, s2, {wg}
        s_or_b32 s{sT0}, s{sT0}, s{sW}
        s_cmp_lg_u32 s{sT0}, 0
        s_cbranch_scc1 L_end
        s_sub_u32 s{sT1}, s{sST[idx]}, s{sST[0]}
        s_mul_i32 s{sT1}, s{sT1}, {mul}
        s_add_u32 s{sT1}, s{sT1}, {base * 100}
        s_min_u32 s{sT1}, s{sT1}, 100000
        L_probe:
        s_memrealtime s[64:65]
        s_waitcnt lgkmcnt(0)
        s_sub_u32 s{sT0}, s64, s{sST[0]}
        s_cmp_lt_u32 s{sT0}, s{sT1}
        s_cbranch_scc1 L_probe
        """)
    elif CFG.get("dbgout"):
        A(f"""
        s_waitcnt lgkmcnt(0)
        s_and_b32 s{sT0}, s2, 0xf7
        s_or_b32 s{sT0}, s{sT0}, s{sW}
        s_cmp_lg_u32 s{sT0}, 0
        s_cbranch_scc1 L_end
        s_lshl_b32 s{sT0}, s{sBR}, 5
        v_mov_b32 v1, s{sT0}
        """)
        for k, idx in enumerate((11, 2, 3, 10)):
            A(f"s_sub_u32 s{sT1}, s{sST[idx]}, s{sST[0]}")
            A(f"v_mov_b32 v2, s{sT1}")
            A(f"global_store_dword v1, v2, s[{sDBG}:{sDBG+1}] offset:{8*k+4}")
    else:
        stamps_out(A, 12)
    A("L_end:")
    A("s_endpgm")
    for site, qb in sites:
        A(f"L_tramp_{site}:")
        A(f"s_call_b64 s[{sRET}:{sRET+1}], L_rare_{qb}")
        A(f"s_branch L_back_{site}")
    for qb in range(3):
        s = vS + 16 * qb
        A(f"L_rare_{qb}:")
        for x in rowmax(qb, vT, vT+1): A(x)
        A(f"v_max_f32 v{vT}, 0, v{vT}")
        A(f"v_exp_f32 v{vT+1}, -v{vT}")
        for i in range(16): A(f"v_sub_f32 v{vNM+16*qb+i}, v{vNM+16*qb+i}, v{vT}")
        A(f"v_mul_f32 v{vL+qb}, v{vL+qb}, v{vT+1}")
        for i in range(64):
            A(f"v_accvgpr_read_b32 v{vT+2+i%4}, a{aO+qb*64+i}")
            A(f"v_mul_f32 v{vT+2+i%4}, v{vT+2+i%4}, v{vT+1}")
            A(f"v_accvgpr_write_b32 a{aO+qb*64+i}, v{vT+2+i%4}")
        A(f"v_mov_b32 v{vPS}, 0")
        for i in range(0, 16, 2):
            A(f"v_sub_f32 v{vE}, v{s+i}, v{vT}")
            A(f"v_sub_f32 v{vE+1}, v{s+i+1}, v{vT}")
            A(f"v_exp_f32 v{vE}, v{vE}")
            A(f"v_exp_f32 v{vE+1}, v{vE+1}")
            A("s_nop 0")
            A(f"v_add_f32 v{vPS}, v{vPS}, v{vE}")
            A(f"v_add_f32 v{vPS}, v{vPS}, v{vE+1}")
            A(f"v_cvt_pk_bf16_f32 v{vP+8*qb+i//2}, v{vE}, v{vE+1}")
        A("s_nop 1")
        A(f"s_setpc_b64 s[{sRET}:{sRET+1}]")
    A("L_code_end:")
    A("s_endpgm")

def gen_reduce_kernel(A, name):
    kernel_begin(A, name)
    A("s_cmp_ge_u32 s2, 864")
    A("s_cbranch_scc1 L_rk_end")
    stamp(A, 0)
    A(f"""
    s_load_dwordx2 s[{sWS}:{sWS+1}], s[0:1], 96
    s_load_dwordx2 s[8:9], s[0:1], 80
    v_lshrrev_b32 v1, 6, v0
    v_and_b32 v7, 63, v0
    v_readfirstlane_b32 s3, v1
    v_lshlrev_b32 v1, 4, v7
    s_mul_i32 s24, s2, 2428
    s_lshr_b32 s24, s24, 16
    s_mul_i32 s25, s24, 27
    s_sub_u32 s25, s2, s25
    s_lshl_b32 s25, s25, 1
    s_add_u32 s25, s25, s3             ; tt
    s_mul_i32 s26, s24, {PART}
    s_lshl_b32 s27, s25, 11
    s_add_u32 s26, s26, s27
    s_mov_b32 s22, {32*PART}
    s_mov_b32 s23, 0x20000
    s_mov_b32 s10, {16*96*1152*2}
    s_mov_b32 s11, 0x20000
    s_waitcnt lgkmcnt(0)
    s_mov_b32 s20, s{sWS}
    s_mov_b32 s21, s{sWS+1}
    """)
    for p in range(8):
        for m in range(2):
            A(f"buffer_load_dwordx4 {vr(32+(p*2+m)*4,4)}, v1, s[20:23], s26 offen offset:{1024*m} {CFG['rfl']}")
        if p < 7: A(f"s_add_u32 s26, s26, {PCU}")
    stamp(A, 1)
    A(f"""
    s_mov_b32 s30, 0x3f80
    s_mov_b32 s31, 0x3f800000
    s_and_b32 s27, s24, 15
    s_mul_i32 s28, s27, {96*2304}
    s_lshr_b32 s27, s24, 4
    s_mul_i32 s27, s27, 1152
    s_add_u32 s28, s28, s27
    s_mul_i32 s27, s25, 43
    s_lshr_b32 s27, s27, 9             ; w' (4 = extra)
    s_mul_i32 s29, s27, 12
    s_sub_u32 s29, s25, s29            ; T
    s_cmp_eq_u32 s27, 4
    s_cselect_b32 s32, 1, 2
    s_cselect_b32 s33, 1, 3
    s_lshl_b32 s27, s27, 8
    s_add_u32 s28, s28, s27
    s_lshr_b32 s27, s29, s32           ; qb
    s_mul_i32 s27, s27, {32*2304}
    s_add_u32 s28, s28, s27
    s_and_b32 s27, s29, s33            ; ct
    s_lshl_b32 s27, s27, 6
    s_add_u32 s28, s28, s27
    v_and_b32 v2, 31, v7
    v_lshrrev_b32 v3, 5, v7
    v_mul_u32_u24 v4, 2304, v2
    v_lshl_add_u32 v4, v3, 5, v4
    """)
    for p in range(8):
        A(f"s_waitcnt vmcnt({14 - 2*p})")
        for m in range(2):
            for d in range(4):
                src = 32 + (p*2+m)*4 + d
                for hi in range(2):
                    acc = 8 + m*8 + d*2 + hi
                    A(f"v_dot2_f32_bf16 v{acc}, v{src}, s{31 if hi else 30}, {'0' if p == 0 else f'v{acc}'}")
    A("s_nop 2")
    for m in range(2):
        for d in range(4):
            A(f"v_cvt_pk_bf16_f32 v{24+m*4+d}, v{8+m*8+2*d}, v{9+m*8+2*d}")
        A(f"buffer_store_dwordx4 {vr(24+m*4,4)}, v4, s[8:11], s28 offen offset:{m*16}")
    if CFG["stamps"]:
        A("s_waitcnt vmcnt(0)")
        stamp(A, 2)
        A("s_cmp_lg_u32 s3, 0")
        A("s_cbranch_scc1 L_rk_end")
        A("s_waitcnt lgkmcnt(0)")
        A(f"s_lshl_b32 s34, s2, 6")
        A(f"s_add_u32 s34, s34, {STAMP_OFF + 1024 * 64}")
        A("v_mov_b32 v1, s34")
        for i in range(3):
            A(f"v_mov_b32 v2, s{sST[i]}")
            A(f"global_store_dword v1, v2, s[{sWS}:{sWS+1}] offset:{4*i}")
    A("L_rk_end:")
    A("s_endpgm")

def gen(**kw):
    CFG.update(kw)
    if CFG["fuse"]: CFG["split_reduce"] = False
    if CFG["coop"]: CFG["apf"] = 0
    CFG["stfl"] = CFG["fst"] if CFG["fst"] is not None else ("" if (CFG["split_reduce"] or CFG["wb"]) else "sc1")
    A = Asm()
    for l in open("cdna_kernels/" + NAME + ".s.ref").read().split("\n"):
        if not l.startswith(";"): break
        if "@launch" in l or "Override launch" in l or "grid=ceil" in l: continue
        A.L.append(l)
    if CFG["split_reduce"]:
        header(A, ["; @launch kernel=main_kernel grid=(256,1,1) block=(256,1,1) lds=163840",
                   "; @launch kernel=reduce_kernel grid=(864,1,1) block=(128,1,1) lds=0"])
        gen_main(A, "main_kernel")
        gen_reduce_kernel(A, "reduce_kernel")
        descriptor(A, "main_kernel")
        descriptor(A, "reduce_kernel", vgpr=96, accum=96, first=False)
    else:
        header(A, ["; @launch grid=(256,1,1) block=(256,1,1) lds=163840"])
        gen_main(A, NAME + "_kernel")
        descriptor(A, NAME + "_kernel")
    return A.text()

if __name__ == "__main__":
    out = sys.argv[1] if len(sys.argv) > 1 else "cdna_kernels/" + NAME + ".s"
    kw = {}
    for a in sys.argv[2:]:
        k, v = a.split("=")
        kw[k] = eval(v)
    open(out, "w").write(gen(**kw))
```

```python
import sys, struct
from asmlib import *

LOG2E = 1.4426950408889634
def f2u(x): return struct.unpack("<I", struct.pack("<f", x))[0]

CFG = dict(stamps=False, thr=256.0, nokv=False, split_reduce=True, wopf=-1, share=True, tlb=False, qbud=6, da=3, wqf='', xf='', wof='', pff='nt', wqn=4, pf2=True, pfs=12, xrot=1, won=2, slp=4, early=True, wb=False, fst='sc1', rfl='', xfill=60, nopk=True, xf2='', kvpf=0, kvs=4, kvd=4, kv0=2, kve=28, kvf='', apf=2, apm=0, aps=2, ap0=4, apfl='', fuse=True, fine=False, bpf=True, own=False, dv=1, tls=-1, coop=False, hbud=7, hrot=4, kvstart=0, q16=True, ipf=True, db=6, dbn=12, bal=0, dbs=0)

REG = 34816
XB = 4 * REG
K1O, V1O, K0O, V0O = 0, 8704, 16896, 25600
KVD = 16896
RINGO = 18432
STAMP_OFF = 64 << 20
FLAG_OFF = 48 << 20
QOFF = 40 << 20
PCU = 108 * 1024
PART = 8 * PCU

sW = 3
SX, SWQ, SK, SV, SP = 4, 8, 12, 16, 20
SWO, SOUT = 4, 8
sBR, sJJ, sB, sH = 24, 25, 27, 28
sCI = 29
sRET = 52
sWQ0, sX0 = 32, 33
sT0, sT1, sT2, sT3 = 34, 35, 36, 37
sRG = 38
sLX = 39
sCNT = 40
sWC, sXC = 41, 42
sCX = 43
sTO, sTO2 = 44, 45
sTHR = 46
sSC = 84
sKD, sKR = 50, 51
sG = 95
sRW, sR3 = 26, 47
sKVB = 50
sKL, sVL = 26, 47
sST = [30, 54, 56, 58, 60, 62, 84, 86, 88, 90, 92, 48]
sWS = 96
sDBG = 98
vWoX, vLane = 3, 7
vKd, vVd, vKr, vVr = 8, 9, 10, 12
vS, vNM, vP, vE, vL, vPS, vT, vQ = 16, 64, 112, 136, 144, 147, 148, 160
vWd, vXd, vWr, vXr = 40, 44, 20, 24
vHd, vHr = 52, 28
vQA = 64
aO, aK, aV = 0, 192, 224
aWf, aXf = 192, 224

def srd(n): return f"s[{n}:{n+3}]"
def vr(n, c): return f"v[{n}:{n+c-1}]"
def ar(n, c): return f"a[{n}:{n+c-1}]"

class VM:
    def __init__(self): self.ops = []; self.ctx = None
    def add(self, tag): self.ops.append(tag)
    def need(self, tag):
        idx = max(i for i, t in enumerate(self.ops) if t == tag)
        return len(self.ops) - 1 - idx

def emit(A, vm, items):
    for x in items:
        if isinstance(x, str): A(x)
        elif x[0] == "vm":
            vm.add(x[1]); A(x[2])
            if x[2].endswith("lds"): vm.ctx = None
        elif x[0] == "dma":
            if vm.ctx != x[1]:
                for y in x[2]: A(y)
                vm.ctx = x[1]
            vm.add(x[3]); A(x[4])
        elif x[0] == "wait":
            n = min(vm.need(t) for t in x[1])
            assert n <= 63
            A(f"s_waitcnt vmcnt({n}) {x[2]}".strip())

def interleave(A, mfmas, gaps, vm=None):
    emit(A, vm, gaps.get(-1, []))
    for i, m in enumerate(mfmas):
        emit(A, vm, gaps.get(("pre", i), []))
        A(m)
        emit(A, vm, gaps.get(i, []))

DUAL = {2: 4, 8: 5, 9: 6, 3: 7, 0: 11}
def stamp(A, idx):
    if CFG.get("dual"):
        if idx in DUAL.values(): return
        if idx in DUAL: A(f"s_memtime s[{sST[DUAL[idx]]}:{sST[DUAL[idx]]+1}]")
    if CFG["stamps"]:
        A(f"{'s_memtime' if CFG.get('cyc') else 's_memrealtime'} s[{sST[idx]}:{sST[idx]+1}]")

def stamps_out(A, n, add=0):
    if not CFG["stamps"]: return
    A("s_waitcnt lgkmcnt(0)")
    A(f"s_lshl_b32 s{sT0}, s2, 2")
    A(f"s_add_u32 s{sT0}, s{sT0}, s{sW}")
    A(f"s_lshl_b32 s{sT0}, s{sT0}, 6")
    A(f"s_add_u32 s{sT0}, s{sT0}, {STAMP_OFF + add * 64}")
    A(f"v_mov_b32 v1, s{sT0}")
    for i in range(n):
        A(f"v_mov_b32 v2, s{sST[i]}")
        A(f"global_store_dword v1, v2, s[{sWS}:{sWS+1}] offset:{4*i}")

def k_piece(p, slot, tag=None, shared=False):
    base = (K0O if slot == 0 else K1O + (REG if shared else 0)) + 1088 * p - 1024 * (p % 4)
    so = sTO if (p < 4 and not shared) else sTO2
    ld = f"buffer_load_dwordx4 v{vKd}, {srd(SK)}, s{so} offen offset:{1024*(p%4)} nt lds"
    return [f"s_add_u32 m0, s{sKL if shared else sRG}, {base}", "s_nop 0", ("vm", tag, ld) if tag else ld]
def v_piece(p, slot, tag=None, force_m0=False, shared=False):
    so = sTO if (p < 4 and not shared) else sTO2
    r = []
    if p % 4 == 0 or force_m0:
        base = (V0O if slot == 0 else V1O + (REG if shared else 0)) + 4096 * (p // 4)
        r += [f"s_add_u32 m0, s{sVL if shared else sRG}, {base}", "s_nop 0"]
    ld = f"buffer_load_dwordx4 v{vVd}, {srd(SV)}, s{so} offen offset:{1024*(p%4)} nt lds"
    r.append(("vm", tag, ld) if tag else ld)
    return r
def tile_advance(shared=False):
    return [f"s_add_u32 s{sTO}, s{sTO}, 8192", f"s_and_b32 s{sTO}, s{sTO}, 0x3ffff",
            f"s_add_u32 s{sTO2}, s{sTO}, s{sCX}" if shared else f"s_add_u32 s{sTO2}, s{sTO}, 4096"]

def decode(A):
    A(f"""
    v_lshrrev_b32 v1, 6, v0
    v_and_b32 v{vLane}, 63, v0
    v_readfirstlane_b32 s{sW}, v1
    s_and_b32 s{sJJ}, s2, 7
    s_lshr_b32 s{sT1}, s2, 3
    s_and_b32 s{sBR}, s{sT1}, 1
    s_lshr_b32 s{sB}, s{sT1}, 1
    """)

def part_srd(A):
    A(f"""
    s_lshl_b32 s{sT0}, s{sBR}, 4
    s_add_u32 s{sT0}, s{sT0}, s{sB}
    s_mul_i32 s{sT0}, s{sT0}, {PART}
    s_add_u32 s{SP}, s{sWS}, s{sT0}
    s_addc_u32 s{SP+1}, s{sWS+1}, 0
    s_mov_b32 s{SP+2}, {0 if CFG.get('nost') else PART}
    s_mov_b32 s{SP+3}, 0x20000
    """)

def gen_main(A, name):
    KVN = 0 if CFG['nokv'] else 0x40000
    kernel_begin(A, name)
    A("s_cmp_ge_u32 s2, 256")
    A("s_cbranch_scc1 L_end")
    stamp(A, 0)
    A(f"""
    s_load_dwordx16 s[64:79], s[0:1], 0
    s_load_dwordx4 s[80:83], s[0:1], 64
    s_load_dwordx2 s[{sWS}:{sWS+1}], s[0:1], 96
    s_load_dwordx2 s[{sDBG}:{sDBG+1}], s[0:1], 88
    s_load_dwordx2 s[100:101], s[0:1], 80
    """)
    decode(A)
    if CFG["ipf"]:
        A(f"""
        s_getpc_b64 s[86:87]
        L_pc:
        s_lshr_b32 s{sT0}, s2, 3
        s_lshl_b32 s{sT0}, s{sT0}, 2
        s_add_u32 s{sT0}, s{sT0}, s{sW}
        s_lshl_b32 s{sT0}, s{sT0}, 7
        v_lshlrev_b32 v63, 14, v{vLane}
        v_add_u32 v63, s{sT0}, v63
        v_cmp_gt_u32 vcc, L_code_end-L_pc-4, v63
        s_and_saveexec_b64 s[88:89], vcc
        global_load_dword v62, v63, s[86:87]
        s_mov_b64 exec, -1
        """)
    A(f"""
    s_lshl_b32 s{sG}, s{sBR}, 4
    s_and_b32 s{sG}, s{sG}, {16 if CFG['own'] else 0}
    s_add_u32 s{sG}, s{sG}, s{sB}
    s_lshl_b32 s{sH}, s{sJJ}, 2
    s_add_u32 s{sH}, s{sH}, s{sW}
    s_mul_i32 s{sCI}, s{sB}, {8 if CFG['fine'] else 9}
    s_lshr_b32 s{sCI}, s{sCI}, 4
    s_and_b32 s{sKR}, s{sB}, {1 if CFG['fine'] else 0}
    s_mul_i32 s{sT2}, s{sJJ}, {CFG['xrot']}
    s_add_u32 s{sCI}, s{sCI}, s{sT2}
    s_sub_u32 s{sT2}, s{sCI}, 9
    s_cmp_ge_u32 s{sCI}, 9
    s_cselect_b32 s{sCI}, s{sT2}, s{sCI}
    s_mov_b32 s{sCX}, s{sCI}
    s_lshl_b32 s{sWQ0}, s{sH}, 8
    s_lshl_b32 s{sT2}, s{sKR}, 18
    s_add_u32 s{sWQ0}, s{sWQ0}, s{sT2}
    s_mul_i32 s{sX0}, s{sB}, 96
    s_mul_i32 s{sT2}, s{sW}, 24
    s_add_u32 s{sX0}, s{sX0}, s{sT2}
    s_mul_i32 s{sX0}, s{sX0}, 1152
    s_mul_i32 s{sRG}, s{sW}, {REG}
    s_mul_i32 s{sLX}, s{sW}, 3072
    s_add_u32 s{sLX}, s{sLX}, {XB}
    v_lshrrev_b32 v1, 4, v{vLane}         ; t = l/16
    v_and_b32 v2, 15, v{vLane}
    v_lshlrev_b32 v33, 2, v1
    v_xor_b32 v33, v2, v33
    v_lshlrev_b32 v33, 4, v33
    v_lshl_add_u32 v{vWd}, v1, 13, v33
    v_add_u32 v{vWd+1}, {32768-1024}, v{vWd}
    v_xor_b32 v34, {32 if CFG['q16'] else 0}, v{vWd}
    v_add_u32 v{vWd+2}, {2*(32768-1024)}, v34
    v_add_u32 v{vWd+3}, {3*(32768-1024)}, v34
    v_lshl_add_u32 v{vVd}, v1, 8, v33
    v_xor_b32 v33, v2, v1
    v_lshlrev_b32 v33, 4, v33
    v_lshl_add_u32 v{vKd}, v1, 8, v33
    ; x dma: row = 24w + 8p + t ; f = (row>>1)&7 = (4*(w+p) + (t>>1)) & 7
    v_lshrrev_b32 v1, 3, v{vLane}         ; t = l/8
    v_and_b32 v2, 7, v{vLane}
    v_lshrrev_b32 v33, 1, v1
    v_xor_b32 v34, v2, v33
    s_and_b32 s{sT0}, s{sW}, 1
    s_lshl_b32 s{sT0}, s{sT0}, 2
    v_xor_b32 v34, s{sT0}, v34
    v_lshlrev_b32 v34, 4, v34
    v_mul_u32_u24 v1, 1152, v1
    v_add_u32 v{vXd}, v1, v34
    v_add_u32 v{vXd+2}, {2*(8*1152-1024)}, v{vXd}
    v_xor_b32 v34, 64, v34
    v_add_u32 v{vXd+1}, v1, v34
    v_add_u32 v{vXd+1}, {8*1152-1024}, v{vXd+1}
    ; wo dma: t*1152 + ((l&7) ^ (((t>>1)&1)<<2))*16
    v_and_b32 v33, 1, v33
    v_lshlrev_b32 v33, 2, v33
    v_xor_b32 v2, v2, v33
    v_lshl_add_u32 v47, v2, 4, v1
    v_lshrrev_b32 v1, 3, v{vLane}
    v_lshlrev_b32 v1, 13, v1
    v_lshl_add_u32 v{vHd}, v2, 4, v1
    v_add_u32 v{vHd+1}, {65536-1024}, v{vHd}
    v_add_u32 v{vHd+2}, {2*(65536-1024)}, v{vHd}
    v_add_u32 v{vHd+3}, {3*(65536-1024)}, v{vHd}
    {"s_memrealtime s[90:91]" if CFG.get("sst") else ""}
    s_waitcnt lgkmcnt(0)
    {"s_memrealtime s[88:89]" if CFG.get("sst") else ""}
    s_cmp_eq_u32 s{sBR}, 0
    s_cselect_b32 s{SX}, s{74 if CFG['coop'] else 64}, s74
    s_cselect_b32 s{SX+1}, s{75 if CFG['coop'] else 65}, s75
    s_cselect_b32 s{SWQ}, s{80 if CFG['coop'] else 70}, s80
    s_cselect_b32 s{SWQ+1}, s{81 if CFG['coop'] else 71}, s81
    s_cselect_b32 s{SK}, s66, s76
    s_cselect_b32 s{SK+1}, s67, s77
    s_cselect_b32 s{SV}, s68, s78
    s_cselect_b32 s{SV+1}, s69, s79
    s_mov_b32 s{SX+2}, {0 if CFG.get('nox') else 16*110592}
    s_mov_b32 s{SX+3}, 0x20000
    s_mov_b32 s{SWQ+2}, {0 if CFG.get('nowq') else 576*8192}
    s_mov_b32 s{SWQ+3}, 0x20000
    """)
    vm = VM()
    R = 8
    def wq_gran(n):
        G = []
        for p in range(4):
            g = []
            if n % 4 == 0 and p == 0:
                g += [f"s_lshl_b32 s{sWC}, s{sCI}, 19", f"s_add_u32 s{sWC}, s{sWC}, s{sWQ0}",
                      f"s_add_u32 s{sCI}, s{sCI}, 1", f"s_cmp_eq_u32 s{sCI}, 9", f"s_cselect_b32 s{sCI}, 0, s{sCI}"]
            setup = [f"s_add_u32 m0, s{sRG}, {(n % R) * 4096}", f"s_xor_b32 s{sT2}, s{sWC}, {(n % 4) * 16 * 8192}"]
            g.append(("dma", f"w{n}", setup, f"w{n}",
                      f"buffer_load_dwordx4 v{vWd+p}, {srd(SWQ)}, s{sT2} offen offset:{1024*p} {CFG['wqf'] if n < CFG['wqn'] else ''} lds"))
            G.append(g)
        return G
    def x_chunk(c):
        G = []
        for p in range(3):
            g = []
            if p == 0:
                g += [f"s_lshl_b32 s{sXC}, s{sCX}, 7", f"s_add_u32 s{sXC}, s{sXC}, s{sX0}",
                      f"s_add_u32 s{sCX}, s{sCX}, 1", f"s_cmp_eq_u32 s{sCX}, 9", f"s_cselect_b32 s{sCX}, 0, s{sCX}"]
            setup = [f"s_add_u32 m0, s{sLX}, {(c % 2) * 12288}", "s_nop 0"]
            g.append(("dma", f"x{c}", setup, f"x{c}",
                      f"buffer_load_dwordx4 v{vXd+p}, {srd(SX)}, s{sXC} offen offset:{1024*p} {CFG['xf'] if c == 0 else CFG['xf2']} lds"))
            G.append(g)
        return G
    if CFG["wopf"] == -3:
        A(f"""
        s_cmp_lg_u32 s{sBR}, 0
        s_cbranch_scc1 L_nopf0
        s_lshl_b32 s{sT0}, s{sB}, 2
        s_add_u32 s{sT0}, s{sT0}, s{sW}
        s_mul_i32 s{sT0}, s{sT0}, {72*128}
        s_mul_i32 s{sT1}, s{sJJ}, {512*1152}
        s_add_u32 s{sT0}, s{sT0}, s{sT1}
        v_lshlrev_b32 v40, 7, v{vLane}
        v_add_u32 v40, s{sT0}, v40
        global_load_dword v41, v40, s[72:73] {CFG['pff']}
        global_load_dword v42, v40, s[72:73] offset:1024 {CFG['pff']}
        global_load_dword v43, v40, s[82:83] {CFG['pff']}
        global_load_dword v44, v40, s[82:83] offset:1024 {CFG['pff']}
        L_nopf0:
        """)
    if CFG["apf"]:
        A(f"""
        s_cmp_lg_u32 s{sBR}, 0
        s_cbranch_scc1 L_noapf
        s_lshl_b32 s{sT1}, s{sB}, 5
        s_add_u32 s{sT1}, s{sT1}, s{sH}
        s_lshl_b32 s{sT0}, s{sT1}, 18
        s_add_u32 s{SP}, s76, s{sT0}
        s_addc_u32 s{SP+1}, s77, 0
        s_mov_b32 s{SP+2}, 0x40000
        s_mov_b32 s{SP+3}, 0x20000
        s_add_u32 s52, s78, s{sT0}
        s_addc_u32 s53, s79, 0
        s_mov_b32 s54, 0x40000
        s_mov_b32 s55, 0x20000
        s_and_b32 s{sT0}, s{sB}, {CFG['apm']}
        s_mul_i32 s{sT0}, s{sT0}, {CFG['aps']}
        s_add_u32 s{sT1}, s{sT1}, s{sT0}
        s_add_u32 s{sT1}, s{sT1}, {CFG['ap0']}
        s_add_u32 s{sT1}, s{sT1}, s{sB}
        v_lshlrev_b32 v48, 4, v{vLane}
        s_mov_b32 s{sCNT}, {CFG['apf']}
        L_apf:
        s_and_b32 s{sT0}, s{sT1}, 31
        s_lshl_b32 s{sT0}, s{sT0}, 13
        s_add_u32 s{sT3}, s{sT0}, 4096
        """)
        for i in range(16):
            sr = srd(SP) if i < 8 else "s[52:55]"
            A(f"buffer_load_dwordx4 {vr(64+4*i,4)}, v48, {sr}, s{sT0 if i % 8 < 4 else sT3} offen offset:{(i%4)*1024} {CFG['apfl']}")
            A(f"s_waitcnt vmcnt(12)")
        A(f"""
        s_add_u32 s{sT1}, s{sT1}, 1
        s_sub_u32 s{sCNT}, s{sCNT}, 1
        s_cmp_lg_u32 s{sCNT}, 0
        s_cbranch_scc1 L_apf
        L_noapf:
        """)
    def h_gran(m):
        G = []
        for p in range(4):
            g = []
            if m % 2 == 0 and p == 0:
                g += [f"s_lshl_b32 s{sWC}, s{sCI}, 19", f"s_add_u32 s{sWC}, s{sWC}, s{sWQ0}",
                      f"s_add_u32 s{sCI}, s{sCI}, 1", f"s_cmp_eq_u32 s{sCI}, 9", f"s_cselect_b32 s{sCI}, 0, s{sCI}"]
            setup = [f"s_add_u32 m0, s{sRG}, {(m % 4) * 4096}", f"s_add_u32 s{sT2}, s{sWC}, {(m % 2) * 32 * 8192}"]
            g.append(("dma", f"h{m}", setup, f"h{m}", f"buffer_load_dwordx4 v{vHd+p}, {srd(SWQ)}, s{sT2} offen offset:{1024*p} lds"))
            G.append(g)
        return G
    if CFG["coop"]:
        A(f"""
        s_xor_b32 s{sT0}, s{sBR}, 1
        s_lshl_b32 s{sT1}, s{sT0}, 7
        s_add_u32 s{sWQ0}, s{sWQ0}, s{sT1}
        s_mul_i32 s{sT0}, s{sT0}, {CFG['hrot']}
        s_add_u32 s{sCI}, s{sCI}, s{sT0}
        s_sub_u32 s{sT2}, s{sCI}, 9
        s_cmp_ge_u32 s{sCI}, 9
        s_cselect_b32 s{sCI}, s{sT2}, s{sCI}
        s_mov_b32 s{sCX}, s{sCI}
        """)
        for g in x_chunk(0) + h_gran(0) + x_chunk(1) + h_gran(1): emit(A, vm, g)
    else:
        for g in x_chunk(0) + wq_gran(0) + wq_gran(1): emit(A, vm, g)
    A(f"""
    s_lshl_b32 s{sT1}, s{sB}, 5
    s_add_u32 s{sT1}, s{sT1}, s{sH}
    s_lshr_b32 s{sT0}, s{sT1}, 1
    s_cmp_eq_u32 s{sBR}, 0
    s_cselect_b32 s{sT0}, s{sT0}, s{sT1}
    s_add_u32 s{sTO}, s{sT0}, s{sB}
    s_and_b32 s{sTO}, s{sTO}, 31
    s_lshl_b32 s{sTO}, s{sTO}, 13
    s_add_u32 s{sTO2}, s{sTO}, 4096
    s_lshl_b32 s{sT0}, s{sT0}, 18
    s_add_u32 s{SK}, s{SK}, s{sT0}
    s_addc_u32 s{SK+1}, s{SK+1}, 0
    s_add_u32 s{SV}, s{SV}, s{sT0}
    s_addc_u32 s{SV+1}, s{SV+1}, 0
    s_mov_b32 s{SK+2}, {KVN}
    s_mov_b32 s{SK+3}, 0x20000
    s_mov_b32 s{SV+2}, {KVN}
    s_mov_b32 s{SV+3}, 0x20000
    """)
    if CFG["share"]:
        A(f"""
        s_and_b32 s{sT0}, s{sW}, 1
        s_lshl_b32 s{sT1}, s{sBR}, 1
        s_or_b32 s{sT0}, s{sT0}, s{sT1}
        s_cmp_eq_u32 s{sT0}, 0
        s_cselect_b32 s{sCNT}, 0, s{SK+2}
        s_cmp_eq_u32 s{sT0}, 1
        s_cselect_b32 s{SK+2}, 0, s{SK+2}
        s_mov_b32 s{SV+2}, s{SK+2}
        """)
    part_srd(A)
    if CFG["tlb"]:
        A(f"""
        s_cmp_eq_u32 s{sBR}, 0
        s_cselect_b32 s72, s72, s82
        s_cselect_b32 s73, s73, s83
        s_mul_i32 s{sT0}, s{sH}, {128*1152}
        s_load_dword s64, s[72:73], s{sT0}
        s_load_dword s65, s[{SK}:{SK+1}], 0
        s_load_dword s66, s[{SV}:{SV+1}], 0
        s_mul_i32 s{sT1}, s{sW}, {(PART - 4096) // 3}
        s_load_dword s67, s[{SP}:{SP+1}], s{sT1}
        s_mul_i32 s{sT3}, s{sB}, {96*2304}
        s_load_dword s68, s[100:101], s{sT3}
        s_load_dword s69, s[{sDBG}:{sDBG+1}], 0
        s_mov_b32 s82, s72
        s_mov_b32 s83, s73
        """)
    A(f"""
    s_mov_b32 s{sTHR}, {f2u(CFG['thr'])}
    s_mov_b32 s{sSC}, {f2u(LOG2E * 128 ** -0.5)}
    s_mov_b32 s{sSC+1}, {f2u(LOG2E * 128 ** -0.5)}
    v_bfe_u32 v1, v{vLane}, 4, 1          ; dsub
    v_lshrrev_b32 v2, 5, v{vLane}         ; h
    v_bfe_u32 v3, v{vLane}, 2, 2          ; r
    v_and_b32 v4, 3, v{vLane}             ; c
    v_lshl_add_u32 v30, v2, 2, v3
    v_lshlrev_b32 v30, 8, v30
    v_lshl_add_u32 v30, v1, 5, v30
    v_lshl_add_u32 v30, v4, 3, v30
    s_and_b32 s{sT0}, s{sW}, 2
    s_cmp_eq_u32 s{sBR}, {0 if CFG['share'] else 7}
    s_cselect_b32 s{sT0}, s{sT0}, s{sW}
    s_mul_i32 s{sKD}, s{sT0}, {REG}
    s_add_u32 s{sT0}, s{sKD}, {V1O}
    v_add_u32 v30, s{sT0}, v30
    """)
    for db in range(4):
        A(f"v_xor_b32 v31, {db}, v3")
        A(f"v_lshl_add_u32 v{vVr+db}, v31, 6, v30")
    A(f"""
    v_lshl_add_u32 v30, v2, 3, v3
    v_lshlrev_b32 v30, 8, v30
    v_lshl_add_u32 v30, v1, 5, v30
    v_and_b32 v31, 1, v4
    v_lshl_add_u32 v30, v31, 4, v30
    v_lshrrev_b32 v31, 1, v4
    v_lshl_add_u32 v30, v31, 3, v30
    """)
    for db in range(4):
        A(f"v_xor_b32 v31, {db}, v3")
        A(f"v_lshl_add_u32 v31, v31, 6, v30")
        A(f"v_add_u32 v{vWr+db}, s{sRG}, v31")
    A(f"""
    v_lshl_add_u32 v31, v2, 3, v3
    v_lshlrev_b32 v31, 7, v31
    v_sub_u32 v30, v30, v31
    v_add_u32 v30, s{sRG}, v30
    v_lshrrev_b32 v31, 1, v3
    v_lshl_add_u32 v{vHr}, v31, 6, v30
    v_xor_b32 v31, 1, v31
    v_lshl_add_u32 v{vHr+1}, v31, 6, v30
    v_and_b32 v1, 31, v{vLane}
    v_bfe_u32 v3, v{vLane}, 1, 3
    v_xor_b32 v3, v3, v2
    s_lshl_b32 s{sT0}, s{sKR}, 2
    v_xor_b32 v3, s{sT0}, v3
    v_lshlrev_b32 v30, 7, v1
    v_add_u32 v30, {XB}, v30
    """)
    for s in range(4):
        A(f"v_xor_b32 v31, {2*s}, v3")
        A(f"v_lshl_add_u32 v{vXr+s}, v31, 4, v30")
    A(f"""
    v_lshrrev_b32 v3, 2, v1
    v_mul_u32_u24 v3, 1088, v3
    v_lshl_add_u32 v3, v4, 8, v3
    v_add_u32 v3, s{sKD}, v3
    v_xor_b32 v30, v2, v4
    v_lshl_add_u32 v{vKr}, v30, 4, v3
    v_xor_b32 v30, 2, v30
    v_lshl_add_u32 v{vKr+1}, v30, 4, v3
    """)
    if CFG["q16"]:
        A(f"""
        v_lshrrev_b32 v1, 4, v{vLane}          ; kq
        v_bfe_u32 v2, v{vLane}, 2, 2           ; r
        v_lshl_add_u32 v30, v1, 3, v2
        v_lshlrev_b32 v30, 8, v30
        v_and_b32 v31, 1, v{vLane}
        v_lshl_add_u32 v30, v31, 3, v30
        v_add_u32 v30, s{sRG}, v30
        v_bfe_u32 v31, v{vLane}, 1, 1
        v_lshl_add_u32 v31, v2, 2, v31
        v_and_b32 v2, 1, v1
        v_lshl_add_u32 v31, v2, 1, v31
        """)
        for dt in range(8):
            A(f"v_xor_b32 v2, {2*dt}, v31")
            A(f"v_lshl_add_u32 v{16+dt}, v2, 4, v30")
        A(f"""
        v_and_b32 v2, 15, v{vLane}
        v_lshlrev_b32 v30, 7, v2
        v_add_u32 v30, {XB}, v30
        v_lshrrev_b32 v2, 1, v2
        v_xor_b32 v2, v2, v1
        v_lshl_add_u32 v24, v2, 4, v30
        v_xor_b32 v2, 4, v2
        v_lshl_add_u32 v25, v2, 4, v30
        """)
    A(f"s_and_b32 s{sT0}, s{sB}, 1")
    A(f"s_lshl_b32 s{sT0}, s{sT0}, 7")
    A(f"v_add_u32 v47, s{sT0}, v47")
    for p in range(4): A(f"v_add_u32 v{vWoX+p}, {p*(8*1152-1024)}, v47")
    for g in (h_gran(2) if CFG["coop"] else wq_gran(2)): emit(A, vm, g)
    allinit = CFG['own'] or CFG['coop']
    if CFG["fuse"]:
        A(f"""
        s_lshl_b32 s94, s{sBR}, 4
        s_add_u32 s94, s94, s{sB}
        s_or_b32 s{sT0}, s{sW if allinit else sBR}, s{sW}
        s_cmp_lg_u32 s{sT0}, 0
        s_cbranch_scc1 L_noinit
        s_lshl_b32 s{sT0}, s94, 3
        s_add_u32 s{sT0}, s{sT0}, s{sJJ}
        s_lshl_b32 s{sT0}, s{sT0}, 8
        s_add_u32 s{sT0}, s{sT0}, {FLAG_OFF}
        v_lshlrev_b32 v48, 2, v{vLane}
        v_add_u32 v48, s{sT0}, v48
        v_mov_b32 v49, 0
        global_store_dword v48, v49, s[{sWS}:{sWS+1}] sc1
        L_noinit:
        """)
    def qp_reads(n):
        fb = n & 1
        L = []
        for qb in range(3):
            L.append(f"ds_read_b128 {ar(aXf + fb*12 + qb*4, 4)}, v{vXr + n % 4} offset:{((n // 4) % 2) * 12288 + qb*4096}")
        for db in range(4):
            for u in range(2):
                L.append(f"ds_read_b64_tr_b16 {ar(aWf + fb*16 + db*4 + u*2, 2)}, v{vWr+db} offset:{(n % R) * 4096 + u * 1024}")
        return L
    init2 = [f"s_or_b32 s{sT0}, s{sW if allinit else sBR}, s{sW}", f"s_cmp_lg_u32 s{sT0}, 0", "s_cbranch_scc1 L_noinit2",
             "s_waitcnt vmcnt(0)",
             f"s_lshl_b32 s{sT0}, s94, 3", f"v_mov_b32 v48, s{sT0}", "v_mov_b32 v49, 1", "s_mov_b64 exec, 1",
             f"global_atomic_add v48, v49, s[{sDBG}:{sDBG+1}] sc1", "s_mov_b64 exec, -1", "L_noinit2:"]
    def k_read(s, slot, sh=False):
        return f"ds_read_b128 {ar(aK+4*s,4)}, v{vKr+(s&1)} offset:{(KVD if slot==0 else (REG if sh else 0)) + 64*(s>>1)}"
    wo_srd = [f"s_cmp_eq_u32 s{sBR}, 0", f"s_cselect_b32 s{SWO}, s72, s82", f"s_cselect_b32 s{SWO+1}, s73, s83",
              f"s_mov_b32 s{SWO+2}, {0 if CFG.get('nowo') else 4096*1152}", f"s_mov_b32 s{SWO+3}, 0x20000"]
    if CFG["coop"]:
        aHB = 144
        def h_reads(m):
            fb = m & 1
            L = [f"ds_read_b64_tr_b16 {ar(aWf + fb*16 + (kk*2+db)*4 + u*2, 2)}, v{vHr+db} offset:{(m % 4)*4096 + (16*kk+4*u)*128}"
                 for kk in range(2) for db in range(2) for u in range(2)]
            X = [f"ds_read_b128 {ar(aHB + fb*24 + kk*12 + qb*4, 4)}, v{vXr + 2*(m%2) + kk} offset:{((m // 2) % 2) * 12288 + qb*4096}"
                 for kk in range(2) for qb in range(3)]
            return L[:4] + X[:3] + L[4:] + X[3:]
        A(f"""
        s_mov_b32 s{sKR}, s{SK+2}
        s_cmp_eq_u32 s{sBR}, 0
        s_cselect_b32 s{SK+2}, 0, s{SK+2}
        s_mov_b32 s{SV+2}, s{SK+2}
        """)
        emit(A, vm, [("wait", ["x0", "h0"], ""), "s_barrier"])
        stamp(A, 11)
        for r in h_reads(0): A(r)
        hq = []
        for m in range(3, 18):
            for g in h_gran(m): hq.append((max(0, m - 4), g))
        for p in range(8): hq.append((0, k_piece(p, 0, tag="K0")))
        for p in range(8): hq.append((0, v_piece(p, 0, tag="V0", force_m0=True)))
        for m in range(18):
            fb = m & 1
            mf = []
            for kk in range(2):
                for db in range(2):
                    for qb in range(3):
                        acc = vr(64 + (qb*2+db)*16, 16)
                        mf.append(f"v_mfma_f32_32x32x16_bf16 {acc}, {ar(aWf+fb*16+(kk*2+db)*4,4)}, {ar(aHB+fb*24+kk*12+qb*4,4)}, {'0' if (m == 0 and kk == 0) else acc}")
            gaps = {}
            dma = []
            if m < 17:
                tags = [f"h{m+1}"] + ([f"x{m//2+1}"] if m % 2 == 1 else [])
                gaps[-1] = [("wait", tags, "lgkmcnt(0)")]
                if m % 2 == 1:
                    gaps[-1].append("s_barrier")
                    if m // 2 + 2 < 9: dma += x_chunk(m // 2 + 2)
                rd = h_reads(m + 1)
                for i, r in enumerate(rd): gaps.setdefault(i * 11 // len(rd), []).append(r)
            else:
                gaps[-1] = ["s_waitcnt lgkmcnt(0)", "s_barrier"]
            while hq and hq[0][0] <= m and len(dma) < CFG["hbud"]:
                dma.append(hq.pop(0)[1])
            for i, g in enumerate(dma): gaps.setdefault((i * 12) // len(dma), []).extend(g)
            if m == 4: gaps.setdefault(11, []).extend(init2)
            if m == 13:
                gaps.setdefault(11, []).extend([f"s_lshl_b32 s{sT0}, s{sB}, 3", f"s_add_u32 s{sT0}, s{sT0}, 128", f"v_mov_b32 v50, s{sT0}",
                    ("vm", "ic", f"global_load_dword v51, v50, s[{sDBG}:{sDBG+1}] sc1")])
            interleave(A, mf, gaps, vm)
        assert not hq
        if CFG.get("hst"): stamp(A, 8)
        hconv = []
        for qb in range(3):
            for db in range(2):
                src = 64 + (qb*2+db)*16
                hconv += [f"v_pk_mul_f32 {vr(src+2*i,2)}, {vr(src+2*i,2)}, s[{sSC}:{sSC+1}]" for i in range(8)]
                hconv += [f"v_cvt_pk_bf16_f32 v{vQ+32*qb+8*db+i}, v{src+2*i}, v{src+2*i+1}" for i in range(8)]
        A(f"""
        s_lshl_b32 s{sT0}, s{sB}, 5
        s_add_u32 s{sT0}, s{sT0}, s{sH}
        s_mul_i32 s{sT0}, s{sT0}, 12288
        s_add_u32 s{sT0}, s{sT0}, {QOFF}
        v_lshlrev_b32 v56, 4, v{vLane}
        v_add_u32 v56, s{sT0}, v56
        v_add_u32 v57, 4096, v56
        v_add_u32 v58, 8192, v56
        s_lshl_b32 s{sT0}, s{sB}, 3
        s_add_u32 s{sT0}, s{sT0}, s{sJJ}
        s_lshl_b32 s{sT0}, s{sT0}, 8
        s_lshl_b32 s{sT1}, s{sW}, 2
        s_add_u32 s{sT0}, s{sT0}, s{sT1}
        s_add_u32 s{sT0}, s{sT0}, {FLAG_OFF + 128*256 + 128}
        v_mov_b32 v59, s{sT0}
        s_cmp_eq_u32 s{sBR}, 0
        s_cbranch_scc1 L_hA
        """)
        vmB = VM(); vmB.ops = list(vm.ops)
        rest = [tile_advance() + k_piece(0, 1, tag="K1")] + [k_piece(p, 1, tag="K1") for p in range(1, 8)]
        rest += [v_piece(p, 1, tag="V1", force_m0=True) for p in range(8)]
        rest[-1] = rest[-1] + tile_advance()
        emit(A, vmB, wo_srd)
        for i, o in enumerate(hconv):
            A(o)
            if i % 6 == 0 and rest: emit(A, vmB, rest.pop(0))
        assert not rest
        for i in range(192): A(f"v_accvgpr_write_b32 a{aO+i}, 0")
        emit(A, vmB, [("wait", ["K0"], "")])
        for sx in range(8): A(k_read(sx, 0))
        A(f"""
        s_mov_b32 s{sT1}, 0
        L_hpoll:
        global_load_dword v60, v59, s[{sWS}:{sWS+1}] sc1
        s_waitcnt vmcnt(0)
        v_cmp_ne_u32 vcc, 1, v60
        s_add_u32 s{sT1}, s{sT1}, 1
        s_cbranch_vccz L_hgo
        s_sleep 2
        s_cmp_lt_u32 s{sT1}, 0x80000
        s_cbranch_scc1 L_hpoll
        L_hgo:
        """)
        for qb in range(3):
            for j in range(4):
                A(f"global_load_dwordx4 {vr(vQ+32*qb+16+4*j,4)}, v{56+qb}, s[{sWS}:{sWS+1}] offset:{1024*j} sc1")
        stamp(A, 1)
        A("s_waitcnt vmcnt(0)")
        A("s_branch L_qdone")
        A(f"""
        L_hA:
        s_mov_b32 s{SX}, s64
        s_mov_b32 s{SX+1}, s65
        s_mov_b32 s{SWQ}, s70
        s_mov_b32 s{SWQ+1}, s71
        s_sub_u32 s{sWQ0}, s{sWQ0}, 128
        s_mov_b32 s{SK+2}, s{sKR}
        s_mov_b32 s{SV+2}, s{sKR}
        """)
        for k, o in enumerate(hconv):
            A(o)
            if k % 16 == 15:
                qb, db = (k // 16) // 2, (k // 16) % 2
                for hf in range(2):
                    A(f"global_store_dwordx4 v{56+qb}, {vr(vQ+32*qb+8*db+4*hf,4)}, s[{sWS}:{sWS+1}] offset:{1024*(2*db+hf)} sc1")
        vm = VM()
        vm.add("qs")
        for g in x_chunk(0) + wq_gran(0): emit(A, vm, g)
        emit(A, vm, [("wait", ["qs"], "")])
        A(f"""
        v_readfirstlane_b32 s{sT0}, v51
        s_mov_b32 s{sT1}, 0
        s_cmp_ge_u32 s{sT0}, 8
        s_cbranch_scc1 L_hok
        L_hipoll:
        global_load_dword v51, v50, s[{sDBG}:{sDBG+1}] sc1
        s_waitcnt vmcnt(0)
        v_readfirstlane_b32 s{sT0}, v51
        s_add_u32 s{sT1}, s{sT1}, 1
        s_cmp_ge_u32 s{sT0}, 8
        s_cbranch_scc1 L_hok
        s_sleep 4
        s_cmp_lt_u32 s{sT1}, 0x80000
        s_cbranch_scc1 L_hipoll
        L_hok:
        v_mov_b32 v60, 1
        s_mov_b64 exec, 1
        global_store_dword v59, v60, s[{sWS}:{sWS+1}] sc1
        s_mov_b64 exec, -1
        """)
        vm.add("fl")
        if CFG.get("hst"): stamp(A, 9)
        for g in wq_gran(1) + wq_gran(2): emit(A, vm, g)
    def q16_reads(m):
        fb = m & 1
        X = [f"ds_read_b128 {ar(192 + fb*24 + qt*4, 4)}, v{24 + m % 2} offset:{((m // 2) % 2) * 12288 + qt*2048}" for qt in range(6)]
        L = [f"ds_read_b64_tr_b16 {ar(128 + fb*32 + dt*4 + u*2, 2)}, v{16+dt} offset:{((2*m) % R) * 4096 + u * 1024}"
             for dt in range(8) for u in range(2)]
        return L[:2] + X + L[2:]
    if CFG["q16"]:
        for g in wq_gran(3): emit(A, vm, g)
    emit(A, vm, [("wait", ["x0", "w1" if CFG["q16"] else "w0"], ""), "s_barrier"])
    if not CFG["coop"]: stamp(A, 11)
    for r in (q16_reads(0) if CFG["q16"] else qp_reads(0)): A(r)
    wqq = []
    for n in range(4 if CFG["q16"] else 3, 36):
        for g in wq_gran(n): wqq.append((max(0, n - R), g))
    for (kind, slot) in (("k", 0), ("v", 0), ("k", 1), ("v", 1)):
        for p in range(8):
            if kind == "k":
                lo = (K0O if slot == 0 else K1O) + 1088 * p
                g = k_piece(p, slot, tag=f"K{slot}")
            else:
                lo = (V0O if slot == 0 else V1O) + 1024 * p
                g = v_piece(p, slot, tag=f"V{slot}", force_m0=True)
                if p == 7: g = g + tile_advance()
            slots = [sl for sl in range(R) if lo < (sl + 1) * 4096 and lo + 1024 > sl * 4096]
            avail = max([max(n for n in range(36) if n % R == sl) for sl in slots] + [0])
            if CFG["share"] and kind == "v" and p == 7:
                if slot == 0: g = g + [f"s_mov_b32 s{SK+2}, s{sCNT}", f"s_mov_b32 s{SV+2}, s{sCNT}"]
                else: g = g + [f"s_mov_b32 s{SK+2}, {KVN}", f"s_mov_b32 s{SV+2}, {KVN}"]
            avail = max(avail, CFG["kvstart"])
            wqq.append((avail, g))
    zero_o = [f"v_accvgpr_write_b32 a{aO+i}, 0" for i in range(192)]
    if CFG["q16"]:
        zero_o = zero_o[:128]
        for m in range(18):
            fb = m & 1
            mf = []
            for dt in range(8):
                for qt in range(6):
                    acc = vr(vQA + (((qt // 2) * 8 + dt) * 2 + qt % 2) * 4, 4)
                    mf.append(f"v_mfma_f32_16x16x32_bf16 {acc}, {ar(128+fb*32+dt*4,4)}, {ar(192+fb*24+qt*4,4)}, {acc if m > 0 else '0'}")
            fill = []
            dma = []
            if m < 17:
                tags = [f"w{2*m+3}"] + ([f"x{m//2+1}"] if m % 2 == 1 else [])
                pre = [("wait", tags, "lgkmcnt(0)")]
                if m % 2 == 1:
                    pre.append("s_barrier")
                    if m // 2 + 2 < 9: dma += x_chunk(m // 2 + 2)
                rd = q16_reads(m + 1)
            else:
                pre = ["s_waitcnt lgkmcnt(0)"]; rd = []
            if m == 0: dma += x_chunk(1)
            while wqq and wqq[0][0] <= 2 * m + 1 and len(dma) < 2 * CFG["qbud"]:
                dma.append(wqq.pop(0)[1])
            gaps = {-1: pre}
            if m == 0:
                gaps[-1] = ["s_waitcnt lgkmcnt(0)"]
                gaps[36] = [("wait", ["w3"], "")]
                for i, r in enumerate(rd): gaps.setdefault(36 + i // 2, []).append(r)
                for i, g in enumerate(dma): gaps.setdefault(37 + (i * 11) // len(dma), []).extend(g)
            else:
                for i, r in enumerate(rd): gaps.setdefault(2 * i, []).append(r)
                for i, g in enumerate(dma): gaps.setdefault(2 * ((i * 24) // len(dma)) + 1, []).extend(g)
            if m == 17: zero_o += [f"v_accvgpr_write_b32 a{128+i}, 0" for i in range(32)]
            if CFG["kvpf"]:
                for n in (2 * m, 2 * m + 1):
                    if CFG["kvs"] <= n < CFG["kve"]:
                        tot = 4 * CFG["kvpf"]; span = CFG["kve"] - CFG["kvs"]
                        for i in range((n - CFG["kvs"]) * tot // span, (n + 1 - CFG["kvs"]) * tot // span):
                            g = [f"v_lshlrev_b32 v61, 6, v{vLane}"] if i == 0 else []
                            g += [f"s_add_u32 s{sT0}, s{sTO}, {(CFG['kv0'] + i // 4) * 8192 + (i % 2) * 4096}", f"s_and_b32 s{sT0}, s{sT0}, 0x3ffff",
                                  ("vm", "pf", f"buffer_load_dword v62, v61, {srd(SK if i % 4 < 2 else SV)}, s{sT0} offen {CFG['kvf']}")]
                            gaps.setdefault(46 - 2 * (n % 2), []).extend(g)
            if m == 3 and CFG["fuse"]: gaps.setdefault(47, []).extend(init2)
            if m >= 4:
                for i in range(48):
                    if zero_o and i not in gaps: gaps[i] = [zero_o.pop(0)]
            interleave(A, mf, gaps, vm)
            if m in (1, 8) and not (CFG.get("midst") or CFG.get("gst")): stamp(A, 8 if m == 1 else 9)
    for n in range(0 if CFG["q16"] else 36):
        fb = n & 1
        mf = []
        for db in range(4):
            for qb in range(3):
                T = qb * 4 + db
                c = vr(vQA+16*T, 16) if n > 0 else "0"
                mf.append(f"v_mfma_f32_32x32x16_bf16 {vr(vQA+16*T,16)}, {ar(aWf+fb*16+db*4,4)}, {ar(aXf+fb*12+qb*4,4)}, {c}")
        gaps = {}
        pre = []
        dma = []
        if n < 35:
            tags = [f"w{n+1}"]
            if n % 4 == 3: tags.append(f"x{n//4+1}")
            pre.append(("wait", tags, "lgkmcnt(0)"))
            if n % 4 == 3:
                pre.append("s_barrier")
                if n // 4 + 2 < 9: dma += x_chunk(n // 4 + 2)
            for i, r in enumerate(qp_reads(n + 1)): gaps.setdefault(i, []).append(r)
        else:
            pre += ["s_waitcnt lgkmcnt(0)"]
        gaps[-1] = pre
        if n == 0:
            dma += [wqq.pop(0)[1] for _ in range(4)] + x_chunk(1)
        while wqq and wqq[0][0] <= n and len(dma) < CFG["qbud"]:
            dma.append(wqq.pop(0)[1])
        for i, g in enumerate(dma):
            gaps.setdefault((i * 12) // len(dma), []).extend(g)
        if CFG["wopf"] == -4 and n == CFG["pfs"]:
            gaps.setdefault(11, []).extend([
                f"s_cmp_eq_u32 s{sBR}, 0", f"s_cselect_b32 s72, s72, s82", f"s_cselect_b32 s73, s73, s83",
                f"s_lshl_b32 s{sT0}, s{sB}, 2", f"s_add_u32 s{sT0}, s{sT0}, s{sW}", f"s_mul_i32 s{sT0}, s{sT0}, {72*128}",
                f"s_mul_i32 s{sT1}, s{sJJ}, {512*1152}", f"s_add_u32 s{sT0}, s{sT0}, s{sT1}", f"v_lshlrev_b32 v40, 7, v{vLane}",
                f"v_add_u32 v40, s{sT0}, v40",
                ("vm", "pf", f"global_load_dword v41, v40, s[72:73] nt"),
                "s_mov_b64 exec, 0xff",
                f"v_add_u32 v45, 8192, v40",
                ("vm", "pf", f"global_load_dword v42, v45, s[72:73] nt"),
                "s_mov_b64 exec, -1"])
        if CFG["wopf"] == -4 and n == CFG["pfs"] + 5:
            gaps.setdefault(11, []).extend([
                ("vm", "pf", f"global_load_dword v43, v40, s[72:73] sc1"),
                "s_mov_b64 exec, 0xff",
                ("vm", "pf", f"global_load_dword v44, v45, s[72:73] sc1"),
                "s_mov_b64 exec, -1"])
        if CFG["kvpf"] and n >= CFG["kvs"] and n < CFG["kve"]:
            tot = 4 * CFG["kvpf"]
            span = CFG["kve"] - CFG["kvs"]
            lo, hi = (n - CFG["kvs"]) * tot // span, (n + 1 - CFG["kvs"]) * tot // span
            for k, i in enumerate(range(lo, hi)):
                g = []
                if i == 0: g.append(f"v_lshlrev_b32 v61, 6, v{vLane}")
                g += [f"s_add_u32 s{sT0}, s{sTO}, {(CFG['kv0'] + i // 4) * 8192 + (i % 2) * 4096}", f"s_and_b32 s{sT0}, s{sT0}, 0x3ffff",
                      ("vm", "pf", f"buffer_load_dword v62, v61, {srd(SK if i % 4 < 2 else SV)}, s{sT0} offen {CFG['kvf']}")]
                gaps.setdefault(11 - 4 * k, []).extend(g)
        if n == CFG["tls"]:
            gaps.setdefault(5, []).extend([f"v_mov_b32 v50, s{sTO}",
                ("vm", "tl", f"global_load_dword v51, v50, s[{SK}:{SK+1}] nt"), ("vm", "tl", f"global_load_dword v52, v50, s[{SV}:{SV+1}] nt")])
        if n == 6 and CFG["fuse"] and not CFG["coop"]: gaps.setdefault(11, []).extend(init2)
        if n >= 8 and zero_o:
            for i in range(12):
                if zero_o: gaps.setdefault(i, []).append(zero_o.pop(0))
        interleave(A, mf, gaps, vm)
        if n in (3, 17) and not (CFG.get("midst") or CFG.get("gst") or CFG.get("sst") or CFG.get("hst")): stamp(A, 8 if n == 3 else 9)
    assert not zero_o
    kvq = [g for _, g in wqq]
    stamp(A, 1)
    def k_read(s, slot, sh=False):
        return f"ds_read_b128 {ar(aK+4*s,4)}, v{vKr+(s&1)} offset:{(KVD if slot==0 else (REG if sh else 0)) + 64*(s>>1)}"
    def v_read(f, u, slot, sh=False):
        ks, db = f // 4, f % 4
        return f"ds_read_b64_tr_b16 {ar(aV+(db*2+ks)*4+2*u,2)}, v{vVr+db} offset:{(KVD if slot==0 else (REG if sh else 0)) + (16*ks+8*u)*256}"
    A(f"""
    s_cmp_eq_u32 s{sBR}, 0
    s_cselect_b32 s{SWO}, s72, s82
    s_cselect_b32 s{SWO+1}, s73, s83
    s_mov_b32 s{SWO+2}, {0 if CFG.get('nowo') else 4096*1152}
    s_mov_b32 s{SWO+3}, 0x20000
    s_nop 7
    """)
    for j in range(95, -1, -1):
        s0 = vQA + 2 * j
        A(f"v_pk_mul_f32 {vr(s0,2)}, {vr(s0,2)}, s[{sSC}:{sSC+1}]")
        if j < 95:
            A(f"v_cvt_pk_bf16_f32 v{vQ+j+1}, v{vQA+2*j+2}, v{vQA+2*j+3}")
        if j % (4 if CFG["kvstart"] < 34 else 2) == 0 and kvq: emit(A, vm, kvq.pop(0))
        if j == 8:
            assert not kvq
            emit(A, vm, [("wait", ["K0"], "")] + (["s_barrier"] if CFG["share"] else []))
            for s in range(8): A(k_read(s, 0))
    A(f"v_cvt_pk_bf16_f32 v{vQ}, v{vQA}, v{vQA+1}")
    if CFG["q16"]:
        for g in range(23, -1, -1):
            A(f"v_permlane16_swap_b32 v{vQ+4*g}, v{vQ+4*g+2}")
            A(f"v_permlane16_swap_b32 v{vQ+4*g+1}, v{vQ+4*g+3}")
    A("L_qdone:")
    zz = [f"v_accvgpr_write_b32 a{aV+i}, 0" for i in range(32)] + [f"v_mov_b32 v{vP+16+i}, 0" for i in range(8)] + [f"v_mov_b32 v{vL+i}, 0" for i in range(3)]
    if CFG["q16"]: zz += [f"v_accvgpr_write_b32 a{160+i}, 0" for i in range(32)]
    A("s_nop 0")
    A("s_waitcnt lgkmcnt(0)")
    def qk(qb, s, cinit=None):
        c = vr(vS+16*qb, 16) if s > 0 else (cinit if cinit is not None else vr(vNM+16*qb, 16))
        return f"v_mfma_f32_32x32x16_bf16 {vr(vS+16*qb,16)}, {ar(aK+4*s,4)}, {vr(vQ+32*qb+4*s,4)}, {c}"
    def pv(qb, m):
        ks, db = m // 4, m % 4
        o = ar(aO + (qb*4+db)*16, 16)
        return f"v_mfma_f32_32x32x16_bf16 {o}, {ar(aV+(db*2+ks)*4,4)}, {vr(vP+8*qb+4*ks,4)}, {o}"
    def rowmax(qb, dst, tmp):
        s = vS + 16 * qb
        L = [f"v_max3_f32 v{dst}, v{s}, v{s+1}, v{s+2}"]
        for i in range(3, 15, 2):
            L.append(f"v_max3_f32 v{dst}, v{dst}, v{s+i}, v{s+i+1}")
        L.append(f"v_max_f32 v{dst}, v{dst}, v{s+15}")
        L += [f"v_mov_b32 v{tmp}, v{dst}", "s_nop 1", f"v_permlane32_swap_b32 v{dst}, v{tmp}", "s_nop 1",
              f"v_max_f32 v{dst}, v{dst}, v{tmp}"]
        return L
    def init_ops(qb):
        L = rowmax(qb, vT, vT+1)
        L += [f"v_sub_f32 v{vNM+16*qb+i}, 0, v{vT}" for i in range(16)]
        if qb == 0: L += [f"v_sub_f32 v{vS+i}, v{vS+i}, v{vT}" for i in range(16)]
        return L
    mf = [qk(qb, s, cinit="0") for qb in range(3) for s in range(8)]
    gaps = {}
    for i, o in enumerate(zz): gaps.setdefault(i * 10 // len(zz), []).append(o)
    gaps[9].append("s_nop 1")
    ops = init_ops(0)
    for i, o in enumerate(ops): gaps.setdefault(10 + i * 8 // len(ops), []).append(o)
    ops = init_ops(1)
    for i, o in enumerate(ops): gaps.setdefault(19 + i * 5 // len(ops), []).append(o)
    interleave(A, mf, gaps)
    A("s_nop 7")
    for o in init_ops(2): A(o)
    stamp(A, 2)
    sites = []
    def softmax_ops(qb, site):
        s = vS + 16 * qb
        ops = []
        for i in range(16):
            ops.append((8, f"v_exp_f32 v{vE+i%8}, v{s+i}"))
            if i == 2: ops.append((4, f"v_add_f32 v{vPS}, v{vE}, v{vE+1}"))
            elif i > 2: ops.append((4, f"v_add_f32 v{vPS}, v{vPS}, v{vE+(i-1)%8}"))
            if i >= 2 and i % 2 == 0:
                ops.append((4, f"v_cvt_pk_bf16_f32 v{vP+8*qb+(i-2)//2}, v{vE+(i-2)%8}, v{vE+(i-1)%8}"))
        ops.append((4, f"v_add_f32 v{vPS}, v{vPS}, v{vE+7}"))
        ops.append((4, f"v_cvt_pk_bf16_f32 v{vP+8*qb+7}, v{vE+6}, v{vE+7}"))
        tail = [f"v_cmp_nge_f32 vcc, s{sTHR}, v{vPS}", f"s_cbranch_vccnz L_tramp_{site}", f"L_back_{site}:",
                f"v_add_f32 v{vL+qb}, v{vL+qb}, v{vPS}"]
        sites.append((site, qb))
        return ops, tail
    def double_phase(mf, qb_sm, site, extra):
        ops, tail = softmax_ops(qb_sm, site)
        gaps = {k: list(v) for k, v in extra.items()}
        total = sum(c for c, _ in ops)
        g0, g1 = 2, len(mf) - 1
        acc = 0
        for c, o in ops:
            g = g0 + min(g1 - g0 - 1, int(acc * (g1 - g0) / total))
            gaps.setdefault(g, []).append(o)
            acc += c
        gaps.setdefault(len(mf) - 1, []).extend(tail)
        n = 3
        for k in (-1, ("pre", 0), 0, ("pre", 1), 1, ("pre", 2)):
            n += len([x for x in gaps.get(k, []) if not x.endswith(":")])
        n += 3
        for x in gaps[2]:
            if x.startswith("v_exp"): break
            n += 1
        if n < 12:
            gaps.setdefault(1, []).append(f"s_nop {12 - n - 1}")
        interleave(A, mf, gaps)
    def wox_piece(p):
        r = []
        if p % 4 == 0:
            g = p // 4
            r += [f"s_add_u32 m0, s{sRG}, {RINGO + 1024 * p}", f"s_add_u32 s{sT2}, s{sX0 if g % 2 == 0 else sWC}, {32 * 1152 * (g // 2)}"]
        return r + [f"buffer_load_dwordx4 v{vWoX + p % 4}, {srd(SWO)}, s{sT2} offen offset:{1024 * (p % 4)} {CFG['wof']} lds"]
    TW = list(range(64, 76))
    TL = list(range(76, 84)) + [8, 9, 10, 11]
    def tables():
        L = [f"s_lshr_b32 s{sCI}, s{sB}, 1", f"s_mul_i32 s{sCI}, s{sCI}, 3", f"s_lshr_b32 s{sCI}, s{sCI}, 1",
             f"s_lshl_b32 s{sXC}, s{sW}, 2", f"s_add_u32 s{sXC}, s{sXC}, 4"]
        G = [L]
        for i in range(12):
            G.append([f"s_add_u32 s{sT1}, s{sCI}, s{sXC}", f"s_and_b32 s{sT1}, s{sT1}, 15",
                      f"s_add_u32 s{sCI}, s{sCI}, 1", f"s_cmp_eq_u32 s{sCI}, 12", f"s_cselect_b32 s{sCI}, 0, s{sCI}"])
            G.append([f"s_mul_i32 s{TW[i]}, s{sT1}, {32*1152}", f"s_add_u32 s{TW[i]}, s{TW[i]}, s{sWQ0}",
                      f"s_lshr_b32 s{sT0}, s{sT1}, 2", f"s_and_b32 s{sT1}, s{sT1}, 3", f"s_mul_i32 s{TL[i]}, s{sT0}, {REG}"])
            G.append([f"s_mul_i32 s{sT3}, s{sT1}, 6144", f"s_add_u32 s{TL[i]}, s{TL[i]}, s{sT3}",
                      f"s_mul_i32 s{sT0}, s{sT0}, 6144", f"s_add_u32 s{sT0}, s{sT0}, {XB}",
                      f"s_cmp_eq_u32 s{sT1}, 3", f"s_cselect_b32 s{TL[i]}, s{sT0}, s{TL[i]}"])
        return G
    def tile(par, mode, tagp, sh, thr=False):
        ex = [dict(), dict(), dict()]
        def put(gam, instrs): ex[gam // 16].setdefault(gam % 16, []).extend(instrs)
        bar = ["s_barrier"] if sh else []
        if CFG.get("trace"):
            put(41, ["s_memrealtime s[92:93]"])
            put(47, ["s_waitcnt lgkmcnt(0)", "s_mov_b32 m0, s91", "v_writelane_b32 v159, s92, m0", "s_add_u32 s91, s91, 1"])
        ex[0][-1] = ["s_waitcnt vmcnt(%d)" % (0 if mode == "last" else (8 if sh else 16))] + bar
        for k in range(16):
            put(k // 2 if k < 4 else k - 2, [v_read(k // 2, k % 2, par, sh)])
        ex[1][("pre", 0)] = ["s_waitcnt lgkmcnt(4)"]
        ex[1][("pre", 6)] = ["s_waitcnt lgkmcnt(0)"]
        if mode != "last":
            if sh: n = 8 if mode == "steady" else 4
            else: n = 19 if mode == "steady" else 8
            ex[2][-1] = ["s_waitcnt vmcnt(%d)" % n] + bar
            for s in range(8): put(32 + s // 4, [k_read(s, par ^ 1, sh)])
            ex[2][("pre", 8)] = ["s_waitcnt lgkmcnt(0)"]
        else:
            ex[2][-1] = bar
        if mode == "steady":
            if sh:
                for p in range(4):
                    th = [f"s_waitcnt vmcnt({CFG['da']})"] if CFG["da"] >= 0 else []
                    put(6 * p + 1, th + k_piece(p, par, shared=True))
                    th = [f"s_waitcnt vmcnt({CFG['da'] + CFG['dv']})"] if CFG["da"] >= 0 else []
                    put(34 + 4 * p, th + v_piece(p, par, shared=True))
                put(47, tile_advance(True))
            else:
                th = [f"s_waitcnt vmcnt({CFG['db']})"] if thr else []
                for p in range(8):
                    put(3 * p, th + k_piece(p, par))
                    put(24 + 3 * p, th + v_piece(p, par))
                put(46, tile_advance())
                if CFG["bal"] and par == 1:
                    put(34, [f"s_lshl_b32 s{sT0}, s{sCNT}, 7", f"s_add_u32 s{sT0}, s{sT0}, {CFG['bal']}",
                             f"v_subrev_u32 v156, s{sT0}, v155", "v_lshrrev_b32 v156, 31, v156",
                             "s_mov_b64 exec, s[26:27]", "ds_write_b32 v1, v156", "s_mov_b64 exec, -1"])
                    put(44, ["ds_read_b32 v154, v1"])
        if mode == "prelast":
            for i, g in enumerate(tables()): put(i + 3, g)
            if CFG["fuse"]:
                put(44, [f"s_lshl_b32 s{sT0}, s{sG}, 3", f"v_mov_b32 v157, s{sT0}",
                         f"global_load_dword v158, v157, s[{sDBG}:{sDBG+1}] sc1"])
        if mode == "last":
            for p in range(16): put(2 * p, wox_piece(p))
        double_phase([pv(2, m) for m in range(8)] + [qk(1, s) for s in range(8)], 0, f"{tagp}a", ex[0])
        double_phase([pv(0, m) for m in range(8)] + [qk(2, s) for s in range(8)], 1, f"{tagp}b", ex[1])
        double_phase([pv(1, m) for m in range(8)] + ([qk(0, s) for s in range(8)] if mode != "last" else []), 2, f"{tagp}c", ex[2])
    A(f"s_mov_b32 s{sCNT}, 0")
    if CFG.get("trace"): A("s_mov_b32 s91, 0")
    A(f"""
    s_mul_i32 s{sWQ0}, s{sJJ}, {512*1152}
    s_lshl_b32 s{sT0}, s{sW}, 8
    s_add_u32 s{sWQ0}, s{sWQ0}, s{sT0}
    s_mul_i32 s{sWC}, s{sW}, {128*1152}
    s_add_u32 s{sWC}, s{sWC}, s{sWQ0}
    s_mul_i32 s{sX0}, s{sH}, {128*1152}
    s_add_u32 s{sX0}, s{sX0}, 1024
    s_and_b32 s{sT0}, s{sB}, 1
    s_lshl_b32 s{sT0}, s{sT0}, 7
    s_sub_u32 s{sX0}, s{sX0}, s{sT0}
    """)
    def attn_loop(sh):
        L = "A" if sh else "B"
        two = (not sh) and CFG["db"] >= 0
        if not sh:
            A("L_enterB:")
            if CFG["bal"]:
                A(f"""
                s_mov_b32 s47, s{sB}
                s_cmp_eq_u32 s{sW}, 0
                s_cselect_b32 s26, 1, 0
                s_mov_b32 s27, 0
                v_mov_b32 v1, {XB}
                v_mov_b32 v2, 248
                v_mov_b32 v157, 1
                s_cmp_lg_u32 s{sW}, 0
                s_cbranch_scc1 L_mainB
                s_mov_b64 exec, 1
                global_atomic_add v155, v2, v157, s[{sDBG}:{sDBG+1}] sc0 sc1
                s_mov_b64 exec, -1
                """)
            if two and not CFG["bal"] and CFG["dbs"] == 0: A("s_branch L_mainBT")
        for thr in ([False, True] if two else [False]):
            T = "T" if thr else ""
            A(".p2align 6")
            A(f"L_main{L}{T}:")
            tile(0, "steady", L + T + "s0", sh, thr)
            tile(1, "steady", L + T + "s1", sh, thr)
            if two and not thr: A("L_tailB:")
            if thr:
                A("s_branch L_tailB")
                continue
            if CFG.get("midst"):
                for idx, c in ((8, 4), (9, 9)):
                    A(f"s_cmp_lg_u32 s{sCNT}, {c}")
                    A(f"s_cbranch_scc1 L_nost{idx}{L}")
                    stamp(A, idx)
                    A(f"L_nost{idx}{L}:")
            A(f"s_add_u32 s{sCNT}, s{sCNT}, 1")
            if two:
                A(f"""
                s_cmp_ge_u32 s{sCNT}, {CFG['dbn']}
                s_cbranch_scc1 L_freeB
                """)
                if CFG["bal"]:
                    A(f"""
                    s_cmp_lg_u32 s{sW}, 0
                    s_cbranch_scc1 L_noat
                    s_mov_b64 exec, 1
                    global_atomic_add v155, v2, v157, s[{sDBG}:{sDBG+1}] sc0 sc1
                    s_mov_b64 exec, -1
                    L_noat:
                    s_waitcnt lgkmcnt(0)
                    v_readfirstlane_b32 s{sT0}, v154
                    s_cmp_eq_u32 s{sT0}, 1
                    s_cbranch_scc1 L_mainBT
                    """)
                else:
                    A(f"s_cmp_ge_u32 s{sCNT}, {CFG['dbs']}")
                    A("s_cbranch_scc1 L_mainBT")
                A("L_freeB:")
            A(f"""
            s_cmp_lt_u32 s{sCNT}, 15
            s_cbranch_scc1 L_main{L}
            """)
            if two: A("s_branch L_lastB")
        if two: A("L_lastB:")
        if (not sh) and CFG["bal"]: A(f"s_mov_b32 s{sB}, s47")
        tile(0, "prelast", L + "p0", sh)
        tile(1, "last", L + "p1", sh)
    if CFG["share"]:
        A(f"""
        s_cmp_lg_u32 s{sBR}, 0
        s_cbranch_scc1 L_enterB
        s_and_b32 s{sT0}, s{sW}, 1
        s_mul_i32 s{sKL}, s{sT0}, 4352
        s_add_u32 s{sKL}, s{sKL}, s{sKVB}
        s_lshl_b32 s{sCX}, s{sT0}, 12
        s_add_u32 s{sVL}, s{sCX}, s{sKVB}
        s_add_u32 s{sTO2}, s{sTO}, s{sCX}
        """)
        attn_loop(True)
        A("s_branch L_attn_done")
    attn_loop(False)
    A("L_attn_done:")
    vF = 16
    vXa, vOa = 8, 10
    vOwn = 40
    def norm_frag(kl, qb, n):
        db, half = kl // 2, kl % 2
        tb = 24 + (n % 2) * 8
        dst = vOwn + ((kl % 2) * 3 + qb) * 4
        L = [f"v_accvgpr_read_b32 v{tb+i}, a{aO+(qb*4+db)*16+8*half+i}" for i in range(8)]
        if CFG["nopk"]: L += [f"v_mul_f32 v{tb+i}, v{tb+i}, v{vF+2*qb}" for i in range(8)]
        else: L += [f"v_pk_mul_f32 {vr(tb+2*i,2)}, {vr(tb+2*i,2)}, {vr(vF+2*qb,2)}" for i in range(4)]
        L += [f"v_cvt_pk_bf16_f32 v{dst+i}, v{tb+2*i}, v{tb+2*i+1}" for i in range(4)]
        L.append(f"ds_write_b128 v2, {vr(dst,4)} offset:{kl*3072 + qb*1024}" if kl < 6 else
                 f"ds_write_b128 v14, {vr(dst,4)} offset:{(kl-6)*3072 + qb*1024}")
        return L
    cnt = [0]
    def norm_group(kl):
        L = []
        for qb in range(3):
            L += norm_frag(kl, qb, cnt[0]); cnt[0] += 1
        return L
    setup = f"""
    v_lshlrev_b32 v1, 4, v{vLane}
    v_add_u32 v2, s{sRG}, v1
    s_mul_i32 s{sT0}, s{sW}, 6144
    s_add_u32 s{sT0}, s{sT0}, {XB}
    v_add_u32 v14, s{sT0}, v1
    v_bfe_u32 v12, v{vLane}, 4, 1
    v_and_b32 v13, 1, v{vLane}
    v_lshlrev_b32 v13, 5, v13
    v_lshl_add_u32 v13, v12, 4, v13
    v_bfe_u32 v12, v{vLane}, 1, 1
    v_lshl_add_u32 v13, v12, 3, v13
    v_lshrrev_b32 v12, 5, v{vLane}
    v_bfe_u32 v15, v{vLane}, 2, 2
    v_lshl_add_u32 v12, v12, 2, v15
    v_lshl_add_u32 v13, v12, 7, v13
    v_add_u32 v13, {RINGO}, v13
    v_lshrrev_b32 v15, 1, v15
    v_lshl_add_u32 v12, v15, 6, v13
    v_xor_b32 v15, 1, v15
    v_lshl_add_u32 v13, v15, 6, v13
    v_add_u32 v{vXa}, s{sRG}, v12
    v_add_u32 v{vXa+1}, s{sRG}, v13
    s_mul_i32 s{sKD}, s{sJJ}, {PCU}
    s_mul_i32 s{sKR}, s{sW}, 3072
    s_add_u32 s{sKR}, s{sKR}, s{sKD}
    s_add_u32 s{sKR}, s{sKR}, {96*1024}
    s_mul_i32 s{sT0}, s{sW}, {24*1024}
    s_add_u32 s{sKD}, s{sKD}, s{sT0}
    s_and_b32 s{sT0}, s{sB}, 1
    s_lshl_b32 s{sT0}, s{sT0}, 12
    s_add_u32 s{sKD}, s{sKD}, s{sT0}
    s_lshl_b32 s{sT0}, s{sT0}, 1
    s_sub_u32 s{sLX}, 4096, s{sT0}
    s_ashr_i32 s{sTO}, s{sLX}, 5
    """
    setup = [x.strip() for x in setup.split("\n") if x.strip()]
    vm = VM()
    for p in range(16): vm.add(f"g{p//4}")
    aXB = 96
    def op_gran(z):
        G = []
        for p in range(4):
            g = []
            if z == 20 and p == 0:
                g += [f"v_add_u32 v{vWoX+i}, s{sTO}, v{vWoX+i}" for i in range(4)]
            m0 = f"s_add_u32 m0, s{sRG}, {RINGO + (z % 4) * 4096}"
            if z < 8: setup, so = [m0, f"s_add_u32 s{sT2}, s{sX0 if z % 2 == 0 else sWC}, {(z // 2) * 32 * 1152}"], sT2
            elif z < 20: setup, so = [m0, "s_nop 0"], TW[z - 8]
            elif z < 24: setup, so = [m0, f"s_add_u32 s{sT2}, s{sWC}, {(z - 20) * 32 * 1152}"], sT2
            else: setup, so = [m0, "s_nop 0"], TW[z - 24]
            g.append(("dma", f"g{z}", setup, f"g{z}", f"buffer_load_dwordx4 v{vWoX+p}, {srd(SWO)}, s{so} offen offset:{1024*p} {CFG['wof']} lds"))
            G.append(g)
        return G
    def op_reads(z):
        fb = z & 1
        if z < 8:
            return [[f"ds_read_b64_tr_b16 {ar(aWf + fb*16 + (sx*2+ct)*4 + u*2, 2)}, v{vXa+ct} offset:{(((z//2)*2+sx) % 4)*4096 + (16*(z%2)+8*u)*128}"]
                    for sx in range(2) for ct in range(2) for u in range(2)]
        L = [[f"ds_read_b64_tr_b16 {ar(aWf + fb*16 + (kk*2+ct)*4 + u*2, 2)}, v{vXa+ct} offset:{(z%4)*4096 + (16*kk+8*u)*128}"]
             for kk in range(2) for ct in range(2) for u in range(2)]
        if 20 <= z < 24:
            va, off = (2, (z % 4) * 6144) if z % 4 < 3 else (14, 0)
        else:
            va, off = vOa + fb, 0
            L[0] = [f"v_add_u32 v{va}, s{TL[z - 8 if z < 20 else z - 24]}, v1"] + L[0]
        R_ = [[f"ds_read_b128 {ar(aXB + fb*24 + kk*12 + qb*4, 4)}, v{va} offset:{off + kk*3072 + qb*1024}"]
              for kk in range(2) for qb in range(3)]
        return L[:4] + R_[:3] + L[4:] + R_[3:]
    def conv_store(ps):
        base, dst0 = ((160, 160), (64, 208))[ps]
        cv, st = [], []
        tiles = [(qb, ct) for qb in range(3) for ct in range(2)] if ps == 0 else [(qb, ct) for ct in range(2) for qb in range(3)]
        for k, (qb, ct) in enumerate(tiles):
            tb = dst0 + k * 8
            src = base + (qb*2+ct) * 16
            c = [f"v_cvt_pk_bf16_f32 v{tb+i}, v{src+2*i}, v{src+2*i+1}" for i in range(8)]
            t = []
            if ps == 1 and k == 0: t.append(f"s_add_u32 s{sKD}, s{sKD}, s{sLX}")
            t.append(f"s_add_u32 s{sT3}, s{sKD}, {(qb*4 + ct)*2048}")
            for half in range(2):
                t.append(("vm", "st", f"buffer_store_dwordx4 {vr(tb+4*half,4)}, v1, {srd(SP)}, s{sT3} offen offset:{half*1024} {CFG['stfl']}"))
            cv.append(c); st.append(t)
        return cv, st
    fin = [f"v_mov_b32 v{vT+qb}, v{vL+qb}" for qb in range(3)] + setup[:2]
    fin += [f"v_permlane32_swap_b32 v{vL+qb}, v{vT+qb}" for qb in range(3)] + setup[2:5]
    fin += [f"v_add_f32 v{vL+qb}, v{vL+qb}, v{vT+qb}" for qb in range(3)]
    fin += [f"v_rcp_f32 v{vF+2*qb}, v{vL+qb}" for qb in range(3)] + setup[5:]
    fin += [f"v_mov_b32 v{vF+2*qb+1}, v{vF+2*qb}" for qb in range(3)]
    gaps = {}
    for i, o in enumerate(fin): gaps.setdefault(i * 8 // len(fin), []).append(o)
    interleave(A, [pv(2, m) for m in range(8)], gaps)
    stamp(A, 3)
    if CFG.get("trace"):
        A(f"""
        s_lshl_b32 s{sT0}, s2, 2
        s_add_u32 s{sT0}, s{sT0}, s{sW}
        s_lshl_b32 s{sT0}, s{sT0}, 8
        s_add_u32 s{sT0}, s{sT0}, {(66 << 20)}
        v_lshlrev_b32 v156, 2, v{vLane}
        v_add_u32 v156, s{sT0}, v156
        global_store_dword v156, v159, s[{sWS}:{sWS+1}]
        """)
    if CFG["fuse"]: A(f"v_readfirstlane_b32 s{sCNT}, v158")
    emit(A, vm, [("wait", ["g1"], "")])
    for g in op_reads(0): emit(A, vm, g)
    emit(A, vm, norm_group(0))
    stamp(A, 4)
    push_setup = f"""
        s_cmp_lg_u32 s{sW}, 3
        s_cbranch_scc1 L_nopush1
        s_cmp_ge_u32 s{sCNT}, 8
        s_cbranch_scc1 L_initok
        s_lshl_b32 s{sT0}, s{sG}, 3
        v_mov_b32 v12, s{sT0}
        s_mov_b32 s{sT1}, 0
        L_ipoll:
        global_load_dword v13, v12, s[{sDBG}:{sDBG+1}] sc1
        s_waitcnt vmcnt(0)
        v_readfirstlane_b32 s{sCNT}, v13
        s_add_u32 s{sT1}, s{sT1}, 1
        s_cmp_ge_u32 s{sCNT}, 8
        s_cbranch_scc1 L_initok
        s_sleep 8
        s_cmp_lt_u32 s{sT1}, 0x80000
        s_cbranch_scc1 L_ipoll
        L_initok:
        s_lshl_b32 s{sT0}, s{sG}, 11
        s_lshl_b32 s{sT1}, s{sBR}, 6
        s_add_u32 s{sT0}, s{sT0}, s{sT1}
        s_lshl_b32 s{sT1}, s{sJJ}, 2
        s_add_u32 s{sT0}, s{sT0}, s{sT1}
        s_add_u32 s{sT0}, s{sT0}, {FLAG_OFF}
        v_lshlrev_b32 v12, 8, v{vLane}
        v_add_u32 v12, s{sT0}, v12
        v_mov_b32 v13, 1
        s_mov_b64 exec, 0xff
        global_store_dword v12, v13, s[{sWS}:{sWS+1}] sc1
        s_mov_b64 exec, -1
        L_nopush1:
    """
    push_setup = [x.strip() for x in push_setup.split("\n") if x.strip()]
    pend = []
    for z in range(36):
        fb = z & 1
        mf = []
        for kk in range(2):
            for ct in range(2):
                for qb in range(3):
                    if z < 8:
                        acc = vr((64 if kk == 0 else 160) + (qb*2+ct)*16, 16)
                        c = "0" if z == 0 else acc
                        bop = vr(vOwn + ((z % 2)*3+qb)*4, 4)
                    else:
                        acc = vr((160 if z < 20 else 64) + (qb*2+ct)*16, 16)
                        c = "0" if (z == 20 and kk == 0) else acc
                        bop = ar(aXB+fb*24+kk*12+qb*4, 4)
                    mf.append(f"v_mfma_f32_32x32x16_bf16 {acc}, {ar(aWf+fb*16+(kk*2+ct)*4,4)}, {bop}, {c}")
        gaps = {}
        if z < 35:
            need = (z + 1) | 1 if z + 1 < 8 else z + 1
            tags = [f"g{need}"] + (["st"] if (z == 30 and CFG["fuse"]) else [])
            gaps[-1] = [("wait", tags, "lgkmcnt(0)")]
            if z == 7 or (z == 30 and CFG["fuse"]): gaps[-1].append("s_barrier")
            rd = op_reads(z + 1)
            for i, g in enumerate(rd): gaps.setdefault(i * 11 // len(rd), []).extend(g)
        else:
            gaps[-1] = ["s_waitcnt lgkmcnt(0)"]
        if z < 8:
            if z % 2 == 1:
                for i, g in enumerate(op_gran(z + 3) + op_gran(z + 4)): gaps.setdefault(i, []).extend(g)
        elif z < 32:
            for i, g in enumerate(op_gran(z + 4)): gaps.setdefault(3 * i + 1, []).extend(g)
        if z < 7:
            ng = norm_group(z + 1)
            for i, o in enumerate(ng): gaps.setdefault(i * 11 // len(ng), []).append(o)
        if z == 9:
            pend = [f"v_cvt_pk_bf16_f32 v{16+i}, v{64+2*i}, v{65+2*i}" for i in range(48)]
            if CFG["bpf"]:
                pend += [[f"s_cmp_lg_u32 s{sBR}, 0", "s_cbranch_scc1 L_nobpf", "s_load_dwordx2 s[12:13], s[0:1], 72",
                         f"s_lshl_b32 s{sT0}, s{sB}, 2", f"s_add_u32 s{sT0}, s{sT0}, s{sW}", f"s_mul_i32 s{sT0}, s{sT0}, {72*128}",
                         f"s_mul_i32 s{sT1}, s{sJJ}, {512*1152}", f"s_add_u32 s{sT0}, s{sT0}, s{sT1}",
                         f"v_lshlrev_b32 v12, 6, v{vLane}", f"v_add_u32 v12, s{sT0}, v12", f"v_add_u32 v13, 4096, v12",
                         "s_waitcnt lgkmcnt(0)",
                         "global_load_dword v15, v12, s[12:13]", "global_load_dword v15, v13, s[12:13]",
                         "global_load_dword v15, v13, s[12:13] offset:1024", "L_nobpf:"]]
        if z == 21:
            pend = sum([c + t for c, t in zip(*conv_store(0))], [])
        if z == 30 and CFG["fuse"]: gaps.setdefault(0, []).extend(push_setup)
        if 32 <= z < 35:
            for i in range(4):
                xf = (z - 32) * 4 + i
                gaps.setdefault(3 * i + 1, []).append(f"ds_write_b128 v2, {vr(16+4*xf,4)} offset:{RINGO + xf*1024}")
        for i in range(12):
            if pend:
                o = pend.pop(0)
                gaps.setdefault(i, []).extend(o if isinstance(o, list) else [o])
        interleave(A, mf, gaps, vm)
        if z == 7 and CFG.get("gst"): stamp(A, 8)
        if CFG.get("gst2"):
            if z == 20: stamp(A, 1)
            if z == 30: stamp(A, 2)
            if z == 3: stamp(A, 11)
    assert not pend
    if CFG.get("gst"): stamp(A, 9)
    A(f"""
    s_barrier
    s_mul_i32 s{sT0}, s{sW}, 3072
    s_add_u32 s{sT0}, s{sT0}, {RINGO}
    v_add_u32 v10, s{sT0}, v1
    v_add_u32 v11, {2*REG}, v10
    s_mov_b32 s64, 0x3f80
    s_mov_b32 s65, 0x3f800000
    """)
    for src in range(4):
        for m in range(3):
            A(f"ds_read_b128 {vr(16+(src*3+m)*4,4)}, v{10 + src // 2} offset:{(src % 2)*REG + m*1024}")
    for c, t in zip(*conv_store(1)): emit(A, vm, c + t)
    stamp(A, 5)
    A("s_waitcnt lgkmcnt(0)")
    for src in range(4):
        for m in range(3):
            for d in range(4):
                for hi in range(2):
                    acc = 64 + m*8 + d*2 + hi
                    A(f"v_dot2_f32_bf16 v{acc}, v{16+(src*3+m)*4+d}, s{65 if hi else 64}, {'0' if src == 0 else f'v{acc}'}")
    A("s_nop 2")
    for m in range(3):
        for d in range(4): A(f"v_cvt_pk_bf16_f32 v{96+m*4+d}, v{64+m*8+2*d}, v{65+m*8+2*d}")
        A(f"buffer_store_dwordx4 {vr(96+m*4,4)}, v1, {srd(SP)}, s{sKR} offen offset:{m*1024} {CFG['stfl']}")
    if CFG["fuse"]:
        A(f"""
        s_waitcnt vmcnt(0)
        s_barrier
        s_cmp_lg_u32 s{sW}, 3
        s_cbranch_scc1 L_nopush
        s_mov_b64 exec, 0xff
        global_store_dword v12, v13, s[{sWS}:{sWS+1}] offset:32 sc1
        s_mov_b64 exec, -1
        L_nopush:
        """)
        stamp(A, 6)
        A(f"""
        s_cmp_lg_u32 s{sBR}, {'s%d' % sBR if CFG['own'] else 0}
        s_cbranch_scc1 L_fin
        s_mov_b32 s8, s100
        s_mov_b32 s9, s101
        s_mov_b32 s10, {16*96*1152*2}
        s_mov_b32 s11, 0x20000
        s_mov_b32 s{SP+2}, {PART if CFG['own'] else 17*PART}
        s_lshl_b32 s{sT0}, s{sG}, 3
        s_add_u32 s{sT0}, s{sT0}, s{sJJ}
        s_lshl_b32 s{sT0}, s{sT0}, 8
        s_add_u32 s{sT0}, s{sT0}, {FLAG_OFF}
        s_lshl_b32 s{sT1}, s{sBR}, 6
        s_add_u32 s{sT0}, s{sT0}, s{sT1}
        v_and_b32 v2, 7, v{vLane}
        v_lshlrev_b32 v2, 2, v2
        v_add_u32 v2, s{sT0}, v2
        v_and_b32 v3, 31, v{vLane}
        v_lshrrev_b32 v5, 5, v{vLane}
        v_mul_u32_u24 v4, 2304, v3
        v_lshl_add_u32 v4, v5, 5, v4
        s_mov_b32 s64, 0x3f80
        s_mov_b32 s65, 0x3f800000
        s_lshl_b32 s66, s{sBR}, 1
        s_add_u32 s78, s66, {2 if CFG['own'] else 4}
        L_stage:
        s_and_b32 s67, s66, 1
        s_add_u32 s68, s67, 3
        s_mul_i32 s68, s68, s{sJJ}
        s_add_u32 s68, s68, s{sW}              ; idx
        s_add_u32 s69, s67, 2
        s_cmp_gt_u32 s{sW}, s69
        s_cbranch_scc1 L_next
        s_cmp_ge_u32 s68, 30
        s_cbranch_scc1 L_next
        s_and_b32 s69, s{sB}, 1
        s_xor_b32 s69, s69, s67
        s_lshl_b32 s69, s69, 1                  ; 2*half
        s_mul_i32 s70, s68, 43
        s_lshr_b32 s70, s70, 8                  ; w' = idx/6
        s_mul_i32 s71, s70, 6
        s_sub_u32 s71, s68, s71                 ; r = idx%6
        s_lshr_b32 s72, s71, 1                  ; qb
        s_and_b32 s73, s71, 1                   ; c
        s_cmp_eq_u32 s70, 4
        s_cselect_b32 s69, 0, s69
        s_cselect_b32 s74, 1, 2
        s_add_u32 s73, s73, s69                 ; ct
        s_lshl_b32 s74, s72, s74
        s_add_u32 s74, s74, s73
        s_mul_i32 s75, s70, 12
        s_add_u32 s74, s74, s75                 ; tt
        s_lshl_b32 s74, s74, 11
        s_lshr_b32 s75, s66, 1
        s_mul_i32 s76, s75, {0 if CFG['own'] else 16*PART}
        s_add_u32 s74, s74, s76
        s_mul_i32 s76, s{sB}, {96*2304}
        s_mul_i32 s75, s75, 1152
        s_add_u32 s76, s76, s75
        s_lshl_b32 s75, s70, 8
        s_add_u32 s76, s76, s75
        s_mul_i32 s75, s72, {32*2304}
        s_add_u32 s76, s76, s75
        s_lshl_b32 s75, s73, 6
        s_add_u32 s76, s76, s75
        s_mov_b32 s77, 0
        L_poll:
        global_load_dword v6, v2, s[{sWS}:{sWS+1}] sc1
        s_waitcnt vmcnt(0)
        v_cmp_ne_u32 vcc, 1, v6
        s_add_u32 s77, s77, 1
        s_cbranch_vccz L_go
        s_sleep {CFG['slp']}
        s_cmp_lt_u32 s77, 0x80000
        s_cbranch_scc1 L_poll
        L_go:
        """)
        for p in range(8):
            for m in range(2):
                A(f"buffer_load_dwordx4 {vr(32+(p*2+m)*4,4)}, v1, {srd(SP)}, s74 offen offset:{1024*m} sc1")
            if p < 7: A(f"s_add_u32 s74, s74, {PCU}")
        for p in range(8):
            A(f"s_waitcnt vmcnt({14 - 2*p})")
            for m in range(2):
                for d in range(4):
                    src = 32 + (p*2+m)*4 + d
                    for hi in range(2):
                        acc = 8 + m*8 + d*2 + hi
                        A(f"v_dot2_f32_bf16 v{acc}, v{src}, s{65 if hi else 64}, {'0' if p == 0 else f'v{acc}'}")
        A("s_nop 2")
        for m in range(2):
            for d in range(4):
                A(f"v_cvt_pk_bf16_f32 v{24+m*4+d}, v{8+m*8+2*d}, v{9+m*8+2*d}")
            A(f"buffer_store_dwordx4 {vr(24+m*4,4)}, v4, s[8:11], s76 offen offset:{m*16}")
        A(f"""
        L_next:
        """)
        if CFG["stamps"]:
            A("s_cmp_lg_u32 s66, 1"); A("s_cbranch_scc1 L_nost7"); stamp(A, 7); A("L_nost7:")
        A(f"""
        v_add_u32 v2, 32, v2
        s_add_u32 s66, s66, 1
        s_cmp_lt_u32 s66, s78
        s_cbranch_scc1 L_stage
        L_fin:
        """)
    if CFG["stamps"]:
        A("s_waitcnt vmcnt(0)")
        stamp(A, 10)
        if not CFG["fuse"]:
            stamp(A, 6)
            if not CFG.get("sst"): stamp(A, 7)
    if CFG.get("probe"):
        wg, idx, mul, base = CFG["probe"]
        A(f"""
        s_waitcnt lgkmcnt(0)
        s_xor_b32 s{sT0}, s2, {wg}
        s_or_b32 s{sT0}, s{sT0}, s{sW}
        s_cmp_lg_u32 s{sT0}, 0
        s_cbranch_scc1 L_end
        s_sub_u32 s{sT1}, s{sST[idx]}, s{sST[0]}
        s_mul_i32 s{sT1}, s{sT1}, {mul}
        s_add_u32 s{sT1}, s{sT1}, {base * 100}
        s_min_u32 s{sT1}, s{sT1}, 100000
        L_probe:
        s_memrealtime s[64:65]
        s_waitcnt lgkmcnt(0)
        s_sub_u32 s{sT0}, s64, s{sST[0]}
        s_cmp_lt_u32 s{sT0}, s{sT1}
        s_cbranch_scc1 L_probe
        """)
    elif CFG.get("dbgout"):
        A(f"""
        s_waitcnt lgkmcnt(0)
        s_and_b32 s{sT0}, s2, 0xf7
        s_or_b32 s{sT0}, s{sT0}, s{sW}
        s_cmp_lg_u32 s{sT0}, 0
        s_cbranch_scc1 L_end
        s_lshl_b32 s{sT0}, s{sBR}, 5
        v_mov_b32 v1, s{sT0}
        """)
        for k, idx in enumerate((11, 2, 3, 10)):
            A(f"s_sub_u32 s{sT1}, s{sST[idx]}, s{sST[0]}")
            A(f"v_mov_b32 v2, s{sT1}")
            A(f"global_store_dword v1, v2, s[{sDBG}:{sDBG+1}] offset:{8*k+4}")
    else:
        stamps_out(A, 12)
    A("L_end:")
    A("s_endpgm")
    for site, qb in sites:
        A(f"L_tramp_{site}:")
        A(f"s_call_b64 s[{sRET}:{sRET+1}], L_rare_{qb}")
        A(f"s_branch L_back_{site}")
    for qb in range(3):
        s = vS + 16 * qb
        A(f"L_rare_{qb}:")
        for x in rowmax(qb, vT, vT+1): A(x)
        A(f"v_max_f32 v{vT}, 0, v{vT}")
        A(f"v_exp_f32 v{vT+1}, -v{vT}")
        for i in range(16): A(f"v_sub_f32 v{vNM+16*qb+i}, v{vNM+16*qb+i}, v{vT}")
        A(f"v_mul_f32 v{vL+qb}, v{vL+qb}, v{vT+1}")
        for i in range(64):
            A(f"v_accvgpr_read_b32 v{vT+2+i%4}, a{aO+qb*64+i}")
            A(f"v_mul_f32 v{vT+2+i%4}, v{vT+2+i%4}, v{vT+1}")
            A(f"v_accvgpr_write_b32 a{aO+qb*64+i}, v{vT+2+i%4}")
        A(f"v_mov_b32 v{vPS}, 0")
        for i in range(0, 16, 2):
            A(f"v_sub_f32 v{vE}, v{s+i}, v{vT}")
            A(f"v_sub_f32 v{vE+1}, v{s+i+1}, v{vT}")
            A(f"v_exp_f32 v{vE}, v{vE}")
            A(f"v_exp_f32 v{vE+1}, v{vE+1}")
            A("s_nop 0")
            A(f"v_add_f32 v{vPS}, v{vPS}, v{vE}")
            A(f"v_add_f32 v{vPS}, v{vPS}, v{vE+1}")
            A(f"v_cvt_pk_bf16_f32 v{vP+8*qb+i//2}, v{vE}, v{vE+1}")
        A("s_nop 1")
        A(f"s_setpc_b64 s[{sRET}:{sRET+1}]")
    A("L_code_end:")
    A("s_endpgm")

def gen_reduce_kernel(A, name):
    kernel_begin(A, name)
    A("s_cmp_ge_u32 s2, 864")
    A("s_cbranch_scc1 L_rk_end")
    stamp(A, 0)
    A(f"""
    s_load_dwordx2 s[{sWS}:{sWS+1}], s[0:1], 96
    s_load_dwordx2 s[8:9], s[0:1], 80
    v_lshrrev_b32 v1, 6, v0
    v_and_b32 v7, 63, v0
    v_readfirstlane_b32 s3, v1
    v_lshlrev_b32 v1, 4, v7
    s_mul_i32 s24, s2, 2428
    s_lshr_b32 s24, s24, 16
    s_mul_i32 s25, s24, 27
    s_sub_u32 s25, s2, s25
    s_lshl_b32 s25, s25, 1
    s_add_u32 s25, s25, s3             ; tt
    s_mul_i32 s26, s24, {PART}
    s_lshl_b32 s27, s25, 11
    s_add_u32 s26, s26, s27
    s_mov_b32 s22, {32*PART}
    s_mov_b32 s23, 0x20000
    s_mov_b32 s10, {16*96*1152*2}
    s_mov_b32 s11, 0x20000
    s_waitcnt lgkmcnt(0)
    s_mov_b32 s20, s{sWS}
    s_mov_b32 s21, s{sWS+1}
    """)
    for p in range(8):
        for m in range(2):
            A(f"buffer_load_dwordx4 {vr(32+(p*2+m)*4,4)}, v1, s[20:23], s26 offen offset:{1024*m} {CFG['rfl']}")
        if p < 7: A(f"s_add_u32 s26, s26, {PCU}")
    stamp(A, 1)
    A(f"""
    s_mov_b32 s30, 0x3f80
    s_mov_b32 s31, 0x3f800000
    s_and_b32 s27, s24, 15
    s_mul_i32 s28, s27, {96*2304}
    s_lshr_b32 s27, s24, 4
    s_mul_i32 s27, s27, 1152
    s_add_u32 s28, s28, s27
    s_mul_i32 s27, s25, 43
    s_lshr_b32 s27, s27, 9             ; w' (4 = extra)
    s_mul_i32 s29, s27, 12
    s_sub_u32 s29, s25, s29            ; T
    s_cmp_eq_u32 s27, 4
    s_cselect_b32 s32, 1, 2
    s_cselect_b32 s33, 1, 3
    s_lshl_b32 s27, s27, 8
    s_add_u32 s28, s28, s27
    s_lshr_b32 s27, s29, s32           ; qb
    s_mul_i32 s27, s27, {32*2304}
    s_add_u32 s28, s28, s27
    s_and_b32 s27, s29, s33            ; ct
    s_lshl_b32 s27, s27, 6
    s_add_u32 s28, s28, s27
    v_and_b32 v2, 31, v7
    v_lshrrev_b32 v3, 5, v7
    v_mul_u32_u24 v4, 2304, v2
    v_lshl_add_u32 v4, v3, 5, v4
    """)
    for p in range(8):
        A(f"s_waitcnt vmcnt({14 - 2*p})")
        for m in range(2):
            for d in range(4):
                src = 32 + (p*2+m)*4 + d
                for hi in range(2):
                    acc = 8 + m*8 + d*2 + hi
                    A(f"v_dot2_f32_bf16 v{acc}, v{src}, s{31 if hi else 30}, {'0' if p == 0 else f'v{acc}'}")
    A("s_nop 2")
    for m in range(2):
        for d in range(4):
            A(f"v_cvt_pk_bf16_f32 v{24+m*4+d}, v{8+m*8+2*d}, v{9+m*8+2*d}")
        A(f"buffer_store_dwordx4 {vr(24+m*4,4)}, v4, s[8:11], s28 offen offset:{m*16}")
    if CFG["stamps"]:
        A("s_waitcnt vmcnt(0)")
        stamp(A, 2)
        A("s_cmp_lg_u32 s3, 0")
        A("s_cbranch_scc1 L_rk_end")
        A("s_waitcnt lgkmcnt(0)")
        A(f"s_lshl_b32 s34, s2, 6")
        A(f"s_add_u32 s34, s34, {STAMP_OFF + 1024 * 64}")
        A("v_mov_b32 v1, s34")
        for i in range(3):
            A(f"v_mov_b32 v2, s{sST[i]}")
            A(f"global_store_dword v1, v2, s[{sWS}:{sWS+1}] offset:{4*i}")
    A("L_rk_end:")
    A("s_endpgm")

def gen(**kw):
    CFG.update(kw)
    if CFG["fuse"]: CFG["split_reduce"] = False
    if CFG["coop"]: CFG["apf"] = 0
    CFG["stfl"] = CFG["fst"] if CFG["fst"] is not None else ("" if (CFG["split_reduce"] or CFG["wb"]) else "sc1")
    A = Asm()
    for l in open("cdna_kernels/" + NAME + ".s.ref").read().split("\n"):
        if not l.startswith(";"): break
        if "@launch" in l or "Override launch" in l or "grid=ceil" in l: continue
        A.L.append(l)
    if CFG["split_reduce"]:
        header(A, ["; @launch kernel=main_kernel grid=(256,1,1) block=(256,1,1) lds=163840",
                   "; @launch kernel=reduce_kernel grid=(864,1,1) block=(128,1,1) lds=0"])
        gen_main(A, "main_kernel")
        gen_reduce_kernel(A, "reduce_kernel")
        descriptor(A, "main_kernel")
        descriptor(A, "reduce_kernel", vgpr=96, accum=96, first=False)
    else:
        header(A, ["; @launch grid=(256,1,1) block=(256,1,1) lds=163840"])
        gen_main(A, NAME + "_kernel")
        descriptor(A, NAME + "_kernel")
    return A.text()

if __name__ == "__main__":
    out = sys.argv[1] if len(sys.argv) > 1 else "cdna_kernels/" + NAME + ".s"
    kw = {}
    for a in sys.argv[2:]:
        k, v = a.split("=")
        kw[k] = eval(v)
    open(out, "w").write(gen(**kw))
```
